```python
import torch

def _softmax(x, axis=-1):
    return torch.softmax(x, dim=axis)
def _gelu(x):
    return torch.nn.functional.gelu(x, approximate="tanh")
def _silu(x):
    return torch.nn.functional.silu(x)
def _sigmoid(x):
    return torch.sigmoid(x)
def _layernorm(x, axis=-1, eps=1e-5):
    m = x.mean(dim=axis, keepdim=True)
    v = x.var(dim=axis, keepdim=True, unbiased=False)
    return (x - m) / torch.sqrt(v + eps)
def _scatter_add(tgt, idx, src, axis=0):
    return tgt.clone().index_add_(axis, idx, src)
def _segment_sum(src, seg, n):
    out = torch.zeros((n,) + src.shape[1:], dtype=src.dtype)
    return out.index_add_(0, seg, src)
def _pad(x, pw):
    flat = tuple(v for pair in reversed(pw) for v in pair)
    return torch.nn.functional.pad(x, flat)

kernel_name = 'recurrent_scan__softmax_full_mha__mixer_channel_mlp__prompt'

def setup_inputs():

    _w = (lambda a: (lambda t: t.to(torch.bfloat16) if t.is_floating_point() else t)(torch.as_tensor(a)))
    def _A_setup():
        B, S, D = 1, 2048, 640
        return {
            "x": _w((lambda *s: torch.randn(*s, dtype=torch.bfloat16) * 0.05)(B, S, D)),
            "wqkv": _w((lambda *s: torch.randn(*s, dtype=torch.bfloat16) * 0.05)(D, 3 * D)),
            "wo": _w((lambda *s: torch.randn(*s, dtype=torch.bfloat16) * 0.05)(D, D)),
        }
    _A_in = _A_setup()

    def _B_setup():
        B, S, D, F = 1, 2048, 640, 1728
        return {
            "x": _w((lambda *s: torch.randn(*s, dtype=torch.bfloat16) * 0.05)(B, S, D)),
            "w1": _w((lambda *s: torch.randn(*s, dtype=torch.bfloat16) * 3.2)(D, F) * (D ** -0.5)),
            "b1": _w((lambda *s: torch.randn(*s, dtype=torch.bfloat16) * 1.6)(F)),
            "w2": _w((lambda *s: torch.randn(*s, dtype=torch.bfloat16) * 0.05)(F, D) * (F ** -0.5)),
            "b2": _w((lambda *s: torch.randn(*s, dtype=torch.bfloat16) * 0.05)(D)),
        }
    _B_in = _B_setup()

    return {
        "A_x": _A_in["x"],
        "A_wqkv": _A_in["wqkv"],
        "A_wo": _A_in["wo"],
        "B_x": _B_in["x"],
        "B_w1": _B_in["w1"],
        "B_b1": _B_in["b1"],
        "B_w2": _B_in["w2"],
        "B_b2": _B_in["b2"],
    }

def reference(A_x, A_wqkv, A_wo, B_x, B_w1, B_b1, B_w2, B_b2):
    def _A_ref(x, wqkv, wo):
        B, S, D = x.shape
        H = 32; Dh = D // H
        qkv = (lambda x, *d: x.permute(*d))((x @ wqkv).reshape(B, S, 3, H, Dh), 2, 0, 3, 1, 4)
        q, k, v = qkv[0], qkv[1], qkv[2]
        scale = Dh ** -0.5
        scores = torch.einsum("bhqd,bhkd->bhqk", q, k) * scale
        p = _softmax(scores, axis=-1)
        o = torch.einsum("bhqk,bhkd->bhqd", p, v)
        return (lambda x, *d: x.permute(*d))(o, 0, 2, 1, 3).reshape(B, S, D) @ wo

    def _B_ref(x, w1, b1, w2, b2):
        y = _layernorm(x, axis=-1)
        h = _gelu(torch.einsum("bsd,df->bsf", y, w1) + b1)
        return torch.einsum("bsf,fd->bsd", h, w2) + b2

    x = A_x
    xn = _layernorm(x, axis=-1)
    s = _A_ref(xn, A_wqkv, A_wo)
    g = _silu(_B_ref(xn, B_w1, B_b1, B_w2, B_b2))
    return x + s * g
```

```python
import numpy as np
FR = 64*40*1024
XN_OFF = 0
Y_OFF = FR
QF_OFF = 2*FR
KV_OFF = 3*FR
H_OFF = 5*FR
O_OFF = H_OFF + 64*108*1024
G_OFF = O_OFF + FR
WS_USED = G_OFF + FR

def unfrag(ws, off, KG):
    a = ws[off//2: off//2 + 64*KG*512].reshape(64, KG, 2, 32, 8)
    return a.transpose(0, 3, 1, 2, 4).reshape(2048, KG*16)

def unfrag_d(ws, off, KG):
    a = ws[off//2: off//2 + 64*KG*512].reshape(64, KG, 2, 32, 2, 4)
    return a.transpose(0, 3, 1, 4, 2, 5).reshape(2048, KG*16)

def unqkv(ws):
    qf = ws[QF_OFF//2: QF_OFF//2 + 32*64*640].reshape(32, 64, 640)
    qlo = qf[:, :, :512].reshape(32, 64, 2, 32, 8).transpose(1, 3, 0, 2, 4).reshape(2048, 32, 16)
    qhi = qf[:, :, 512:].reshape(32, 64, 32, 4).transpose(1, 2, 0, 3).reshape(2048, 32, 4)
    q = np.concatenate([qlo, qhi], axis=2)
    kv = ws[KV_OFF//2: KV_OFF//2 + 32*64*1280].reshape(32, 64, 1280)
    klo = kv[:, :, :512].reshape(32, 64, 2, 32, 8).transpose(1, 3, 0, 2, 4).reshape(2048, 32, 16)
    khi = kv[:, :, 512:640].reshape(32, 64, 32, 4).transpose(1, 2, 0, 3).reshape(2048, 32, 4)
    k = np.concatenate([klo, khi], axis=2)
    vv = kv[:, :, 640:].reshape(32, 64, 2, 2, 20, 2, 4)
    v = vv.transpose(1, 2, 5, 3, 6, 0, 4).reshape(2048, 32, 20)
    return q, k, v

def uno(ws):
    a = ws[O_OFF//2: O_OFF//2 + 64*40*512].reshape(64, 40, 2, 32, 2, 4)
    main = a[:, :32]
    main = main.transpose(0, 3, 1, 4, 2, 5).reshape(2048, 32, 16)
    left = a[:, 32:]
    left = left.transpose(0, 3, 1, 2, 4, 5).reshape(2048, 32, 4)
    return np.concatenate([main, left], axis=2)

def ung(ws):
    a = ws[G_OFF//2: G_OFF//2 + 64*20*1024].reshape(64, 20, 2, 2, 32, 2, 4)
    return a.transpose(0, 4, 1, 2, 5, 3, 6).reshape(2048, 640)
```

```python
import sys, math, struct
from layout import *

NAME = "recurrent_scan__softmax_full_mha__mixer_channel_mlp__prompt"
WS_BYTES = 268435456


def f32bits(x):
    return struct.unpack("<I", struct.pack("<f", x))[0]


class Em:
    def __init__(self):
        self.l = []

    def __call__(self, s):
        for line in s.split("\n"):
            line = line.strip()
            if not line:
                continue
            if line.endswith(":") or line.startswith("."):
                self.l.append(line)
            else:
                self.l.append("    " + line)

    def text(self):
        return "\n".join(self.l) + "\n"


def srd(e, s, lo, hi, nbytes):
    e(f"s_mov_b32 s{s}, {lo}")
    e(f"s_and_b32 s{s+1}, {hi}, 0xffff")
    e(f"s_mov_b32 s{s+2}, {nbytes}")
    e(f"s_mov_b32 s{s+3}, 0x00020000")


def csel(e, dst, a, b):
    e(f"s_mov_b32 {dst}, {b}")
    e(f"s_cselect_b32 {dst}, {a}, {dst}")


def kernel_head(e, name):
    e(f".p2align 8")
    e(f".globl {name}")
    e(f".type {name},@function")
    e(f"{name}:")


def kd(name, vgpr, sgpr=96):
    acc = (vgpr + 3) // 4 * 4
    return f""".amdhsa_kernel {name}
  .amdhsa_next_free_vgpr {vgpr}
  .amdhsa_next_free_sgpr {sgpr}
  .amdhsa_accum_offset {acc}
  .amdhsa_group_segment_fixed_size 0
  .amdhsa_kernarg_size 88
  .amdhsa_user_sgpr_count 2
  .amdhsa_user_sgpr_kernarg_segment_ptr 1
  .amdhsa_system_sgpr_workgroup_id_x 1
.end_amdhsa_kernel
"""


def wave_sum(e, v, sdst):
    for sh in (1, 2, 4, 8):
        e("s_nop 1")
        e(f"v_add_f32_dpp v{v}, v{v}, v{v} row_shr:{sh} row_mask:0xf bank_mask:0xf bound_ctrl:0")
    e("s_nop 1")
    e(f"v_add_f32_dpp v{v}, v{v}, v{v} row_bcast:15 row_mask:0xa bank_mask:0xf")
    e("s_nop 1")
    e(f"v_add_f32_dpp v{v}, v{v}, v{v} row_bcast:31 row_mask:0xc bank_mask:0xf")
    e("s_nop 1")
    e(f"v_readlane_b32 s{sdst}, v{v}, 63")
    e("s_nop 1")


def bf16r(e, v, t):
    e(f"v_cvt_pk_bf16_f32 v{t}, v{v}, v{v}")
    e(f"v_lshlrev_b32 v{v}, 16, v{t}")


def gen_ln(e):
    kernel_head(e, "ln_kernel")
    e("""
    s_cmp_ge_u32 s2, 512
    s_cbranch_scc1 ln_done
    s_load_dwordx2 s[4:5], s[0:1], 0
    s_load_dwordx2 s[6:7], s[0:1], 80
    v_lshrrev_b32 v1, 6, v0
    v_and_b32 v0, 63, v0
    v_lshlrev_b32 v2, 4, v0
    v_readfirstlane_b32 s20, v1
    v_lshlrev_b32 v3, 2, v0
    s_lshl_b32 s21, s2, 2
    s_nop 1
    s_add_u32 s21, s21, s20
    s_mul_i32 s22, s21, 1280
    s_waitcnt lgkmcnt(0)
    """)
    srd(e, 8, "s4", "s5", 2048 * 1280)
    srd(e, 12, "s6", "s7", WS_BYTES)
    e("""
    buffer_load_dwordx4 v[4:7], v2, s[8:11], s22 offen
    buffer_load_dword v8, v3, s[8:11], s22 offen offset:1024
    s_lshr_b32 s23, s21, 5
    s_and_b32 s24, s21, 31
    s_mul_i32 s23, s23, 40960
    s_lshl_b32 s24, s24, 4
    s_add_u32 s23, s23, s24
    """)
    e(f"s_add_u32 s25, s23, {Y_OFF}")
    e(f"s_add_u32 s23, s23, {XN_OFF}")
    e("""
    v_lshrrev_b32 v40, 1, v0
    v_lshlrev_b32 v40, 10, v40
    v_and_b32 v42, 1, v0
    v_lshlrev_b32 v42, 9, v42
    v_add_u32 v40, v40, v42
    v_lshrrev_b32 v41, 3, v0
    v_add_u32 v41, 32, v41
    v_lshlrev_b32 v41, 10, v41
    v_bfe_u32 v42, v0, 2, 1
    v_lshlrev_b32 v42, 9, v42
    v_add_u32 v41, v41, v42
    v_and_b32 v42, 3, v0
    v_lshlrev_b32 v42, 2, v42
    v_add_u32 v41, v41, v42
    """)
    e(f"v_mov_b32 v38, 0x{f32bits(1.0/640.0):08x}")
    e(f"v_mov_b32 v39, 0x{f32bits(1e-5):08x}")
    e("s_waitcnt vmcnt(0)")
    F = list(range(10, 20))
    E_ = list(range(20, 30))
    P = [4, 5, 6, 7, 8]

    def unpack():
        for i in range(5):
            e(f"v_lshlrev_b32 v{F[2*i]}, 16, v{P[i]}")
            e(f"v_and_b32 v{F[2*i+1]}, 0xffff0000, v{P[i]}")

    def ln(soff):
        e(f"v_add_f32 v30, v{F[0]}, v{F[1]}")
        e(f"v_add_f32 v31, v{F[2]}, v{F[3]}")
        e(f"v_add_f32 v32, v{F[4]}, v{F[5]}")
        e(f"v_add_f32 v33, v{F[6]}, v{F[7]}")
        e(f"v_add_f32 v34, v{F[8]}, v{F[9]}")
        e("v_add_f32 v30, v30, v31")
        e("v_add_f32 v32, v32, v33")
        e("v_add_f32 v30, v30, v34")
        e("v_add_f32 v30, v30, v32")
        wave_sum(e, 30, 26)
        e("v_mul_f32 v31, s26, v38")
        for i in range(10):
            e(f"v_sub_f32 v{E_[i]}, v{F[i]}, v31")
        e(f"v_mul_f32 v30, v{E_[0]}, v{E_[0]}")
        e(f"v_mul_f32 v32, v{E_[1]}, v{E_[1]}")
        for i in range(2, 10, 2):
            e(f"v_fmac_f32 v30, v{E_[i]}, v{E_[i]}")
            e(f"v_fmac_f32 v32, v{E_[i+1]}, v{E_[i+1]}")
        e("v_add_f32 v30, v30, v32")
        wave_sum(e, 30, 26)
        e("v_mul_f32 v32, s26, v38")
        bf16r(e, 31, 33)
        bf16r(e, 32, 33)
        e("v_add_f32 v32, v32, v39")
        bf16r(e, 32, 33)
        e("v_sqrt_f32 v32, v32")
        e("s_nop 0")
        bf16r(e, 32, 33)
        e("v_rcp_f32 v32, v32")
        for i in range(10):
            e(f"v_sub_f32 v{E_[i]}, v{F[i]}, v31")
        for i in range(5):
            e(f"v_cvt_pk_bf16_f32 v{P[i]}, v{E_[2*i]}, v{E_[2*i+1]}")
        unpack()
        for i in range(10):
            e(f"v_mul_f32 v{F[i]}, v{F[i]}, v32")
        for i in range(5):
            e(f"v_cvt_pk_bf16_f32 v{P[i]}, v{F[2*i]}, v{F[2*i+1]}")
        e(f"buffer_store_dwordx4 v[4:7], v40, s[12:15], {soff} offen")
        e(f"buffer_store_dword v8, v41, s[12:15], {soff} offen")

    unpack()
    ln("s23")
    unpack()
    e("s_nop 1")
    ln("s25")
    e("ln_done:")
    e("s_endpgm")
    return kd("ln_kernel", 48, 32)


class Gemm:
    def __init__(self, pfx, NWM, NWN, TM, TN, KGS, NBUF, KG, korder, vbase, sbase, lds_base=0):
        self.pfx = pfx
        self.NWM, self.NWN, self.TM, self.TN = NWM, NWN, TM, TN
        self.KGS, self.NBUF, self.KG, self.korder = KGS, NBUF, KG, korder
        self.NW = NWM * NWN
        self.BM = NWM * TM * 32
        self.BN = NWN * TN * 32
        self.pitch = self.BN * 2
        self.ASB = (self.BM // 32) * KGS * 1024
        self.BSB = KGS * 16 * self.pitch
        self.SB = self.ASB + self.BSB
        self.lds_base = lds_base
        self.lds_bytes = self.SB * NBUF
        assert KG % KGS == 0
        self.NST = KG // KGS
        assert (self.BM // 32) == self.NW, "one token tile per wave for DMA"
        self.nA = KGS
        self.rpi = 1024 // self.pitch
        self.nB = self.BSB // 1024 // self.NW
        assert self.nB * self.NW * 1024 == self.BSB and self.nB in (1, 2)
        self.D = self.nA + self.nB
        v = vbase
        self.acc = v; v += TM * TN * 16
        self.fr = []
        for p in range(2):
            a = [v + 4 * j for j in range(TM)]; v += 4 * TM
            b = [v + 4 * j for j in range(TN)]; v += 4 * TN
            self.fr.append((a, b))
        self.vA0 = v; v += 1
        self.vB0 = [v + j for j in range(TN)]; v += TN
        self.vA = v; v += 1
        self.vB = [v + j for j in range(TN)]; v += TN
        self.vDA = v; v += 1
        self.vDB = [v + j for j in range(self.nB)]; v += self.nB
        self.vt = v; v += 4
        self.vend = v
        s = sbase
        self.sRd = s; s += 1
        self.sWr = s; s += 1
        self.sAo = s; s += 1
        self.sBo = s; s += 1
        self.sBinc = s; s += 1
        self.sCnt = s; s += 1
        self.sMA = s; s += 1
        self.sMB = s; s += 1
        self.st = s; s += 2
        self.send = s

    def accr(self, tm, tn):
        return self.acc + (tm * self.TN + tn) * 16

    def setup(self, e, sWave, sLdw):
        t = self.vt
        TM, TN, KGS = self.TM, self.TN, self.KGS
        st = self.st
        lg = int(math.log2(self.NWN))
        e(f"s_lshr_b32 s{st}, {sWave}, {lg}")
        e(f"s_and_b32 s{st+1}, {sWave}, {self.NWN-1}")
        e(f"v_lshlrev_b32 v{self.vDA}, 4, v0")
        e(f"s_mul_i32 s{st}, s{st}, {TM*KGS*1024}")
        e(f"s_add_u32 s{st}, s{st}, {self.lds_base}")
        e(f"v_add_u32 v{self.vA0}, s{st}, v{self.vDA}")
        e(f"v_bfe_u32 v{t}, v0, 2, 2")
        e(f"v_lshrrev_b32 v{t+1}, 5, v0")
        hmul = 8 if self.korder == 'nat' else 4
        e(f"v_mad_u32_u24 v{t+1}, v{t+1}, {hmul}, v{t}")
        e(f"v_mul_u32_u24 v{t+1}, {self.pitch}, v{t+1}")
        e(f"v_bfe_u32 v{t+2}, v0, 4, 1")
        e(f"v_lshl_add_u32 v{t+1}, v{t+2}, 5, v{t+1}")
        e(f"v_and_b32 v{t+2}, 3, v0")
        e(f"v_lshl_add_u32 v{t+1}, v{t+2}, 3, v{t+1}")
        e(f"v_add_u32 v{t+1}, {self.lds_base + self.ASB}, v{t+1}")
        if self.pitch == 128:
            e(f"v_lshrrev_b32 v{t}, 1, v{t}")
        for j in range(TN):
            e(f"s_mul_i32 s{st}, s{st+1}, {TN}")
            e(f"s_add_u32 s{st}, s{st}, {j}")
            e(f"v_xor_b32 v{t+2}, s{st}, v{t}")
            e(f"v_lshl_add_u32 v{self.vB0[j]}, v{t+2}, 6, v{t+1}")
        ppr = self.pitch // 16
        lgp = int(math.log2(ppr))
        e(f"v_lshrrev_b32 v{t}, {lgp}, v0")
        e(f"v_and_b32 v{t+1}, {ppr-1}, v0")
        e(f"v_lshrrev_b32 v{t+2}, 2, v{t+1}")
        if self.pitch == 256:
            e(f"v_and_b32 v{t+3}, 3, v{t}")
        else:
            e(f"v_bfe_u32 v{t+3}, v{t}, 1, 1")
        e(f"v_xor_b32 v{t+2}, v{t+2}, v{t+3}")
        e(f"v_and_b32 v{t+1}, 3, v{t+1}")
        e(f"v_lshlrev_b32 v{t+1}, 4, v{t+1}")
        e(f"v_lshl_add_u32 v{t+1}, v{t+2}, 6, v{t+1}")
        e(f"s_mul_i32 s{st}, {sWave}, {self.rpi*self.nB}")
        e(f"v_add_u32 v{t}, s{st}, v{t}")
        e(f"v_mul_lo_u32 v{t}, v{t}, {sLdw}")
        e(f"v_add_u32 v{self.vDB[0]}, v{t}, v{t+1}")
        if self.nB == 2:
            e(f"s_mul_i32 s{st}, {sLdw}, {self.rpi}")
            e(f"s_sub_u32 s{st}, s{st}, 1024")
            e(f"v_add_u32 v{self.vDB[1]}, s{st}, v{self.vDB[0]}")
        e(f"s_mul_i32 s{self.sMA}, {sWave}, {KGS*1024}")
        e(f"s_add_u32 s{self.sMA}, s{self.sMA}, {self.lds_base}")
        e(f"s_mul_i32 s{self.sMB}, {sWave}, {self.nB*1024}")
        e(f"s_add_u32 s{self.sMB}, s{self.sMB}, {self.lds_base + self.ASB}")
        e(f"s_mul_i32 s{self.sBinc}, {sLdw}, {16*KGS}")
        e(f"s_mov_b32 s{self.sAo}, 0")
        e(f"s_mov_b32 s{self.sBo}, 0")
        e(f"s_mov_b32 s{self.sWr}, 0")
        e(f"s_mov_b32 s{self.sRd}, 0")

    def dma(self, e, SA, SBd):
        e(f"s_add_u32 m0, s{self.sWr}, s{self.sMA}")
        e(f"s_add_u32 s{self.st}, s{self.sWr}, s{self.sMB}")
        for i in range(self.nA):
            off = f" offset:{i*1024}" if i else ""
            e(f"buffer_load_dwordx4 v{self.vDA}, s[{SA}:{SA+3}], s{self.sAo} offen{off} lds")
        e(f"s_mov_b32 m0, s{self.st}")
        e(f"s_add_u32 s{self.sAo}, s{self.sAo}, {self.KGS*1024}")
        for i in range(self.nB):
            off = f" offset:{i*1024}" if i else ""
            e(f"buffer_load_dwordx4 v{self.vDB[i]}, s[{SBd}:{SBd+3}], s{self.sBo} offen{off} lds")
        e(f"s_add_u32 s{self.sBo}, s{self.sBo}, s{self.sBinc}")
        e(f"s_add_u32 s{self.sWr}, s{self.sWr}, {self.SB}")
        e(f"s_cmp_eq_u32 s{self.sWr}, {self.SB*self.NBUF}")
        e(f"s_cselect_b32 s{self.sWr}, 0, s{self.sWr}")

    def reads(self, e, p, kg):
        a, b = self.fr[p]
        out = []
        for j in range(self.TM):
            out.append(f"ds_read_b128 v[{a[j]}:{a[j]+3}], v{self.vA} offset:{j*self.KGS*1024 + kg*1024}")
        tmul = 4 if self.korder == 'nat' else 8
        for j in range(self.TN):
            for t in range(2):
                out.append(f"ds_read_b64_tr_b16 v[{b[j]+2*t}:{b[j]+2*t+1}], v{self.vB[j]} offset:{(kg*16 + t*tmul)*self.pitch}")
        return out

    def nreads(self):
        return self.TM + 2 * self.TN

    def mfmas(self, p, orient):
        a, b = self.fr[p]
        out = []
        for tm in range(self.TM):
            for tn in range(self.TN):
                d = self.accr(tm, tn)
                if orient == 'n':
                    s0, s1 = b[tn], a[tm]
                else:
                    s0, s1 = a[tm], b[tn]
                out.append(f"v_mfma_f32_32x32x16_bf16 v[{d}:{d+15}], v[{s0}:{s0+3}], v[{s1}:{s1+3}], v[{d}:{d+15}]")
        return out

    def set_bases(self, e):
        e(f"v_add_u32 v{self.vA}, s{self.sRd}, v{self.vA0}")
        for j in range(self.TN):
            e(f"v_add_u32 v{self.vB[j]}, s{self.sRd}, v{self.vB0[j]}")

    def adv_rd(self, e):
        e(f"s_add_u32 s{self.sRd}, s{self.sRd}, {self.SB}")
        e(f"s_cmp_eq_u32 s{self.sRd}, {self.SB*self.NBUF}")
        e(f"s_cselect_b32 s{self.sRd}, 0, s{self.sRd}")

    def prologue(self, e, SA, SBd):
        for s in range(self.NBUF - 1):
            self.dma(e, SA, SBd)

    def main(self, e, SA, SBd, orient, tag):
        L = f"{self.pfx}_{tag}_loop"
        e(f"s_waitcnt vmcnt({(self.NBUF-2)*self.D})")
        e("s_barrier")
        self.set_bases(e)
        for r in self.reads(e, 0, 0):
            e(r)
        e(f"s_mov_b32 s{self.sCnt}, {self.NST}")
        e(f"{L}:")
        e(f"s_waitcnt vmcnt({(self.NBUF-3)*self.D})")
        e("s_barrier")
        self.dma(e, SA, SBd)
        nr = self.nreads()
        for kg in range(self.KGS):
            p = kg & 1
            if kg == self.KGS - 1:
                self.adv_rd(e)
                self.set_bases(e)
                rd = self.reads(e, p ^ 1, 0)
            else:
                rd = self.reads(e, p ^ 1, kg + 1)
            for r in rd:
                e(r)
            e(f"s_waitcnt lgkmcnt({nr})")
            for m in self.mfmas(p, orient):
                e(m)
        e(f"s_sub_u32 s{self.sCnt}, s{self.sCnt}, 1")
        e(f"s_cmp_lg_u32 s{self.sCnt}, 0")
        e(f"s_cbranch_scc1 {L}")
        e("s_waitcnt lgkmcnt(0)")
        e("s_nop 15")


def load_bias_init(e, g, srdB, sN0, tmp):
    e(f"v_lshrrev_b32 v{g.vt}, 5, v0")
    e(f"v_lshlrev_b32 v{g.vt}, 3, v{g.vt}")
    for tn in range(g.TN):
        for gg in range(4):
            r = tmp + (tn * 4 + gg) * 2
            e(f"buffer_load_dwordx2 v[{r}:{r+1}], v{g.vt}, s[{srdB}:{srdB+3}], {sN0} offen offset:{(tn*32+gg*8)*2}")


def finish_bias_init(e, g, tmp):
    for tn in range(g.TN):
        for gg in range(4):
            r = tmp + (tn * 4 + gg) * 2
            for tm in range(g.TM):
                d = g.accr(tm, tn) + gg * 4
                e(f"v_lshlrev_b32 v{d}, 16, v{r}")
                e(f"v_and_b32 v{d+1}, 0xffff0000, v{r}")
                e(f"v_lshlrev_b32 v{d+2}, 16, v{r+1}")
                e(f"v_and_b32 v{d+3}, 0xffff0000, v{r+1}")


K1_KGS = 2
K1_NBUF = 6


def gen_k1(e):
    g = Gemm("k1", NWM=4, NWN=2, TM=2, TN=2, KGS=K1_KGS, NBUF=K1_NBUF, KG=40, korder='nat', vbase=8, sbase=40)
    kernel_head(e, "gemm1_kernel")
    e("""
    s_cmp_ge_u32 s2, 256
    s_cbranch_scc1 k1_done
    s_load_dwordx2 s[4:5], s[0:1], 80
    s_load_dwordx2 s[6:7], s[0:1], 8
    s_load_dwordx2 s[8:9], s[0:1], 32
    s_load_dwordx2 s[10:11], s[0:1], 40
    v_lshrrev_b32 v1, 6, v0
    v_and_b32 v0, 63, v0
    s_and_b32 s20, s2, 7
    v_readfirstlane_b32 s24, v1
    s_lshr_b32 s21, s2, 3
    s_and_b32 s22, s21, 3
    s_lshr_b32 s23, s21, 2
    s_and_b32 s25, s20, 3
    s_lshl_b32 s25, s25, 2
    s_add_u32 s25, s25, s22
    s_lshr_b32 s26, s20, 2
    """)
    e("""
    s_cmp_eq_u32 s26, 0
    s_cselect_b32 s27, 15, 14
    s_cmp_ge_u32 s25, s27
    s_cbranch_scc1 k1_done
    s_lshl_b32 s28, s25, 8
    s_waitcnt lgkmcnt(0)
    """)
    e("""
    s_cmp_eq_u32 s26, 0
    s_cselect_b32 s30, s6, s8
    s_cselect_b32 s31, s7, s9
    """)
    csel(e, "s29", 3840, 3456)
    csel(e, "s32", XN_OFF, Y_OFF)
    csel(e, "s33", 640*3840, 640*3456)
    e("""
    s_add_u32 s16, s30, s28
    s_addc_u32 s17, s31, 0
    s_and_b32 s17, s17, 0xffff
    s_sub_u32 s18, s33, s28
    s_mov_b32 s19, 0x00020000
    """)
    e("""
    s_lshl_b32 s34, s23, 3
    s_add_u32 s34, s34, s24
    s_mul_i32 s35, s34, 40960
    s_add_u32 s35, s35, s32
    s_add_u32 s12, s4, s35
    s_addc_u32 s13, s5, 0
    s_and_b32 s13, s13, 0xffff
    s_mov_b32 s14, 40960
    s_mov_b32 s15, 0x00020000
    """)
    srd(e, 36, "s4", "s5", WS_BYTES)
    g.setup(e, "s24", "s29")
    sWM, sWN = g.send, g.send + 1
    e(f"s_lshr_b32 s{sWM}, s24, 1")
    e(f"s_and_b32 s{sWN}, s24, 1")
    sT = g.send + 4
    tmpv = g.vend
    srd(e, sT + 2, "s10", "s11", 1728 * 2)
    assert (sT + 2) % 4 == 0, sT
    e(f"s_lshl_b32 s{sT}, s{sWN}, 7")
    e(f"s_add_u32 s{sT}, s{sT}, s28")
    load_bias_init(e, g, sT + 2, f"s{sT}", tmpv)
    g.prologue(e, 12, 16)
    e("s_cmp_eq_u32 s26, 0")
    e("s_cbranch_scc1 k1_qkv")
    e(f"s_waitcnt vmcnt({(g.NBUF-1)*g.D})")
    finish_bias_init(e, g, tmpv)
    g.main(e, 12, 16, 'n', 'mlp')
    e(f"s_lshl_b32 s{sT}, s{sWN}, 6")
    e(f"s_lshr_b32 s{sT+1}, s28, 1")
    e(f"s_add_u32 s{sT}, s{sT}, s{sT+1}")
    e(f"s_cmp_ge_u32 s{sT}, 1728")
    e("s_cbranch_scc1 k1_end")
    e(f"s_lshl_b32 s{sT+1}, s23, 3")
    e(f"s_lshl_b32 s{sT+6}, s{sWM}, 1")
    e(f"s_add_u32 s{sT+1}, s{sT+1}, s{sT+6}")
    e(f"s_mul_i32 s{sT+1}, s{sT+1}, 108")
    e(f"s_lshr_b32 s{sT}, s{sT}, 4")
    e(f"s_add_u32 s{sT}, s{sT}, s{sT+1}")
    e(f"s_lshl_b32 s{sT}, s{sT}, 10")
    e(f"s_add_u32 s{sT}, s{sT}, {H_OFF}")
    e(f"s_add_u32 s{sT+1}, s{sT}, {108*1024}")
    c0 = -2.0 * math.sqrt(2.0 / math.pi) * 1.4426950408889634
    c1 = c0 * 0.044715
    e(f"v_mov_b32 v{tmpv}, 0x{f32bits(c0):08x}")
    e(f"v_mov_b32 v{tmpv+1}, 0x{f32bits(c1):08x}")
    for tm in range(2):
        for tn in range(2):
            a = g.accr(tm, tn)
            for half in range(2):
                t = tmpv + 4 + 8 * ((tm * 4 + tn * 2 + half) & 1)
                pk = tmpv + 20 + 4 * ((tm * 4 + tn * 2 + half) & 1)
                r0 = a + half * 8
                for i in range(8):
                    e(f"v_mul_f32 v{t+i}, v{r0+i}, v{r0+i}")
                for i in range(8):
                    e(f"v_fma_f32 v{t+i}, v{t+i}, v{tmpv+1}, v{tmpv}")
                for i in range(8):
                    e(f"v_mul_f32 v{t+i}, v{t+i}, v{r0+i}")
                for i in range(8):
                    e(f"v_exp_f32 v{t+i}, v{t+i}")
                for i in range(8):
                    e(f"v_add_f32 v{t+i}, 1.0, v{t+i}")
                for i in range(8):
                    e(f"v_rcp_f32 v{t+i}, v{t+i}")
                for i in range(8):
                    e(f"v_mul_f32 v{t+i}, v{t+i}, v{r0+i}")
                for i in range(4):
                    e(f"v_cvt_pk_bf16_f32 v{pk+i}, v{t+2*i}, v{t+2*i+1}")
                so = sT + tm
                e(f"buffer_store_dwordx4 v[{pk}:{pk+3}], v{g.vDA}, s[36:39], s{so} offen offset:{(tn*2+half)*1024}")
    e("s_branch k1_end")
    e("k1_qkv:")
    for i in range(64):
        e(f"v_mov_b32 v{g.acc+i}, 0")
    e("s_cmp_ge_u32 s25, 10")
    e("s_cbranch_scc1 k1_v")
    g.main(e, 12, 16, 'n', 'qk')
    qs = (20 ** -0.5) * 1.4426950408889634
    e("s_cmp_lt_u32 s25, 5")
    e(f"s_cselect_b32 s{sT}, 0x{f32bits(qs):08x}, 1.0")
    csel(e, f"s{sT+1}", 1280, 2560)
    csel(e, f"s{sT+6}", QF_OFF, KV_OFF)
    e(f"s_cselect_b32 s{sT+7}, 0, 5")
    e(f"s_sub_u32 s{sT+7}, s25, s{sT+7}")
    e(f"s_lshl_b32 s{sT+7}, s{sT+7}, 5")
    e(f"s_lshl_b32 s{sT+2}, s{sWN}, 4")
    e(f"s_add_u32 s{sT+7}, s{sT+7}, s{sT+2}")
    e(f"s_lshl_b32 s{sT+2}, s23, 3")
    e(f"s_lshl_b32 s{sT+3}, s{sWM}, 1")
    e(f"s_add_u32 s{sT+2}, s{sT+2}, s{sT+3}")
    e(f"s_mul_i32 s{sT+2}, s{sT+2}, s{sT+1}")
    e(f"s_add_u32 s{sT+2}, s{sT+2}, s{sT+6}")
    e(f"s_add_u32 s{sT+3}, s{sT+2}, s{sT+1}")
    e(f"s_lshl_b32 s{sT+4}, s{sT+1}, 6")
    t = tmpv
    e(f"v_lshrrev_b32 v{t}, 5, v0")
    e(f"v_add_u32 v{t}, s{sT+7}, v{t}")
    e(f"v_and_b32 v{t+1}, 31, v0")
    e(f"v_lshlrev_b32 v{t+2}, 4, v{t+1}")
    e(f"v_lshlrev_b32 v{t+3}, 3, v{t+1}")
    for tn in range(2):
        for gg in range(4):
            c, hd, j, ad = t + 4, t + 5, t + 6, t + 7
            e(f"v_add_u32 v{c}, {8*tn+2*gg}, v{t}")
            e(f"v_mul_u32_u24 v{hd}, 205, v{c}")
            e(f"v_lshrrev_b32 v{hd}, 10, v{hd}")
            e(f"v_mul_u32_u24 v{j}, 5, v{hd}")
            e(f"v_sub_u32 v{j}, v{c}, v{j}")
            e(f"v_cmp_eq_u32 vcc, 4, v{j}")
            e(f"v_mul_lo_u32 v{ad}, v{hd}, s{sT+4}")
            e(f"v_lshrrev_b32 v{c}, 1, v{j}")
            e(f"v_lshl_add_u32 v{ad}, v{c}, 9, v{ad}")
            e(f"v_and_b32 v{c}, 1, v{j}")
            e(f"v_lshl_add_u32 v{ad}, v{c}, 3, v{ad}")
            e(f"v_cndmask_b32 v{c}, v{t+2}, v{t+3}, vcc")
            e(f"v_add_u32 v{ad}, v{ad}, v{c}")
            for tm in range(2):
                a = g.accr(tm, tn) + gg * 4
                pk = t + 8 + 2 * tm
                for i in range(4):
                    e(f"v_mul_f32 v{a+i}, s{sT}, v{a+i}")
                e(f"v_cvt_pk_bf16_f32 v{pk}, v{a}, v{a+1}")
                e(f"v_cvt_pk_bf16_f32 v{pk+1}, v{a+2}, v{a+3}")
                e(f"buffer_store_dwordx2 v[{pk}:{pk+1}], v{ad}, s[36:39], s{sT+2+tm} offen")
    e("s_branch k1_end")
    e("k1_v:")
    g.main(e, 12, 16, 't', 'v')
    e(f"s_sub_u32 s{sT}, s25, 10")
    e(f"s_lshl_b32 s{sT}, s{sT}, 7")
    e(f"s_lshl_b32 s{sT+1}, s{sWN}, 6")
    e(f"s_add_u32 s{sT}, s{sT}, s{sT+1}")
    e(f"s_lshl_b32 s{sT+2}, s23, 3")
    e(f"s_lshl_b32 s{sT+3}, s{sWM}, 1")
    e(f"s_add_u32 s{sT+2}, s{sT+2}, s{sT+3}")
    e(f"s_mul_i32 s{sT+2}, s{sT+2}, 2560")
    e(f"s_add_u32 s{sT+2}, s{sT+2}, {KV_OFF + 1280}")
    e(f"s_mov_b32 s{sT+4}, {64*2560}")
    t = tmpv
    e(f"v_and_b32 v{t}, 31, v0")
    e(f"v_add_u32 v{t}, s{sT}, v{t}")
    e(f"v_lshrrev_b32 v{t+1}, 5, v0")
    e(f"v_mul_u32_u24 v{t+1}, 320, v{t+1}")
    for tn in range(2):
        c, hd, d, ad = t + 4, t + 5, t + 6, t + 7
        e(f"v_add_u32 v{c}, {32*tn}, v{t}")
        e(f"v_mul_u32_u24 v{hd}, 3277, v{c}")
        e(f"v_lshrrev_b32 v{hd}, 16, v{hd}")
        e(f"v_mul_u32_u24 v{d}, 20, v{hd}")
        e(f"v_sub_u32 v{d}, v{c}, v{d}")
        e(f"v_mul_lo_u32 v{ad}, v{hd}, s{sT+4}")
        e(f"v_lshl_add_u32 v{ad}, v{d}, 4, v{ad}")
        e(f"v_add_u32 v{ad}, v{ad}, v{t+1}")
        for tm in range(2):
            a = g.accr(tm, tn)
            for half in range(2):
                pk = t + 8 + 4 * ((tm * 2 + half) & 1)
                for i in range(4):
                    e(f"v_cvt_pk_bf16_f32 v{pk+i}, v{a+half*8+2*i}, v{a+half*8+2*i+1}")
                e(f"buffer_store_dwordx4 v[{pk}:{pk+3}], v{ad}, s[36:39], s{sT+2} offen offset:{tm*2560+half*640}")
    e("k1_end:")
    e("s_waitcnt vmcnt(0)")
    e("k1_done:")
    e("s_endpgm")
    nv = tmpv + 28
    return kd("gemm1_kernel", nv, 96), g.lds_bytes


AT_STAGE = 8 * 2560
K2_KGS = 2
K2_NBUF = 5


def gen_k2(e):
    kernel_head(e, "attn_kernel")
    e("""
    s_cmp_ge_u32 s2, 416
    s_cbranch_scc1 k2_done
    s_load_dwordx2 s[4:5], s[0:1], 80
    s_load_dwordx2 s[6:7], s[0:1], 48
    s_load_dwordx2 s[8:9], s[0:1], 56
    v_lshrrev_b32 v1, 6, v0
    v_and_b32 v0, 63, v0
    s_and_b32 s20, s2, 7
    v_readfirstlane_b32 s24, v1
    s_cmp_ge_u32 s2, 256
    s_cbranch_scc1 k2_mlp
    """)
    Qa1, Qa2, Qb1, Qb2 = 8, 12, 16, 20
    KF = [(24, 28), (32, 36)]
    VF = [(40, 44), (48, 52)]
    Sa, Sb, Pa, Pb, Oa, Ob = 56, 72, 88, 96, 104, 120
    vK, vKh, vV, vKn, vKhn, vVn = 136, 137, 138, 139, 140, 141
    vK0, vKh0, vV0 = 142, 143, 144
    vD1, vD2 = 145, 146
    T = 148
    e("""
    s_lshr_b32 s21, s2, 3
    s_lshr_b32 s22, s21, 3
    s_lshl_b32 s23, s20, 2
    s_add_u32 s22, s22, s23
    s_and_b32 s23, s21, 7
    """)
    e("s_waitcnt lgkmcnt(0)")
    srd(e, 36, "s4", "s5", WS_BYTES)
    e(f"s_mul_i32 s25, s22, {64*2560}")
    e(f"s_add_u32 s25, s25, {KV_OFF}")
    e("s_add_u32 s12, s4, s25")
    e("s_addc_u32 s13, s5, 0")
    e("s_and_b32 s13, s13, 0xffff")
    e(f"s_mov_b32 s14, {64*2560}")
    e("s_mov_b32 s15, 0x00020000")
    e(f"v_lshlrev_b32 v{vK0}, 4, v0")
    e(f"v_and_b32 v{T}, 31, v0")
    e(f"v_lshlrev_b32 v{vKh0}, 3, v{T}")
    e(f"v_add_u32 v{vKh0}, 1024, v{vKh0}")
    e(f"v_lshrrev_b32 v{T+1}, 5, v0")
    e(f"v_mad_u32_u24 v{vV0}, v{T+1}, 20, v{T}")
    e(f"v_lshlrev_b32 v{vV0}, 4, v{vV0}")
    e(f"v_add_u32 v{vV0}, 1280, v{vV0}")
    e("s_mul_i32 s26, s24, 5120")
    e(f"v_add_u32 v{vD1}, s26, v{vK0}")
    e(f"v_add_u32 v{vD2}, 4096, v{vD1}")
    e("s_mov_b32 s28, 0x000fffff")
    e("s_mov_b32 s29, 0x000fffff")
    e("s_mov_b32 s30, 0")
    e("s_mov_b32 s31, 0")

    def dma():
        e("s_add_u32 m0, s31, s26")
        e("s_add_u32 s27, s31, s26")
        for i in range(4):
            off = f" offset:{i*1024}" if i else ""
            e(f"buffer_load_dwordx4 v{vD1}, s[12:15], s30 offen{off} lds")
        e("s_add_u32 m0, s27, 4096")
        e(f"s_add_u32 s31, s31, {AT_STAGE}")
        e(f"buffer_load_dwordx4 v{vD2}, s[12:15], s30 offen lds")
        e(f"s_add_u32 s30, s30, {AT_STAGE}")
        e(f"s_cmp_eq_u32 s31, {3*AT_STAGE}")
        e("s_cselect_b32 s31, 0, s31")

    e("s_lshl_b32 s32, s23, 3")
    e("s_lshl_b32 s33, s24, 1")
    e("s_add_u32 s32, s32, s33")
    e("s_lshl_b32 s33, s22, 6")
    e("s_add_u32 s33, s33, s32")
    e("s_mul_i32 s33, s33, 1280")
    e(f"s_add_u32 s33, s33, {QF_OFF}")
    for r in (Qa2, Qb2):
        for i in range(4):
            e(f"v_mov_b32 v{r+i}, 0")
    e(f"buffer_load_dwordx4 v[{Qa1}:{Qa1+3}], v{vK0}, s[36:39], s33 offen")
    e(f"buffer_load_dwordx4 v[{Qb1}:{Qb1+3}], v{vK0}, s[36:39], s33 offen offset:1280")
    e("s_mov_b32 exec_hi, 0")
    e(f"buffer_load_dwordx2 v[{Qa2}:{Qa2+1}], v{vKh0}, s[36:39], s33 offen")
    e(f"buffer_load_dwordx2 v[{Qb2}:{Qb2+1}], v{vKh0}, s[36:39], s33 offen offset:1280")
    e("s_mov_b64 exec, -1")
    dma()
    dma()
    for lo, hi in KF:
        for i in range(4):
            e(f"v_mov_b32 v{hi+i}, 0")
    e(f"v_cmp_eq_u32 vcc, 20, v{T}")
    e(f"v_mov_b32 v{T+2}, 0x3f803f80")
    e("s_nop 0")
    for a, b in VF:
        for r in (a, b):
            for i in range(4):
                e(f"v_cndmask_b32 v{r+i}, 0, v{T+2}, vcc")
    for i in range(8):
        e(f"v_mov_b32 v{Pb+i}, 0")
    for i in range(16):
        e(f"v_mov_b32 v{Oa+i}, 0")
        e(f"v_mov_b32 v{Ob+i}, 0")
    e(f"v_mov_b32 v{vKn}, v{vK0}")
    e(f"v_mov_b32 v{vKhn}, v{vKh0}")
    e(f"v_mov_b32 v{vVn}, v{vV0}")
    e(f"s_mov_b32 s34, {AT_STAGE}")
    e("s_mov_b32 s35, 8")

    def rdK(t, p):
        lo, hi = KF[p]
        a, b = (vK, vKh) if t < 8 else (vKn, vKhn)
        o = (t % 8) * 2560
        return [f"ds_read_b128 v[{lo}:{lo+3}], v{a} offset:{o}",
                f"ds_read_b64 v[{hi}:{hi+1}], v{b} offset:{o}"]

    def rdV(t, p):
        v0_, v1_ = VF[p]
        a = vV if t < 8 else vVn
        o = (t % 8) * 2560
        return ["s_mov_b64 exec, s[28:29]",
                f"ds_read_b128 v[{v0_}:{v0_+3}], v{a} offset:{o}",
                f"ds_read_b128 v[{v1_}:{v1_+3}], v{a} offset:{o+640}",
                "s_mov_b64 exec, -1"]

    def mS(S, p, Q1, Q2):
        lo, hi = KF[p]
        return [f"v_mfma_f32_32x32x16_bf16 v[{S}:{S+15}], v[{lo}:{lo+3}], v[{Q1}:{Q1+3}], 0",
                f"v_mfma_f32_32x32x16_bf16 v[{S}:{S+15}], v[{hi}:{hi+3}], v[{Q2}:{Q2+3}], v[{S}:{S+15}]"]

    def mPV(O, p, P):
        v0_, v1_ = VF[p]
        return [f"v_mfma_f32_32x32x16_bf16 v[{O}:{O+15}], v[{v0_}:{v0_+3}], v[{P}:{P+3}], v[{O}:{O+15}]",
                f"v_mfma_f32_32x32x16_bf16 v[{O}:{O+15}], v[{v1_}:{v1_+3}], v[{P+4}:{P+7}], v[{O}:{O+15}]"]

    e("s_waitcnt vmcnt(5)")
    e("s_barrier")
    for r in rdK(8, 0) + rdK(9, 1) + rdV(8, 0):
        e(r)
    e("s_waitcnt lgkmcnt(0)")
    for m in mS(Sa, 0, Qa1, Qa2):
        e(m)
    e("s_nop 7")
    e("k2_stage:")
    e("s_waitcnt vmcnt(0)")
    e("s_barrier")
    dma()
    e(f"v_mov_b32 v{vK}, v{vKn}")
    e(f"v_mov_b32 v{vKh}, v{vKhn}")
    e(f"v_mov_b32 v{vV}, v{vVn}")
    e(f"v_add_u32 v{vKn}, s34, v{vK0}")
    e(f"v_add_u32 v{vKhn}, s34, v{vKh0}")
    e(f"v_add_u32 v{vVn}, s34, v{vV0}")
    e(f"s_add_u32 s34, s34, {AT_STAGE}")
    e(f"s_cmp_eq_u32 s34, {3*AT_STAGE}")
    e("s_cselect_b32 s34, 0, s34")

    def phase(S, P, mf, extra):
        ex = list(extra)
        for q in range(4):
            e(mf[q])
            for i in range(4):
                e(f"v_exp_f32 v{S+4*q+i}, v{S+4*q+i}")
                if i == 1 and ex:
                    for x in ex.pop(0):
                        e(x)
            e(f"v_cvt_pk_bf16_f32 v{P+2*q}, v{S+4*q}, v{S+4*q+1}")
            e(f"v_cvt_pk_bf16_f32 v{P+2*q+1}, v{S+4*q+2}, v{S+4*q+3}")
        assert not ex

    for t in range(8):
        p = t & 1
        phase(Sa, Pa, mS(Sb, p, Qb1, Qb2) + mPV(Ob, p ^ 1, Pb), [])
        e("s_waitcnt lgkmcnt(0)")
        phase(Sb, Pb, mS(Sa, p ^ 1, Qa1, Qa2) + mPV(Oa, p, Pa), [[], rdK(t + 2, p), [], rdV(t + 1, p ^ 1)])
    e("s_sub_u32 s35, s35, 1")
    e("s_cmp_lg_u32 s35, 0")
    e("s_cbranch_scc1 k2_stage")
    for m in mPV(Ob, 1, Pb):
        e(m)
    e("s_waitcnt lgkmcnt(0) vmcnt(0)")
    e("s_nop 15")
    L = [T, T + 1]
    lo_lim = f32bits(2.0 ** -80)
    hi_lim = f32bits(2.0 ** 100)

    def bcast_l(O, dst, tmp):
        e(f"v_mov_b32 v{tmp}, v{O+8}")
        e(f"v_mov_b32 v{dst}, v{O+8}")
        e("s_nop 1")
        e(f"v_permlane32_swap_b32 v{tmp}, v{dst}")

    e(f"v_mov_b32 v{T+4}, 0")
    for O, l in ((Oa, L[0]), (Ob, L[1])):
        bcast_l(O, l, T + 2)
        for i in range(12):
            e(f"v_fma_f32 v{T+4}, v{O+i}, 0, v{T+4}")
    e(f"s_mov_b32 s40, 0x{lo_lim:08x}")
    e(f"s_mov_b32 s41, 0x{hi_lim:08x}")
    e(f"v_cmp_u_f32 s[42:43], v{T+4}, v{T+4}")
    e(f"v_cmp_nle_f32 s[44:45], s40, v{L[0]}")
    e(f"v_cmp_nge_f32 s[46:47], s41, v{L[0]}")
    e(f"v_cmp_nle_f32 s[48:49], s40, v{L[1]}")
    e(f"v_cmp_nge_f32 s[50:51], s41, v{L[1]}")
    e("s_nop 3")
    e("s_or_b64 s[42:43], s[42:43], s[44:45]")
    e("s_or_b64 s[46:47], s[46:47], s[48:49]")
    e("s_or_b64 s[42:43], s[42:43], s[50:51]")
    e("s_or_b64 s[42:43], s[42:43], s[46:47]")
    e("s_cmp_eq_u64 s[42:43], 0")
    e("s_cbranch_scc1 k2_epi")
    for nm, O, Q1, Q2, l in (("a", Oa, Qa1, Qa2, L[0]), ("b", Ob, Qb1, Qb2, L[1])):
        lo, hi = KF[0]
        v0_, v1_ = VF[0]
        M = T + 6
        e(f"v_mov_b32 v{M}, 0xff800000")
        e("s_mov_b32 s40, 0")
        e(f"k2_fb1{nm}:")
        e(f"buffer_load_dwordx4 v[{lo}:{lo+3}], v{vK0}, s[12:15], s40 offen")
        e(f"buffer_load_dwordx2 v[{hi}:{hi+1}], v{vKh0}, s[12:15], s40 offen")
        e("s_waitcnt vmcnt(0)")
        for m in mS(Sa, 0, Q1, Q2):
            e(m)
        e("s_nop 15")
        e("s_nop 3")
        for i in range(8):
            e(f"v_max3_f32 v{M}, v{Sa+2*i}, v{Sa+2*i+1}, v{M}")
        e("s_add_u32 s40, s40, 2560")
        e(f"s_cmp_lt_u32 s40, {64*2560}")
        e(f"s_cbranch_scc1 k2_fb1{nm}")
        e(f"v_mov_b32 v{M+1}, v{M}")
        e("s_nop 1")
        e(f"v_permlane32_swap_b32 v{M}, v{M+1}")
        e("s_nop 1")
        e(f"v_max_f32 v{M}, v{M}, v{M+1}")
        for i in range(16):
            e(f"v_mov_b32 v{O+i}, 0")
        e("s_mov_b32 s40, 0")
        e(f"k2_fb2{nm}:")
        e(f"buffer_load_dwordx4 v[{lo}:{lo+3}], v{vK0}, s[12:15], s40 offen")
        e(f"buffer_load_dwordx2 v[{hi}:{hi+1}], v{vKh0}, s[12:15], s40 offen")
        e("s_mov_b64 exec, s[28:29]")
        e(f"buffer_load_dwordx4 v[{v0_}:{v0_+3}], v{vV0}, s[12:15], s40 offen")
        e(f"buffer_load_dwordx4 v[{v1_}:{v1_+3}], v{vV0}, s[12:15], s40 offen offset:640")
        e("s_mov_b64 exec, -1")
        e("s_waitcnt vmcnt(0)")
        for m in mS(Sa, 0, Q1, Q2):
            e(m)
        e("s_nop 15")
        e("s_nop 3")
        for i in range(16):
            e(f"v_sub_f32 v{Sa+i}, v{Sa+i}, v{M}")
        for i in range(16):
            e(f"v_exp_f32 v{Sa+i}, v{Sa+i}")
        e("s_nop 0")
        for i in range(8):
            e(f"v_cvt_pk_bf16_f32 v{Pa+i}, v{Sa+2*i}, v{Sa+2*i+1}")
        e("s_nop 1")
        for m in mPV(O, 0, Pa):
            e(m)
        e("s_add_u32 s40, s40, 2560")
        e(f"s_cmp_lt_u32 s40, {64*2560}")
        e("s_nop 7")
        e(f"s_cbranch_scc1 k2_fb2{nm}")
        e("s_nop 15")
        bcast_l(O, l, T + 2)
    e("k2_epi:")
    e("s_mul_i32 s40, s32, 40")
    e("s_add_u32 s41, s40, s22")
    e("s_lshl_b32 s41, s41, 10")
    e(f"s_add_u32 s41, s41, {O_OFF}")
    e(f"s_add_u32 s42, s41, {40*1024}")
    e("s_lshr_b32 s43, s22, 2")
    e("s_add_u32 s43, s43, s40")
    e("s_add_u32 s43, s43, 32")
    e("s_lshl_b32 s43, s43, 10")
    e("s_bfe_u32 s44, s22, 0x10001")
    e("s_lshl_b32 s44, s44, 9")
    e("s_add_u32 s43, s43, s44")
    e("s_and_b32 s44, s22, 1")
    e("s_lshl_b32 s44, s44, 3")
    e("s_add_u32 s43, s43, s44")
    e(f"s_add_u32 s43, s43, {O_OFF}")
    e(f"s_add_u32 s44, s43, {40*1024}")
    e(f"v_rcp_f32 v{L[0]}, v{L[0]}")
    e(f"v_rcp_f32 v{L[1]}, v{L[1]}")
    e("s_nop 0")
    for O, l, sm, sl, pk in ((Oa, L[0], 41, 43, Pa), (Ob, L[1], 42, 44, Pb)):
        for i in range(12):
            e(f"v_mul_f32 v{O+i}, v{O+i}, v{l}")
        for i in range(6):
            e(f"v_cvt_pk_bf16_f32 v{pk+i}, v{O+2*i}, v{O+2*i+1}")
        e(f"buffer_store_dwordx4 v[{pk}:{pk+3}], v{vK0}, s[36:39], s{sm} offen")
        e("s_mov_b32 exec_hi, 0")
        e(f"buffer_store_dwordx2 v[{pk+4}:{pk+5}], v{vK0}, s[36:39], s{sl} offen")
        e("s_mov_b64 exec, -1")
    e("s_branch k2_end")

    e("k2_mlp:")
    g = Gemm("k2", NWM=2, NWN=2, TM=2, TN=1, KGS=K2_KGS, NBUF=K2_NBUF, KG=108, korder='d', vbase=8, sbase=40)
    e("""
    s_sub_u32 s21, s2, 256
    s_lshr_b32 s21, s21, 3
    s_cmp_ge_u32 s21, 10
    s_cselect_b32 s22, 1, 0
    s_cselect_b32 s23, 10, 0
    s_sub_u32 s25, s21, s23
    s_lshl_b32 s23, s20, 1
    s_add_u32 s23, s23, s22
    s_lshl_b32 s28, s25, 7
    s_mov_b32 s29, 1280
    s_waitcnt lgkmcnt(0)
    """)
    e("""
    s_add_u32 s16, s6, s28
    s_addc_u32 s17, s7, 0
    s_and_b32 s17, s17, 0xffff
    """)
    e(f"s_sub_u32 s18, {1728*1280}, s28")
    e("s_mov_b32 s19, 0x00020000")
    e("s_lshl_b32 s34, s23, 2")
    e("s_add_u32 s34, s34, s24")
    e(f"s_mul_i32 s35, s34, {108*1024}")
    e(f"s_add_u32 s35, s35, {H_OFF}")
    e("s_add_u32 s12, s4, s35")
    e("s_addc_u32 s13, s5, 0")
    e("s_and_b32 s13, s13, 0xffff")
    e(f"s_mov_b32 s14, {108*1024}")
    e("s_mov_b32 s15, 0x00020000")
    srd(e, 36, "s4", "s5", WS_BYTES)
    g.setup(e, "s24", "s29")
    sWM, sWN = g.send, g.send + 1
    e(f"s_lshr_b32 s{sWM}, s24, 1")
    e(f"s_and_b32 s{sWN}, s24, 1")
    sT = g.send + 4
    tmpv = g.vend
    srd(e, sT + 2, "s8", "s9", 640 * 2)
    e(f"s_lshl_b32 s{sT}, s{sWN}, 6")
    e(f"s_add_u32 s{sT}, s{sT}, s28")
    load_bias_init(e, g, sT + 2, f"s{sT}", tmpv)
    g.prologue(e, 12, 16)
    e(f"s_waitcnt vmcnt({(g.NBUF-1)*g.D})")
    finish_bias_init(e, g, tmpv)
    g.main(e, 12, 16, 'n', 'm')
    e(f"s_lshl_b32 s{sT}, s23, 2")
    e(f"s_lshl_b32 s{sT+1}, s{sWM}, 1")
    e(f"s_add_u32 s{sT}, s{sT}, s{sT+1}")
    e(f"s_mul_i32 s{sT}, s{sT}, 20")
    e(f"s_lshl_b32 s{sT+1}, s25, 1")
    e(f"s_add_u32 s{sT}, s{sT}, s{sT+1}")
    e(f"s_add_u32 s{sT}, s{sT}, s{sWN}")
    e(f"s_lshl_b32 s{sT}, s{sT}, 11")
    e(f"s_add_u32 s{sT}, s{sT}, {G_OFF}")
    e(f"s_add_u32 s{sT+1}, s{sT}, {20*2048}")
    e(f"v_mov_b32 v{tmpv}, 0x{f32bits(-1.4426950408889634):08x}")
    for tm in range(2):
        a = g.accr(tm, 0)
        for half in range(2):
            t = tmpv + 4 + 8 * half
            pk = tmpv + 20 + 4 * half
            r0 = a + half * 8
            for i in range(8):
                e(f"v_mul_f32 v{t+i}, v{r0+i}, v{tmpv}")
            for i in range(8):
                e(f"v_exp_f32 v{t+i}, v{t+i}")
            for i in range(8):
                e(f"v_add_f32 v{t+i}, 1.0, v{t+i}")
            for i in range(8):
                e(f"v_rcp_f32 v{t+i}, v{t+i}")
            for i in range(8):
                e(f"v_mul_f32 v{t+i}, v{t+i}, v{r0+i}")
            for i in range(4):
                e(f"v_cvt_pk_bf16_f32 v{pk+i}, v{t+2*i}, v{t+2*i+1}")
            e(f"buffer_store_dwordx4 v[{pk}:{pk+3}], v{g.vDA}, s[36:39], s{sT+tm} offen offset:{half*1024}")
    e("k2_end:")
    e("s_waitcnt vmcnt(0)")
    e("k2_done:")
    e("s_endpgm")
    nv = max(T + 16, tmpv + 28)
    return kd("attn_kernel", nv, 96), max(3 * AT_STAGE, g.lds_bytes)


def gen_k3(e):
    kernel_head(e, "out_kernel")
    A0 = 8
    ACC = 168
    BF = [(200, 204), (208, 212)]
    GV = 216
    XV = 232
    vL, vBm, vBl, vX, vD = 248, 249, 251, 253, 254
    vBm2, vBl2 = 1, 3
    T = 5
    e("""
    s_cmp_ge_u32 s2, 160
    s_cbranch_scc1 k3_done
    s_load_dwordx2 s[4:5], s[0:1], 80
    s_load_dwordx2 s[6:7], s[0:1], 16
    s_load_dwordx2 s[8:9], s[0:1], 0
    s_load_dwordx2 s[10:11], s[0:1], 64
    v_lshrrev_b32 v1, 6, v0
    v_and_b32 v0, 63, v0
    s_and_b32 s20, s2, 7
    v_readfirstlane_b32 s24, v1
    s_lshr_b32 s21, s2, 3
    s_cmp_ge_u32 s21, 10
    s_cselect_b32 s22, 1, 0
    s_cselect_b32 s23, 10, 0
    s_sub_u32 s25, s21, s23
    s_lshl_b32 s23, s20, 1
    s_add_u32 s23, s23, s22
    s_lshl_b32 s28, s25, 7
    s_lshl_b32 s26, s23, 2
    s_add_u32 s26, s26, s24
    s_waitcnt lgkmcnt(0)
    """)
    srd(e, 36, "s4", "s5", WS_BYTES)
    srd(e, 12, "s8", "s9", 2048 * 1280)
    srd(e, 32, "s10", "s11", 2048 * 1280)
    e("""
    s_add_u32 s16, s6, s28
    s_addc_u32 s17, s7, 0
    s_and_b32 s17, s17, 0xffff
    """)
    e(f"s_sub_u32 s18, {640*1280}, s28")
    e("s_mov_b32 s19, 0x00020000")
    e(f"v_lshlrev_b32 v{vL}, 4, v0")
    e(f"v_lshrrev_b32 v{T}, 3, v0")
    e(f"v_bfe_u32 v{T+1}, v0, 2, 1")
    e(f"v_bfe_u32 v{T+2}, v0, 4, 1")
    e(f"v_xor_b32 v{T+1}, v{T+1}, v{T+2}")
    e(f"v_mul_u32_u24 v{vD}, 1280, v{T}")
    e(f"v_lshl_add_u32 v{vD}, v{T+1}, 6, v{vD}")
    e(f"v_and_b32 v{T+1}, 3, v0")
    e(f"v_lshl_add_u32 v{vD}, v{T+1}, 4, v{vD}")
    e(f"s_mul_i32 s40, s26, 40960")
    e(f"s_add_u32 s40, s40, {O_OFF}")
    e(f"s_mul_i32 s41, s24, {20*1024}")
    e(f"s_mul_i32 s42, s24, {20*8*1280}")
    e("s_mov_b32 m0, s41")
    e("s_nop 0")
    for i in range(20):
        e(f"buffer_load_dwordx4 v{vD}, s[16:19], s42 offen lds")
        if i < 19:
            e("s_add_u32 m0, m0, 1024")
            e(f"s_add_u32 s42, s42, {8*1280}")
    for kg in range(40):
        if kg and kg % 4 == 0:
            e("s_add_u32 s40, s40, 4096")
        e(f"buffer_load_dwordx4 v[{A0+4*kg}:{A0+4*kg+3}], v{vL}, s[36:39], s40 offen offset:{(kg%4)*1024}")
    e("s_mul_i32 s43, s26, 20")
    e("s_lshl_b32 s44, s25, 1")
    e("s_add_u32 s43, s43, s44")
    e("s_lshl_b32 s43, s43, 11")
    e(f"s_add_u32 s43, s43, {G_OFF}")
    for i in range(4):
        e(f"buffer_load_dwordx4 v[{GV+4*i}:{GV+4*i+3}], v{vL}, s[36:39], s43 offen offset:{i*1024}")
    e(f"v_and_b32 v{T}, 31, v0")
    e(f"v_mul_u32_u24 v{vX}, 1280, v{T}")
    e(f"v_lshrrev_b32 v{T+1}, 5, v0")
    e(f"v_lshl_add_u32 v{vX}, v{T+1}, 3, v{vX}")
    e(f"s_mul_i32 s44, s26, {32*1280}")
    e("s_add_u32 s44, s44, s28")
    for tn in range(2):
        for gg in range(4):
            r = XV + (tn * 4 + gg) * 2
            e(f"buffer_load_dwordx2 v[{r}:{r+1}], v{vX}, s[12:15], s44 offen offset:{(tn*32+gg*8)*2}")
    e(f"v_bfe_u32 v{T}, v0, 2, 2")
    e(f"v_lshrrev_b32 v{T+1}, 5, v0")
    e(f"v_bfe_u32 v{T+2}, v0, 4, 1")
    e(f"v_and_b32 v{vBm2}, 3, v0")
    e(f"v_lshlrev_b32 v{vBm2}, 3, v{vBm2}")
    e(f"v_lshl_add_u32 v{vBm2}, v{T+2}, 5, v{vBm2}")
    e(f"v_lshl_add_u32 v{vBm2}, v{T}, 7, v{vBm2}")
    e(f"v_lshrrev_b32 v{T}, 1, v{T}")
    for tn in range(2):
        e(f"v_xor_b32 v{T+2}, {tn}, v{T}")
        e(f"v_lshl_add_u32 v{vBm+tn}, v{T+2}, 6, v{vBm2}")
        e(f"v_mul_u32_u24 v{vBl+tn}, {40*128}, v{T+1}")
        e(f"v_add_u32 v{vBl+tn}, v{vBl+tn}, v{vBm+tn}")
        e(f"v_add_u32 v{vBl+tn}, {16*128}, v{vBl+tn}")
        e(f"v_lshl_add_u32 v{vBm+tn}, v{T+1}, 9, v{vBm+tn}")
    for tn in range(2):
        e(f"v_add_u32 v{vBm2+tn}, 40960, v{vBm+tn}")
        e(f"v_add_u32 v{vBl2+tn}, 40960, v{vBl+tn}")
    for i in range(32):
        e(f"v_mov_b32 v{ACC+i}, 0")

    def rdB(kg, p):
        out = []
        for tn in range(2):
            b = BF[p][tn]
            for t in range(2):
                if kg < 32:
                    o = (20 * kg + 8 * t) * 128
                    base = vBm + tn
                    if o >= 40960:
                        o -= 40960; base = vBm2 + tn
                else:
                    G = kg - 32
                    o = (4 * G + t) * 2560
                    base = vBl + tn
                    if o >= 40960:
                        o -= 40960; base = vBl2 + tn
                out.append(f"ds_read_b64_tr_b16 v[{b+2*t}:{b+2*t+1}], v{base} offset:{o}")
        return out

    e("s_waitcnt vmcnt(52)")
    e("s_barrier")
    for r in rdB(0, 0):
        e(r)
    for kg in range(40):
        p = kg & 1
        if kg < 39:
            for r in rdB(kg + 1, p ^ 1):
                e(r)
            e(f"s_waitcnt vmcnt({39-kg+12}) lgkmcnt(4)")
        else:
            e(f"s_waitcnt vmcnt(12) lgkmcnt(0)")
        for tn in range(2):
            d = ACC + 16 * tn
            b = BF[p][tn]
            a = A0 + 4 * kg
            e(f"v_mfma_f32_32x32x16_bf16 v[{d}:{d+15}], v[{b}:{b+3}], v[{a}:{a+3}], v[{d}:{d+15}]")
    e("s_waitcnt vmcnt(0)")
    e("s_nop 15")
    for tn in range(2):
        for gg in range(4):
            a = ACC + 16 * tn + 4 * gg
            gr = GV + tn * 8 + gg * 2
            xr = XV + (tn * 4 + gg) * 2
            t = A0 + (tn * 4 + gg) * 16
            e(f"v_cvt_pk_bf16_f32 v{t}, v{a}, v{a+1}")
            e(f"v_cvt_pk_bf16_f32 v{t+1}, v{a+2}, v{a+3}")
            for i in range(2):
                e(f"v_lshlrev_b32 v{t+2+2*i}, 16, v{t+i}")
                e(f"v_and_b32 v{t+3+2*i}, 0xffff0000, v{t+i}")
                e(f"v_lshlrev_b32 v{t+6+2*i}, 16, v{gr+i}")
                e(f"v_and_b32 v{t+7+2*i}, 0xffff0000, v{gr+i}")
            for i in range(4):
                e(f"v_mul_f32 v{t+2+i}, v{t+2+i}, v{t+6+i}")
            e(f"v_cvt_pk_bf16_f32 v{t}, v{t+2}, v{t+3}")
            e(f"v_cvt_pk_bf16_f32 v{t+1}, v{t+4}, v{t+5}")
            for i in range(2):
                e(f"v_lshlrev_b32 v{t+2+2*i}, 16, v{t+i}")
                e(f"v_and_b32 v{t+3+2*i}, 0xffff0000, v{t+i}")
                e(f"v_lshlrev_b32 v{t+6+2*i}, 16, v{xr+i}")
                e(f"v_and_b32 v{t+7+2*i}, 0xffff0000, v{xr+i}")
            for i in range(4):
                e(f"v_add_f32 v{t+2+i}, v{t+2+i}, v{t+6+i}")
            e(f"v_cvt_pk_bf16_f32 v{t+10}, v{t+2}, v{t+3}")
            e(f"v_cvt_pk_bf16_f32 v{t+11}, v{t+4}, v{t+5}")
            e(f"buffer_store_dwordx2 v[{t+10}:{t+11}], v{vX}, s[32:35], s44 offen offset:{(tn*32+gg*8)*2}")
    e("s_waitcnt vmcnt(0)")
    e("k3_done:")
    e("s_endpgm")
    return kd("out_kernel", 256, 96), 81920


def main():
    e = Em()
    kds = []
    kds.append(gen_ln(e))
    k1kd, k1lds = gen_k1(e)
    kds.append(k1kd)
    k2kd, k2lds = gen_k2(e)
    kds.append(k2kd)
    k3kd, k3lds = gen_k3(e)
    kds.append(k3kd)
    launches = [
        f"; @launch kernel=ln_kernel grid=(512,1,1) block=(256,1,1) lds=0",
        f"; @launch kernel=gemm1_kernel grid=(256,1,1) block=(512,1,1) lds={k1lds}",
        f"; @launch kernel=attn_kernel grid=(416,1,1) block=(256,1,1) lds={k2lds}",
        f"; @launch kernel=out_kernel grid=(160,1,1) block=(256,1,1) lds={k3lds}",
    ]
    head = "\n".join(launches) + "\n" + '.amdgcn_target "amdgcn-amd-amdhsa--gfx950"\n.text\n'
    tail = '.section .rodata,"a"\n.p2align 6\n' + ".p2align 6\n".join(kds)
    out = head + e.text() + tail
    path = sys.argv[1] if len(sys.argv) > 1 else f"cdna_kernels/{NAME}.s"
    open(path, "w").write(out)
    print("wrote", path, len(out))


if __name__ == "__main__":
    main()
```

```python
import numpy as np
FR = 64*40*1024
XN_OFF = 0
Y_OFF = FR
QF_OFF = 2*FR
KV_OFF = 3*FR
H_OFF = 5*FR
O_OFF = H_OFF + 64*108*1024
G_OFF = O_OFF + FR
ST_OFF = G_OFF + FR
CS_OFF = ST_OFF + 65536
WS_USED = CS_OFF + 29*8*1024

def unfrag(ws, off, KG):
    a = ws[off//2: off//2 + 64*KG*512].reshape(KG, 64, 2, 32, 8)
    return a.transpose(1, 3, 0, 2, 4).reshape(2048, KG*16)

def unfrag_d(ws, off, KG):
    a = ws[off//2: off//2 + 64*KG*512].reshape(KG, 64, 2, 32, 2, 4)
    return a.transpose(1, 3, 0, 4, 2, 5).reshape(2048, KG*16)

def unqkv(ws):
    qf = ws[QF_OFF//2: QF_OFF//2 + 32*64*640].reshape(32, 64, 640)
    qlo = qf[:, :, :512].reshape(32, 64, 2, 32, 8).transpose(1, 3, 0, 2, 4).reshape(2048, 32, 16)
    qhi = qf[:, :, 512:].reshape(32, 64, 32, 4).transpose(1, 2, 0, 3).reshape(2048, 32, 4)
    q = np.concatenate([qlo, qhi], axis=2)
    kv = ws[KV_OFF//2: KV_OFF//2 + 32*64*1280].reshape(32, 64, 1280)
    klo = kv[:, :, :512].reshape(32, 64, 2, 32, 8).transpose(1, 3, 0, 2, 4).reshape(2048, 32, 16)
    khi = kv[:, :, 512:640].reshape(32, 64, 32, 4).transpose(1, 2, 0, 3).reshape(2048, 32, 4)
    k = np.concatenate([klo, khi], axis=2)
    vv = kv[:, :, 640:].reshape(32, 64, 2, 2, 20, 2, 4)
    v = vv.transpose(1, 2, 5, 3, 6, 0, 4).reshape(2048, 32, 20)
    return q, k, v

def uno(ws):
    a = ws[O_OFF//2: O_OFF//2 + 64*40*512].reshape(40, 64, 2, 32, 2, 4).transpose(1, 0, 2, 3, 4, 5)
    main = a[:, :32]
    main = main.transpose(0, 3, 1, 4, 2, 5).reshape(2048, 32, 16)
    left = a[:, 32:]
    left = left.transpose(0, 3, 1, 2, 4, 5).reshape(2048, 32, 4)
    return np.concatenate([main, left], axis=2)

def ung(ws):
    a = ws[G_OFF//2: G_OFF//2 + 64*20*1024].reshape(64, 20, 2, 2, 32, 2, 4)
    return a.transpose(0, 4, 1, 2, 5, 3, 6).reshape(2048, 640)
```

```python
import sys, math, struct
from layout import *

NAME = "recurrent_scan__softmax_full_mha__mixer_channel_mlp__prompt"
WS_BYTES = 268435456


def f32bits(x):
    return struct.unpack("<I", struct.pack("<f", x))[0]


class Em:
    def __init__(self):
        self.l = []

    def __call__(self, s):
        for line in s.split("\n"):
            line = line.strip()
            if not line:
                continue
            if line.endswith(":") or line.startswith("."):
                self.l.append(line)
            else:
                self.l.append("    " + line)

    def text(self):
        return "\n".join(self.l) + "\n"


def srd(e, s, lo, hi, nbytes):
    e(f"s_mov_b32 s{s}, {lo}")
    e(f"s_and_b32 s{s+1}, {hi}, 0xffff")
    e(f"s_mov_b32 s{s+2}, {nbytes}")
    e(f"s_mov_b32 s{s+3}, 0x00020000")


def csel(e, dst, a, b):
    e(f"s_mov_b32 {dst}, {b}")
    e(f"s_cselect_b32 {dst}, {a}, {dst}")


import os
STAMP = int(os.environ.get("STAMP", "0"))
STAMP_OFF = 64 << 20


def stamp(e, i):
    if not STAMP:
        return
    e(f"s_memtime s[86:87]")
    e("s_waitcnt lgkmcnt(0)")
    e(f"s_mov_b32 s{70+i}, s86")


def stamp_rt(e, i):
    if not STAMP:
        return
    e(f"s_memrealtime s[86:87]")
    e("s_waitcnt lgkmcnt(0)")
    e(f"s_mov_b32 s{70+i}, s86")


def stamp_store(e, kidx, sWave, srdws, n=12):
    if not STAMP:
        return
    e("s_getreg_b32 s78, hwreg(HW_REG_XCC_ID)")
    e("s_getreg_b32 s79, hwreg(HW_REG_HW_ID)")
    e(f"s_lshl_b32 s86, s2, 4")
    e(f"s_add_u32 s86, s86, {sWave}")
    e(f"s_lshl_b32 s86, s86, 6")
    e(f"s_add_u32 s86, s86, {STAMP_OFF + kidx * 0x100000}")
    e("v_mov_b32 v1, 0")
    for i in range(n):
        e(f"v_mov_b32 v2, s{70+i}")
        e(f"buffer_store_dword v2, v1, s[{srdws}:{srdws+3}], s86 offen offset:{4*i}")


def kernel_head(e, name):
    e(f".p2align 8")
    e(f".globl {name}")
    e(f".type {name},@function")
    e(f"{name}:")


def kd(name, vgpr, sgpr=96):
    acc = (vgpr + 3) // 4 * 4
    return f""".amdhsa_kernel {name}
  .amdhsa_next_free_vgpr {vgpr}
  .amdhsa_next_free_sgpr {sgpr}
  .amdhsa_accum_offset {acc}
  .amdhsa_group_segment_fixed_size 0
  .amdhsa_kernarg_size 88
  .amdhsa_user_sgpr_count 2
  .amdhsa_user_sgpr_kernarg_segment_ptr 1
  .amdhsa_system_sgpr_workgroup_id_x 1
.end_amdhsa_kernel
"""


def wave_sum(e, v, sdst):
    for sh in (1, 2, 4, 8):
        e("s_nop 1")
        e(f"v_add_f32_dpp v{v}, v{v}, v{v} row_shr:{sh} row_mask:0xf bank_mask:0xf bound_ctrl:0")
    e("s_nop 1")
    e(f"v_add_f32_dpp v{v}, v{v}, v{v} row_bcast:15 row_mask:0xa bank_mask:0xf")
    e("s_nop 1")
    e(f"v_add_f32_dpp v{v}, v{v}, v{v} row_bcast:31 row_mask:0xc bank_mask:0xf")
    e("s_nop 1")
    e(f"v_readlane_b32 s{sdst}, v{v}, 63")
    e("s_nop 1")


def bf16r(e, v, t):
    e(f"v_cvt_pk_bf16_f32 v{t}, v{v}, v{v}")
    e(f"v_lshlrev_b32 v{v}, 16, v{t}")


def gen_ln(e):
    kernel_head(e, "ln_kernel")
    e("""
    s_cmp_ge_u32 s2, 768
    s_cbranch_scc1 ln_done
    s_cmp_ge_u32 s2, 256
    s_cbranch_scc1 ln_main
    """)
    e("""
    s_load_dwordx2 s[4:5], s[0:1], 8
    s_load_dwordx2 s[6:7], s[0:1], 32
    s_load_dwordx2 s[8:9], s[0:1], 48
    s_load_dwordx2 s[10:11], s[0:1], 16
    v_lshrrev_b32 v1, 6, v0
    v_and_b32 v0, 63, v0
    v_lshlrev_b32 v2, 4, v0
    v_readfirstlane_b32 s20, v1
    s_and_b32 s21, s2, 7
    s_lshr_b32 s22, s2, 3
    s_lshr_b32 s23, s21, 2
    s_and_b32 s24, s21, 1
    s_waitcnt lgkmcnt(0)
    s_cmp_eq_u32 s23, 0
    s_cselect_b32 s12, s4, s6
    s_cselect_b32 s13, s5, s7
    """)
    csel(e, "s25", 3840, 3456)
    csel(e, "s14", 640*3840, 640*3456)
    csel(e, "s26", 2048, 1792)
    e("s_and_b32 s13, s13, 0xffff")
    e("s_mov_b32 s15, 0x00020000")
    e("s_mul_i32 s27, s22, 20")
    e("s_mul_i32 s28, s20, 5")
    e("s_add_u32 s27, s27, s28")
    e("s_mul_i32 s27, s27, s25")
    e("s_mul_i32 s28, s24, s26")
    e("s_add_u32 s27, s27, s28")
    for r in range(5):
        e(f"buffer_load_dwordx4 v[{4+8*r}:{7+8*r}], v2, s[12:15], s27 offen")
        e(f"buffer_load_dwordx4 v[{8+8*r}:{11+8*r}], v2, s[12:15], s27 offen offset:1024")
        e("s_add_u32 s27, s27, s25")
    srd(e, 16, "s8", "s9", 1728 * 1280)
    srd(e, 28, "s10", "s11", 640 * 1280)
    e("s_lshl_b32 s27, s2, 2")
    e("s_add_u32 s27, s27, s20")
    e("s_lshl_b32 s27, s27, 10")
    e("buffer_load_dwordx4 v[44:47], v2, s[28:31], s27 offen")
    e("buffer_load_dwordx4 v[4:7], v2, s[16:19], s27 offen")
    e("s_add_u32 s27, s27, 0x100000")
    e("buffer_load_dwordx4 v[8:11], v2, s[16:19], s27 offen")
    e("s_add_u32 s27, s27, 0x100000")
    e("buffer_load_dwordx4 v[12:15], v2, s[16:19], s27 offen")
    e("s_waitcnt vmcnt(0)")
    e("s_endpgm")
    e("""
    ln_main:
    s_sub_u32 s2, s2, 256
    s_load_dwordx2 s[4:5], s[0:1], 0
    s_load_dwordx2 s[6:7], s[0:1], 80
    v_lshrrev_b32 v1, 6, v0
    v_and_b32 v0, 63, v0
    v_lshlrev_b32 v2, 4, v0
    v_readfirstlane_b32 s20, v1
    v_lshlrev_b32 v3, 2, v0
    s_lshl_b32 s21, s2, 2
    s_nop 1
    s_add_u32 s21, s21, s20
    s_mul_i32 s22, s21, 1280
    s_waitcnt lgkmcnt(0)
    """)
    srd(e, 8, "s4", "s5", 2048 * 1280)
    srd(e, 12, "s6", "s7", WS_BYTES)
    e("""
    buffer_load_dwordx4 v[4:7], v2, s[8:11], s22 offen
    buffer_load_dword v8, v3, s[8:11], s22 offen offset:1024
    s_lshr_b32 s23, s21, 5
    s_and_b32 s24, s21, 31
    s_lshl_b32 s23, s23, 10
    s_lshl_b32 s24, s24, 4
    s_add_u32 s23, s23, s24
    """)
    e(f"s_add_u32 s25, s23, {Y_OFF}")
    e(f"s_add_u32 s23, s23, {XN_OFF}")
    e("""
    v_lshrrev_b32 v40, 1, v0
    v_lshlrev_b32 v40, 16, v40
    v_and_b32 v42, 1, v0
    v_lshlrev_b32 v42, 9, v42
    v_add_u32 v40, v40, v42
    v_lshrrev_b32 v41, 3, v0
    v_add_u32 v41, 32, v41
    v_lshlrev_b32 v41, 16, v41
    v_bfe_u32 v42, v0, 2, 1
    v_lshlrev_b32 v42, 9, v42
    v_add_u32 v41, v41, v42
    v_and_b32 v42, 3, v0
    v_lshlrev_b32 v42, 2, v42
    v_add_u32 v41, v41, v42
    """)
    e(f"v_mov_b32 v38, 0x{f32bits(1.0/640.0):08x}")
    e(f"v_mov_b32 v39, 0x{f32bits(1e-5):08x}")
    e("s_waitcnt vmcnt(0)")
    F = list(range(10, 20))
    E_ = list(range(20, 30))
    P = [4, 5, 6, 7, 8]

    def unpack():
        for i in range(5):
            e(f"v_lshlrev_b32 v{F[2*i]}, 16, v{P[i]}")
            e(f"v_and_b32 v{F[2*i+1]}, 0xffff0000, v{P[i]}")

    def ln(soff):
        e(f"v_add_f32 v30, v{F[0]}, v{F[1]}")
        e(f"v_add_f32 v31, v{F[2]}, v{F[3]}")
        e(f"v_add_f32 v32, v{F[4]}, v{F[5]}")
        e(f"v_add_f32 v33, v{F[6]}, v{F[7]}")
        e(f"v_add_f32 v34, v{F[8]}, v{F[9]}")
        e("v_add_f32 v30, v30, v31")
        e("v_add_f32 v32, v32, v33")
        e("v_add_f32 v30, v30, v34")
        e("v_add_f32 v30, v30, v32")
        wave_sum(e, 30, 26)
        e("v_mul_f32 v31, s26, v38")
        for i in range(10):
            e(f"v_sub_f32 v{E_[i]}, v{F[i]}, v31")
        e(f"v_mul_f32 v30, v{E_[0]}, v{E_[0]}")
        e(f"v_mul_f32 v32, v{E_[1]}, v{E_[1]}")
        for i in range(2, 10, 2):
            e(f"v_fmac_f32 v30, v{E_[i]}, v{E_[i]}")
            e(f"v_fmac_f32 v32, v{E_[i+1]}, v{E_[i+1]}")
        e("v_add_f32 v30, v30, v32")
        wave_sum(e, 30, 26)
        e("v_mul_f32 v32, s26, v38")
        bf16r(e, 31, 33)
        bf16r(e, 32, 33)
        e("v_add_f32 v32, v32, v39")
        bf16r(e, 32, 33)
        e("v_sqrt_f32 v32, v32")
        e("s_nop 0")
        bf16r(e, 32, 33)
        e("v_rcp_f32 v32, v32")
        for i in range(10):
            e(f"v_sub_f32 v{E_[i]}, v{F[i]}, v31")
        for i in range(5):
            e(f"v_cvt_pk_bf16_f32 v{P[i]}, v{E_[2*i]}, v{E_[2*i+1]}")
        unpack()
        for i in range(10):
            e(f"v_mul_f32 v{F[i]}, v{F[i]}, v32")
        for i in range(5):
            e(f"v_cvt_pk_bf16_f32 v{P[i]}, v{F[2*i]}, v{F[2*i+1]}")
        e(f"buffer_store_dwordx4 v[4:7], v40, s[12:15], {soff} offen")
        e(f"buffer_store_dword v8, v41, s[12:15], {soff} offen")

    unpack()
    ln("s23")
    unpack()
    e("s_nop 1")
    ln("s25")
    e("ln_done:")
    e("s_endpgm")
    return kd("ln_kernel", 48, 32)


class Gemm:
    def __init__(self, pfx, NWM, NWN, TM, TN, KGS, NBUF, KG, korder, NL, vbase, sbase, lds_base=0):
        self.pfx = pfx
        self.NWM, self.NWN, self.TM, self.TN = NWM, NWN, TM, TN
        self.KGS, self.NBUF, self.KG, self.korder, self.NL = KGS, NBUF, KG, korder, NL
        self.NW = NWM * NWN
        self.BM = NWM * TM * 32
        self.BN = NWN * TN * 32
        self.NT = self.BM // 32
        self.pitch = self.BN * 2
        self.ASB = self.NT * KGS * 1024
        self.BSB = KGS * 16 * self.pitch
        self.SB = self.ASB + self.BSB
        self.lds_base = lds_base
        self.lds_bytes = self.SB * NBUF
        assert KG % KGS == 0
        self.NST = KG // KGS
        self.rpi = 1024 // self.pitch
        ops = []
        for kg in range(KGS):
            for tg in range(0, self.NT, 4):
                for i in range(min(4, self.NT - tg)):
                    ops.append(('A', kg * self.NT * 1024 + tg * 1024, kg * 65536 + tg * 1024, i * 1024))
        for i in range(self.BSB // 1024):
            ops.append(('B', self.ASB + i * 1024, i, 0))
        assert len(ops) % NL == 0, (len(ops), NL)
        self.D = len(ops) // NL
        self.lops = [ops[k * self.D:(k + 1) * self.D] for k in range(NL)]
        assert (NBUF - 1) * self.D <= 63
        v = vbase
        self.acc = v; v += TM * TN * 16
        self.fr = []
        for p in range(2):
            a = [v + 4 * j for j in range(TM)]; v += 4 * TM
            b = [v + 4 * j for j in range(TN)]; v += 4 * TN
            self.fr.append((a, b))
        self.vA0 = v; v += 1
        self.vB0 = [v + j for j in range(TN)]; v += TN
        self.vA = v; v += 1
        self.vB = [v + j for j in range(TN)]; v += TN
        self.vDA = v; v += 1
        self.vDB = v; v += 1
        self.vDB2 = v; v += 1
        self.vt = v; v += 4
        self.vend = (v + 3) // 4 * 4
        s = sbase
        self.sRd = s; s += 1
        self.sWr = s; s += 1
        self.sAo = s; s += 1
        self.sBo = s; s += 1
        self.sBinc = s; s += 1
        self.sBstep = s; s += 1
        self.sCnt = s; s += 1
        self.sIss = s; s += 1
        self.st = s; s += 4
        self.send = s

    def accr(self, tm, tn):
        return self.acc + (tm * self.TN + tn) * 16

    def loader_setup(self, e, sLdw, sA0):
        t = self.vt
        ppr = self.pitch // 16
        lgp = int(math.log2(ppr))
        e(f"v_lshlrev_b32 v{self.vDA}, 4, v0")
        e(f"v_lshrrev_b32 v{t}, {lgp}, v0")
        e(f"v_and_b32 v{t+1}, {ppr-1}, v0")
        e(f"v_lshrrev_b32 v{t+2}, 2, v{t+1}")
        if self.pitch == 256:
            e(f"v_and_b32 v{t+3}, 3, v{t}")
        else:
            e(f"v_bfe_u32 v{t+3}, v{t}, 1, 1")
        e(f"v_xor_b32 v{t+2}, v{t+2}, v{t+3}")
        e(f"v_and_b32 v{t+1}, 3, v{t+1}")
        e(f"v_lshlrev_b32 v{t+1}, 4, v{t+1}")
        e(f"v_lshl_add_u32 v{t+1}, v{t+2}, 6, v{t+1}")
        e(f"v_mul_lo_u32 v{t+2}, v{t}, {sLdw}")
        e(f"v_add_u32 v{self.vDB}, v{t+2}, v{t+1}")
        e(f"s_mul_i32 s{self.sBinc}, {sLdw}, {16*self.KGS}")
        e(f"s_mul_i32 s{self.sBstep}, {sLdw}, {self.rpi}")
        e(f"s_mov_b32 s{self.sAo}, {sA0}")
        e(f"s_mov_b32 s{self.sBo}, 0")
        e(f"s_mov_b32 s{self.sIss}, 0")
        e(f"s_mov_b32 s{self.sWr}, {self.lds_base}")

    def issue(self, e, k, SA, SBd):
        st = self.st
        rep = int(os.environ.get('REP', '1'))
        e(f"s_cmp_lt_u32 s{self.sIss}, {self.NST}")
        e(f"s_cselect_b32 s{st+1}, s{self.sAo}, 0x7ff00000")
        e(f"s_cselect_b32 s{st+2}, s{self.sBo}, 0x7ff00000")
        cur = None
        lastb = 0
        for kind, lo, gd, io in self.lops[k]:
            if kind == 'A':
                if cur != ('A', lo):
                    e(f"s_add_u32 m0, s{self.sWr}, {lo}")
                    e(f"s_add_u32 s{st}, s{st+1}, {gd}")
                    cur = ('A', lo)
                off = f" offset:{io}" if io else ""
                e(f"buffer_load_dwordx4 v{self.vDA}, s[{SA}:{SA+3}], s{st} offen{off} lds")
            else:
                e(f"s_add_u32 m0, s{self.sWr}, {lo}")
                if gd != lastb:
                    if gd - lastb == 1:
                        e(f"s_add_u32 s{st+2}, s{st+2}, s{self.sBstep}")
                    else:
                        e(f"s_mul_i32 s{st+3}, s{self.sBstep}, {gd-lastb}")
                        e(f"s_add_u32 s{st+2}, s{st+2}, s{st+3}")
                    lastb = gd
                else:
                    e("s_nop 0")
                e(f"buffer_load_dwordx4 v{self.vDB}, s[{SBd}:{SBd+3}], s{st+2} offen lds")
                cur = None
        e(f"s_add_u32 s{self.sAo}, s{self.sAo}, {self.KGS*65536}")
        e(f"s_add_u32 s{self.sBo}, s{self.sBo}, s{self.sBinc}")
        e(f"s_add_u32 s{self.sIss}, s{self.sIss}, 1")
        e(f"s_add_u32 s{self.sWr}, s{self.sWr}, {self.SB}")
        e(f"s_cmp_eq_u32 s{self.sWr}, {self.lds_base + self.SB*self.NBUF}")
        e(f"s_cselect_b32 s{self.sWr}, {self.lds_base}, s{self.sWr}")

    def loader(self, e, k, SA, SBd, endlabel):
        L = f"{self.pfx}_ld{k}_loop"
        self.issue(e, k, SA, SBd)
        self.issue(e, k, SA, SBd)
        e(f"s_waitcnt vmcnt({self.D})")
        e("s_barrier")
        for s_ in range(2, self.NBUF - 1):
            self.issue(e, k, SA, SBd)
        e(f"s_mov_b32 s{self.sCnt}, {self.NST}")
        e(f"{L}:")
        e(f"s_waitcnt vmcnt({(self.NBUF-3)*self.D})")
        e("s_barrier")
        if not os.environ.get("NODMA"):
            self.issue(e, k, SA, SBd)
        e(f"s_sub_u32 s{self.sCnt}, s{self.sCnt}, 1")
        e(f"s_cmp_lg_u32 s{self.sCnt}, 0")
        e(f"s_cbranch_scc1 {L}")
        e(f"s_branch {endlabel}")

    def setup(self, e, sWave):
        t = self.vt
        TM, TN, KGS = self.TM, self.TN, self.KGS
        st = self.st
        lg = int(math.log2(self.NWN))
        e(f"s_lshr_b32 s{st}, {sWave}, {lg}")
        e(f"s_and_b32 s{st+1}, {sWave}, {self.NWN-1}")
        e(f"v_lshlrev_b32 v{self.vDA}, 4, v0")
        e(f"s_mul_i32 s{st}, s{st}, {TM*1024}")
        e(f"s_add_u32 s{st}, s{st}, {self.lds_base}")
        e(f"v_add_u32 v{self.vA0}, s{st}, v{self.vDA}")
        e(f"v_bfe_u32 v{t}, v0, 2, 2")
        e(f"v_lshrrev_b32 v{t+1}, 5, v0")
        hmul = 8 if self.korder == 'nat' else 4
        e(f"v_mad_u32_u24 v{t+1}, v{t+1}, {hmul}, v{t}")
        e(f"v_mul_u32_u24 v{t+1}, {self.pitch}, v{t+1}")
        e(f"v_bfe_u32 v{t+2}, v0, 4, 1")
        e(f"v_lshl_add_u32 v{t+1}, v{t+2}, 5, v{t+1}")
        e(f"v_and_b32 v{t+2}, 3, v0")
        e(f"v_lshl_add_u32 v{t+1}, v{t+2}, 3, v{t+1}")
        e(f"v_add_u32 v{t+1}, {self.lds_base + self.ASB}, v{t+1}")
        if self.pitch == 128:
            e(f"v_lshrrev_b32 v{t}, 1, v{t}")
        for j in range(TN):
            e(f"s_mul_i32 s{st}, s{st+1}, {TN}")
            e(f"s_add_u32 s{st}, s{st}, {j}")
            e(f"v_xor_b32 v{t+2}, s{st}, v{t}")
            e(f"v_lshl_add_u32 v{self.vB0[j]}, v{t+2}, 6, v{t+1}")
        e(f"s_mov_b32 s{self.sRd}, 0")

    def reads(self, e, p, kg):
        a, b = self.fr[p]
        ra = [f"ds_read_b128 v[{a[j]}:{a[j]+3}], v{self.vA} offset:{kg*self.NT*1024 + j*1024}" for j in range(self.TM)]
        tmul = 4 if self.korder == 'nat' else 8
        rb = []
        for j in range(self.TN):
            for t in range(2):
                rb.append(f"ds_read_b64_tr_b16 v[{b[j]+2*t}:{b[j]+2*t+1}], v{self.vB[j]} offset:{(kg*16 + t*tmul)*self.pitch}")
        return ra[:1] + rb + ra[1:]

    def nreads(self):
        return self.TM + 2 * self.TN

    def mfmas(self, p, orient):
        a, b = self.fr[p]
        out = []
        for tm in range(self.TM):
            for tn in range(self.TN):
                d = self.accr(tm, tn)
                if orient == 'n':
                    s0, s1 = b[tn], a[tm]
                else:
                    s0, s1 = a[tm], b[tn]
                out.append(f"v_mfma_f32_32x32x16_bf16 v[{d}:{d+15}], v[{s0}:{s0+3}], v[{s1}:{s1+3}], v[{d}:{d+15}]")
        return out

    def set_bases(self, e):
        e(f"v_add_u32 v{self.vA}, s{self.sRd}, v{self.vA0}")
        for j in range(self.TN):
            e(f"v_add_u32 v{self.vB[j]}, s{self.sRd}, v{self.vB0[j]}")

    def adv_rd(self, e):
        e(f"s_add_u32 s{self.sRd}, s{self.sRd}, {self.SB}")
        e(f"s_cmp_eq_u32 s{self.sRd}, {self.SB*self.NBUF}")
        e(f"s_cselect_b32 s{self.sRd}, 0, s{self.sRd}")

    def main(self, e, orient, tag, after_first=None):
        L = f"{self.pfx}_{tag}_loop"
        self.set_bases(e)
        e(f"s_mov_b32 s{self.sCnt}, {self.NST}")
        stamp(e, 1)
        e("s_barrier")
        stamp(e, 2)
        for r in self.reads(e, 0, 0):
            e(r)
        if after_first:
            after_first()
        e(f"{L}:")
        e("s_barrier")
        nr = self.nreads()
        for kg in range(self.KGS):
            p = kg & 1
            last = kg == self.KGS - 1
            rd = self.reads(e, p ^ 1, 0 if last else kg + 1)
            mf = self.mfmas(p, orient)
            need = []
            for tm in range(self.TM):
                for tn in range(self.TN):
                    nb = 1 + 2 * (tn + 1)
                    na = 1 if tm == 0 else 1 + 2 * self.TN + tm
                    need.append(max(nb, na))
            nm = len(mf)
            gaps = max(1, nm - 2) if nm > 2 else 1
            per = (nr + gaps - 1) // gaps
            issued = 0
            have = 0
            for i in range(nm):
                if need[i] > have:
                    if not os.environ.get("NOLDS"):
                        e(f"s_waitcnt lgkmcnt({nr - need[i] + issued})")
                    have = need[i]
                if not os.environ.get("NOMFMA"):
                    e(mf[i])
                if i == 0 and last:
                    self.adv_rd(e)
                    self.set_bases(e)
                for r in rd[issued:issued + per]:
                    if not os.environ.get("NOLDS"):
                        e(r)
                issued = min(nr, issued + per)
            assert issued == nr
        e(f"s_sub_u32 s{self.sCnt}, s{self.sCnt}, 1")
        e(f"s_cmp_lg_u32 s{self.sCnt}, 0")
        e(f"s_cbranch_scc1 {L}")
        e("s_waitcnt lgkmcnt(0)")
        e("s_nop 15")
        stamp(e, 3)


def load_bias_init(e, g, srdB, sN0, tmp):
    e(f"v_lshrrev_b32 v{g.vt}, 5, v0")
    e(f"v_lshlrev_b32 v{g.vt}, 3, v{g.vt}")
    for tn in range(g.TN):
        for gg in range(4):
            r = tmp + (tn * 4 + gg) * 2
            e(f"buffer_load_dwordx2 v[{r}:{r+1}], v{g.vt}, s[{srdB}:{srdB+3}], {sN0} offen offset:{(tn*32+gg*8)*2}")


def finish_bias_init(e, g, tmp):
    for tn in range(g.TN):
        for gg in range(4):
            r = tmp + (tn * 4 + gg) * 2
            for tm in range(g.TM):
                d = g.accr(tm, tn) + gg * 4
                e(f"v_lshlrev_b32 v{d}, 16, v{r}")
                e(f"v_and_b32 v{d+1}, 0xffff0000, v{r}")
                e(f"v_lshlrev_b32 v{d+2}, 16, v{r+1}")
                e(f"v_and_b32 v{d+3}, 0xffff0000, v{r+1}")


K1_KGS = 2
K1_NBUF = 6


def gen_k1(e):
    g = Gemm("k1", NWM=4, NWN=2, TM=2, TN=2, KGS=K1_KGS, NBUF=K1_NBUF, KG=40, korder='nat', NL=2, vbase=8, sbase=40)
    kernel_head(e, "gemm1_kernel")
    e("""
    s_cmp_ge_u32 s2, 256
    s_cbranch_scc1 k1_done
    s_load_dwordx2 s[4:5], s[0:1], 80
    s_load_dwordx2 s[6:7], s[0:1], 8
    s_load_dwordx2 s[8:9], s[0:1], 32
    s_load_dwordx2 s[10:11], s[0:1], 40
    v_lshrrev_b32 v1, 6, v0
    v_and_b32 v0, 63, v0
    s_and_b32 s20, s2, 7
    v_readfirstlane_b32 s24, v1
    s_lshr_b32 s21, s2, 3
    s_and_b32 s22, s21, 3
    s_lshr_b32 s21, s21, 2
    s_lshr_b32 s26, s20, 2
    s_bfe_u32 s23, s20, 0x10001
    s_lshl_b32 s23, s23, 2
    s_add_u32 s23, s23, s22
    s_and_b32 s27, s20, 1
    """)
    e("""
    s_cmp_eq_u32 s26, 0
    s_cselect_b32 s25, 8, 7
    s_mul_i32 s25, s25, s27
    s_add_u32 s25, s25, s21
    s_cmp_eq_u32 s26, 0
    s_cselect_b32 s27, 15, 14
    s_cselect_b32 s28, 8, 7
    s_cmp_ge_u32 s25, s27
    s_cbranch_scc1 k1_done
    s_cmp_ge_u32 s21, s28
    s_cbranch_scc1 k1_done
    s_lshl_b32 s28, s25, 8
    s_waitcnt lgkmcnt(0)
    """)
    srd(e, 36, "s4", "s5", WS_BYTES)
    stamp_rt(e, 10)
    stamp(e, 0)
    e("s_cmp_lt_u32 s24, 8")
    e("s_cbranch_scc1 k1_compute")
    e("""
    s_cmp_eq_u32 s26, 0
    s_cselect_b32 s30, s6, s8
    s_cselect_b32 s31, s7, s9
    """)
    csel(e, "s29", 3840, 3456)
    csel(e, "s32", XN_OFF, Y_OFF)
    csel(e, "s33", 640*3840, 640*3456)
    e("""
    s_add_u32 s16, s30, s28
    s_addc_u32 s17, s31, 0
    s_and_b32 s17, s17, 0xffff
    s_sub_u32 s18, s33, s28
    s_mov_b32 s19, 0x00020000
    s_add_u32 s12, s4, s32
    s_addc_u32 s13, s5, 0
    s_and_b32 s13, s13, 0xffff
    """)
    e(f"s_mov_b32 s14, {FR}")
    e("s_mov_b32 s15, 0x00020000")
    e("s_lshl_b32 s34, s23, 13")
    g.loader_setup(e, "s29", "s34")
    e("s_cmp_eq_u32 s24, 9")
    e("s_cbranch_scc1 k1_ld1")
    g.loader(e, 0, 12, 16, "k1_end")
    e("k1_ld1:")
    g.loader(e, 1, 12, 16, "k1_end")
    e("k1_compute:")
    g.setup(e, "s24")
    sWM, sWN = g.send, g.send + 1
    e(f"s_lshr_b32 s{sWM}, s24, 1")
    e(f"s_and_b32 s{sWN}, s24, 1")
    sT = (g.send + 2 + 3) // 4 * 4 + 2
    tmpv = g.vend
    e("s_cmp_eq_u32 s26, 0")
    e("s_cbranch_scc1 k1_qkv")
    srd(e, sT + 2, "s10", "s11", 1728 * 2)
    assert (sT + 2) % 4 == 0, sT
    e(f"s_lshl_b32 s{sT}, s{sWN}, 7")
    e(f"s_add_u32 s{sT}, s{sT}, s28")
    load_bias_init(e, g, sT + 2, f"s{sT}", tmpv)
    e(f"s_waitcnt vmcnt(0)")
    finish_bias_init(e, g, tmpv)
    g.main(e, 'n', 'mlp')
    e(f"s_lshl_b32 s{sT}, s{sWN}, 6")
    e(f"s_lshr_b32 s{sT+1}, s28, 1")
    e(f"s_add_u32 s{sT}, s{sT}, s{sT+1}")
    e(f"s_cmp_ge_u32 s{sT}, 1728")
    e("s_cbranch_scc1 k1_end")
    e(f"s_lshl_b32 s{sT+1}, s23, 3")
    e(f"s_lshl_b32 s{sT+6}, s{sWM}, 1")
    e(f"s_add_u32 s{sT+1}, s{sT+1}, s{sT+6}")
    e(f"s_lshr_b32 s{sT}, s{sT}, 4")
    e(f"s_lshl_b32 s{sT}, s{sT}, 6")
    e(f"s_add_u32 s{sT}, s{sT}, s{sT+1}")
    e(f"s_lshl_b32 s{sT}, s{sT}, 10")
    e(f"s_add_u32 s{sT}, s{sT}, {H_OFF}")
    for i in range(1, 4):
        e(f"s_add_u32 s{sT+i}, s{sT}, {65536*i}")
    c0 = -2.0 * math.sqrt(2.0 / math.pi) * 1.4426950408889634
    c1 = c0 * 0.044715
    e(f"v_mov_b32 v{tmpv}, 0x{f32bits(c0):08x}")
    e(f"v_mov_b32 v{tmpv+1}, 0x{f32bits(c1):08x}")
    for tm in range(2):
        for tn in range(2):
            a = g.accr(tm, tn)
            for half in range(2):
                t = tmpv + 4 + 8 * ((tm * 4 + tn * 2 + half) & 1)
                pk = tmpv + 20 + 4 * ((tm * 4 + tn * 2 + half) & 1)
                r0 = a + half * 8
                for i in range(8):
                    e(f"v_mul_f32 v{t+i}, v{r0+i}, v{r0+i}")
                for i in range(8):
                    e(f"v_fma_f32 v{t+i}, v{t+i}, v{tmpv+1}, v{tmpv}")
                for i in range(8):
                    e(f"v_mul_f32 v{t+i}, v{t+i}, v{r0+i}")
                for i in range(8):
                    e(f"v_exp_f32 v{t+i}, v{t+i}")
                for i in range(8):
                    e(f"v_add_f32 v{t+i}, 1.0, v{t+i}")
                for i in range(8):
                    e(f"v_rcp_f32 v{t+i}, v{t+i}")
                for i in range(8):
                    e(f"v_mul_f32 v{t+i}, v{t+i}, v{r0+i}")
                for i in range(4):
                    e(f"v_cvt_pk_bf16_f32 v{pk+i}, v{t+2*i}, v{t+2*i+1}")
                so = sT + tn * 2 + half
                e(f"buffer_store_dwordx4 v[{pk}:{pk+3}], v{g.vDA}, s[36:39], s{so} offen offset:{tm*1024}")
    e("s_branch k1_end")
    e("k1_qkv:")
    for i in range(64):
        e(f"v_mov_b32 v{g.acc+i}, 0")
    e("s_cmp_ge_u32 s25, 10")
    e("s_cbranch_scc1 k1_v")
    g.main(e, 'n', 'qk')
    qs = (20 ** -0.5) * 1.4426950408889634
    e("s_cmp_lt_u32 s25, 5")
    e(f"s_cselect_b32 s{sT}, 0x{f32bits(qs):08x}, 1.0")
    csel(e, f"s{sT+1}", 1280, 2560)
    csel(e, f"s{sT+6}", QF_OFF, KV_OFF)
    e(f"s_cselect_b32 s{sT+7}, 0, 5")
    e(f"s_sub_u32 s{sT+7}, s25, s{sT+7}")
    e(f"s_lshl_b32 s{sT+7}, s{sT+7}, 5")
    e(f"s_lshl_b32 s{sT+2}, s{sWN}, 4")
    e(f"s_add_u32 s{sT+7}, s{sT+7}, s{sT+2}")
    e(f"s_lshl_b32 s{sT+2}, s23, 3")
    e(f"s_lshl_b32 s{sT+3}, s{sWM}, 1")
    e(f"s_add_u32 s{sT+2}, s{sT+2}, s{sT+3}")
    e(f"s_mul_i32 s{sT+2}, s{sT+2}, s{sT+1}")
    e(f"s_add_u32 s{sT+2}, s{sT+2}, s{sT+6}")
    e(f"s_add_u32 s{sT+3}, s{sT+2}, s{sT+1}")
    e(f"s_lshl_b32 s{sT+4}, s{sT+1}, 6")
    t = tmpv
    e(f"v_lshrrev_b32 v{t}, 5, v0")
    e(f"v_add_u32 v{t}, s{sT+7}, v{t}")
    e(f"v_and_b32 v{t+1}, 31, v0")
    e(f"v_lshlrev_b32 v{t+2}, 4, v{t+1}")
    e(f"v_lshlrev_b32 v{t+3}, 3, v{t+1}")
    for tn in range(2):
        for gg in range(4):
            c, hd, j, ad = t + 4, t + 5, t + 6, t + 7
            e(f"v_add_u32 v{c}, {8*tn+2*gg}, v{t}")
            e(f"v_mul_u32_u24 v{hd}, 205, v{c}")
            e(f"v_lshrrev_b32 v{hd}, 10, v{hd}")
            e(f"v_mul_u32_u24 v{j}, 5, v{hd}")
            e(f"v_sub_u32 v{j}, v{c}, v{j}")
            e(f"v_cmp_eq_u32 vcc, 4, v{j}")
            e(f"v_mul_lo_u32 v{ad}, v{hd}, s{sT+4}")
            e(f"v_lshrrev_b32 v{c}, 1, v{j}")
            e(f"v_lshl_add_u32 v{ad}, v{c}, 9, v{ad}")
            e(f"v_and_b32 v{c}, 1, v{j}")
            e(f"v_lshl_add_u32 v{ad}, v{c}, 3, v{ad}")
            e(f"v_cndmask_b32 v{c}, v{t+2}, v{t+3}, vcc")
            e(f"v_add_u32 v{ad}, v{ad}, v{c}")
            for tm in range(2):
                a = g.accr(tm, tn) + gg * 4
                pk = t + 8 + 2 * tm
                for i in range(4):
                    e(f"v_mul_f32 v{a+i}, s{sT}, v{a+i}")
                e(f"v_cvt_pk_bf16_f32 v{pk}, v{a}, v{a+1}")
                e(f"v_cvt_pk_bf16_f32 v{pk+1}, v{a+2}, v{a+3}")
                e(f"buffer_store_dwordx2 v[{pk}:{pk+1}], v{ad}, s[36:39], s{sT+2+tm} offen")
    e("s_branch k1_end")
    e("k1_v:")
    g.main(e, 't', 'v')
    e(f"s_sub_u32 s{sT}, s25, 10")
    e(f"s_lshl_b32 s{sT}, s{sT}, 7")
    e(f"s_lshl_b32 s{sT+1}, s{sWN}, 6")
    e(f"s_add_u32 s{sT}, s{sT}, s{sT+1}")
    e(f"s_lshl_b32 s{sT+2}, s23, 3")
    e(f"s_lshl_b32 s{sT+3}, s{sWM}, 1")
    e(f"s_add_u32 s{sT+2}, s{sT+2}, s{sT+3}")
    e(f"s_mul_i32 s{sT+2}, s{sT+2}, 2560")
    e(f"s_add_u32 s{sT+2}, s{sT+2}, {KV_OFF + 1280}")
    e(f"s_mov_b32 s{sT+4}, {64*2560}")
    t = tmpv
    e(f"v_and_b32 v{t}, 31, v0")
    e(f"v_add_u32 v{t}, s{sT}, v{t}")
    e(f"v_lshrrev_b32 v{t+1}, 5, v0")
    e(f"v_mul_u32_u24 v{t+1}, 320, v{t+1}")
    for tn in range(2):
        c, hd, d, ad = t + 4, t + 5, t + 6, t + 7
        e(f"v_add_u32 v{c}, {32*tn}, v{t}")
        e(f"v_mul_u32_u24 v{hd}, 3277, v{c}")
        e(f"v_lshrrev_b32 v{hd}, 16, v{hd}")
        e(f"v_mul_u32_u24 v{d}, 20, v{hd}")
        e(f"v_sub_u32 v{d}, v{c}, v{d}")
        e(f"v_mul_lo_u32 v{ad}, v{hd}, s{sT+4}")
        e(f"v_lshl_add_u32 v{ad}, v{d}, 4, v{ad}")
        e(f"v_add_u32 v{ad}, v{ad}, v{t+1}")
        for tm in range(2):
            a = g.accr(tm, tn)
            for half in range(2):
                pk = t + 8 + 4 * ((tm * 2 + half) & 1)
                for i in range(4):
                    e(f"v_cvt_pk_bf16_f32 v{pk+i}, v{a+half*8+2*i}, v{a+half*8+2*i+1}")
                e(f"buffer_store_dwordx4 v[{pk}:{pk+3}], v{ad}, s[36:39], s{sT+2} offen offset:{tm*2560+half*640}")
    e("k1_end:")
    stamp(e, 4)
    e("s_waitcnt vmcnt(0)")
    stamp(e, 5)
    stamp_rt(e, 11)
    stamp_store(e, 1, "s24", 36)
    e("k1_done:")
    e("s_endpgm")
    nv = tmpv + 28
    return kd("gemm1_kernel", nv, 96), g.lds_bytes


AT_STAGE = 8 * 2560
K2_KGS = 2
K2_NBUF = 5


def gen_k2(e):
    kernel_head(e, "attn_kernel")
    e("""
    s_cmp_ge_u32 s2, 416
    s_cbranch_scc1 k2_done
    s_load_dwordx2 s[4:5], s[0:1], 80
    s_load_dwordx2 s[6:7], s[0:1], 48
    s_load_dwordx2 s[8:9], s[0:1], 56
    v_lshrrev_b32 v1, 6, v0
    v_and_b32 v0, 63, v0
    s_and_b32 s20, s2, 7
    v_readfirstlane_b32 s24, v1
    s_cmp_ge_u32 s2, 256
    s_cbranch_scc1 k2_mlp
    """)
    Q1, Q2 = 4, 8
    KF = [(12, 16), (20, 24)]
    VF = [(28, 32), (36, 40)]
    SS = [44, 60]
    PP = [76, 84]
    O = 92
    vK, vKh, vV, vKn, vKhn = 108, 109, 110, 111, 112
    vK0, vKh0, vV0 = 113, 114, 115
    vInc, vIncW, vMask, vD2 = 116, 117, 118, 119
    T = 120
    CA = 3 * AT_STAGE
    e("""
    s_lshr_b32 s21, s2, 3
    s_lshr_b32 s22, s21, 3
    s_lshl_b32 s23, s20, 2
    s_add_u32 s22, s22, s23
    s_and_b32 s23, s21, 7
    """)
    e("s_waitcnt lgkmcnt(0)")
    srd(e, 36, "s4", "s5", WS_BYTES)
    stamp_rt(e, 10)
    stamp(e, 0)
    e(f"s_mul_i32 s25, s22, {64*2560}")
    e(f"s_add_u32 s25, s25, {KV_OFF}")
    e("s_add_u32 s12, s4, s25")
    e("s_addc_u32 s13, s5, 0")
    e("s_and_b32 s13, s13, 0xffff")
    e(f"s_mov_b32 s14, {64*2560}")
    e("s_mov_b32 s15, 0x00020000")
    e(f"v_lshlrev_b32 v{vK0}, 4, v0")
    e("s_cmp_lt_u32 s24, 4")
    e("s_mul_i32 s26, s24, 3072")
    e("s_lshl_b32 s27, s24, 11")
    e("s_add_u32 s27, s27, 4096")
    e("s_cmp_lt_u32 s24, 4")
    e("s_cselect_b32 s26, s26, s27")
    e("s_mov_b32 s30, s26")
    e("s_mov_b32 s31, s26")

    def dma(tag):
        e("s_mov_b32 m0, s31")
        e("s_cmp_lt_u32 s24, 4")
        e(f"buffer_load_dwordx4 v{vK0}, s[12:15], s30 offen lds")
        e(f"buffer_load_dwordx4 v{vK0}, s[12:15], s30 offen offset:1024 lds")
        e(f"s_cbranch_scc0 k2_dm{tag}")
        e(f"buffer_load_dwordx4 v{vK0}, s[12:15], s30 offen offset:2048 lds")
        e(f"k2_dm{tag}:")
        e(f"s_add_u32 s31, s31, {AT_STAGE}")
        e(f"s_add_u32 s30, s30, {AT_STAGE}")
        e(f"s_cmp_ge_u32 s31, {3*AT_STAGE}")
        e("s_cselect_b32 s31, s26, s31")
    e(f"v_and_b32 v{T}, 31, v0")
    e(f"v_lshlrev_b32 v{vKh0}, 3, v{T}")
    e(f"v_add_u32 v{vKh0}, 1024, v{vKh0}")
    e("s_lshl_b32 s32, s23, 3")
    e("s_add_u32 s32, s32, s24")
    e("s_lshl_b32 s33, s22, 6")
    e("s_add_u32 s33, s33, s32")
    e("s_mul_i32 s33, s33, 1280")
    e(f"s_add_u32 s33, s33, {QF_OFF}")
    for i in range(4):
        e(f"v_mov_b32 v{Q2+i}, 0")
    dma("p0")
    e(f"buffer_load_dwordx4 v[{Q1}:{Q1+3}], v{vK0}, s[36:39], s33 offen")
    e("s_mov_b32 exec_hi, 0")
    e(f"buffer_load_dwordx2 v[{Q2}:{Q2+1}], v{vKh0}, s[36:39], s33 offen")
    e("s_mov_b64 exec, -1")
    e(f"v_lshrrev_b32 v{T+1}, 5, v0")
    e(f"v_mad_u32_u24 v{vV0}, v{T+1}, 20, v{T}")
    e(f"v_lshlrev_b32 v{vV0}, 4, v{vV0}")
    e(f"v_add_u32 v{vV0}, 1280, v{vV0}")
    e("s_mov_b32 s28, 0x000fffff")
    e("s_mov_b32 s29, 0x000fffff")
    X = SS[0]
    e(f"v_and_b32 v{T+2}, 1, v0")
    e(f"v_cmp_eq_u32 vcc, 0, v{T+2}")
    e(f"v_mov_b32 v{T+3}, 0x3f803f80")
    e(f"v_bfe_u32 v{T+4}, v0, 1, 1")
    e(f"v_mul_u32_u24 v{T+4}, 640, v{T+4}")
    e(f"v_lshl_add_u32 v{T+4}, v{T+2}, 4, v{T+4}")
    for i in range(4):
        e(f"v_cndmask_b32 v{X+i}, 0, v{T+3}, vcc")
    e(f"ds_write_b128 v{T+4}, v[{X}:{X+3}] offset:{CA}")
    e(f"v_cmp_gt_u32 vcc, 20, v{T}")
    e(f"v_cmp_eq_u32 s[40:41], 20, v{T}")
    e(f"v_mov_b32 v{T+5}, {CA+16}")
    e(f"v_mov_b32 v{T+6}, {CA}")
    e(f"v_cndmask_b32 v{T+5}, v{T+5}, v{T+6}, s[40:41]")
    e(f"v_cndmask_b32 v{vV}, v{T+5}, v{vV0}, vcc")
    e(f"v_cndmask_b32 v{vMask}, 0, 1, vcc")
    e(f"v_mul_u32_u24 v{vInc}, 2560, v{vMask}")
    for lo, hi in KF:
        for i in range(4):
            e(f"v_mov_b32 v{hi+i}, 0")
    for a, b in VF:
        for r in (a, b):
            for i in range(4):
                e(f"v_mov_b32 v{r+i}, 0")
    for i in range(8):
        e(f"v_mov_b32 v{PP[1]+i}, 0")
    for i in range(16):
        e(f"v_mov_b32 v{O+i}, 0")
    e(f"v_mov_b32 v{vKn}, v{vK0}")
    e(f"v_mov_b32 v{vKhn}, v{vKh0}")
    e(f"s_mov_b32 s34, {AT_STAGE}")
    e("s_mov_b32 s35, 8")

    def rdK(t, p):
        lo, hi = KF[p]
        a, b = (vK, vKh) if t < 8 else (vKn, vKhn)
        o = (t % 8) * 2560
        return [f"ds_read_b128 v[{lo}:{lo+3}], v{a} offset:{o}",
                f"ds_read_b64 v[{hi}:{hi+1}], v{b} offset:{o}"]

    def rdV(p):
        v0_, v1_ = VF[p]
        return [f"ds_read_b128 v[{v0_}:{v0_+3}], v{vV}",
                f"ds_read_b128 v[{v1_}:{v1_+3}], v{vV} offset:640"]

    def mS(S, p):
        lo, hi = KF[p]
        return [f"v_mfma_f32_32x32x16_bf16 v[{S}:{S+15}], v[{lo}:{lo+3}], v[{Q1}:{Q1+3}], 0",
                f"v_mfma_f32_32x32x16_bf16 v[{S}:{S+15}], v[{hi}:{hi+3}], v[{Q2}:{Q2+3}], v[{S}:{S+15}]"]

    def mPV(p, P):
        v0_, v1_ = VF[p]
        return [f"v_mfma_f32_32x32x16_bf16 v[{O}:{O+15}], v[{v0_}:{v0_+3}], v[{P}:{P+3}], v[{O}:{O+15}]",
                f"v_mfma_f32_32x32x16_bf16 v[{O}:{O+15}], v[{v1_}:{v1_+3}], v[{P+4}:{P+7}], v[{O}:{O+15}]"]

    stamp(e, 1)
    e("s_waitcnt vmcnt(0) lgkmcnt(0)")
    e("s_barrier")
    stamp(e, 2)
    dma("p1")
    for r in rdK(8, 0) + rdK(9, 1):
        e(r)
    e("s_waitcnt lgkmcnt(0)")
    for m in mS(SS[0], 0):
        e(m)
    e("s_nop 7")
    e("k2_stage:")
    e("s_waitcnt vmcnt(0)")
    e("s_barrier")
    dma("l")
    e(f"v_mov_b32 v{vK}, v{vKn}")
    e(f"v_mov_b32 v{vKh}, v{vKhn}")
    e(f"v_add_u32 v{vKn}, s34, v{vK0}")
    e(f"v_add_u32 v{vKhn}, s34, v{vKh0}")
    e("s_cmp_eq_u32 s34, 0")
    csel(e, "s27", 2560 - 3 * AT_STAGE, 2560)
    e(f"v_mul_lo_u32 v{vIncW}, v{vMask}, s27")
    e(f"s_add_u32 s34, s34, {AT_STAGE}")
    e(f"s_cmp_eq_u32 s34, {3*AT_STAGE}")
    e("s_cselect_b32 s34, 0, s34")

    def phase(S, P, mf, extra):
        ex = list(extra)
        for q in range(4):
            e(mf[q])
            for i in range(4):
                e(f"v_exp_f32 v{S+4*q+i}, v{S+4*q+i}")
                if ex and i in (0, 2):
                    x = ex.pop(0)
                    if x:
                        e(x)
            e(f"v_cvt_pk_bf16_f32 v{P+2*q}, v{S+4*q}, v{S+4*q+1}")
            e(f"v_cvt_pk_bf16_f32 v{P+2*q+1}, v{S+4*q+2}, v{S+4*q+3}")
        assert not ex

    for t in range(8):
        p = t & 1
        inc = vIncW if t == 7 else vInc
        X_ = os.environ.get("ATX", "")
        ex = rdV(p) + rdK(t + 2, p) + [f"v_add_u32 v{vV}, v{vV}, v{inc}", None, None, "s_waitcnt lgkmcnt(0)"]
        if "nolds" in X_:
            ex = []
        if "nowait" in X_:
            ex = ex[:-1]
        if "nopsonly" in X_:
            ex = ["s_nop 0"] * 4 + ex[4:]
        if "onlyk" in X_:
            ex = ["s_nop 0"] * 2 + ex[2:]
        if "onlyv" in X_:
            ex = ex[:2] + ["s_nop 0"] * 2 + ex[4:]
        if "late" in X_:
            pass
        PR = os.environ.get("PRIO", "none")
        if PR != "none" and (t == 0 or PR[t] != PR[t-1]):
            e(f"s_setprio {PR[t]}")
        mf = mS(SS[p ^ 1], p ^ 1) + mPV(p ^ 1, PP[p ^ 1])
        if "nopv" in X_:
            mf = mf[:2] + ["s_nop 0", "s_nop 0"]
        if "nos" in X_:
            mf = ["s_nop 0", "s_nop 0"] + mf[2:]
        if "pvq" in X_:
            mf = mf[:2] + [f"v_mfma_f32_32x32x16_bf16 v[{O}:{O+15}], v[{VF[0][0]}:{VF[0][0]+3}], v[{Q1}:{Q1+3}], v[{O}:{O+15}]"] * 2
        if "sacc" in X_:
            mf = [f"v_mfma_f32_32x32x16_bf16 v[{O}:{O+15}], v[{KF[0][0]}:{KF[0][0]+3}], v[{Q1}:{Q1+3}], v[{O}:{O+15}]"] * 2 + mf[2:]
        phase(SS[p], PP[p], mf, ex)
    e("s_sub_u32 s35, s35, 1")
    e("s_cmp_lg_u32 s35, 0")
    e("s_cbranch_scc1 k2_stage")
    for m in mPV(1, PP[1]):
        e(m)
    e("s_waitcnt lgkmcnt(0) vmcnt(0)")
    e("s_nop 15")
    stamp(e, 3)
    L = T
    lo_lim = f32bits(2.0 ** -80)
    hi_lim = f32bits(2.0 ** 100)

    def bcast_l(dst, tmp):
        e(f"v_mov_b32 v{tmp}, v{O+8}")
        e(f"v_mov_b32 v{dst}, v{O+8}")
        e("s_nop 1")
        e(f"v_permlane32_swap_b32 v{tmp}, v{dst}")

    e(f"v_mov_b32 v{T+4}, 0")
    bcast_l(L, T + 2)
    for i in range(12):
        e(f"v_fma_f32 v{T+4}, v{O+i}, 0, v{T+4}")
    e(f"s_mov_b32 s40, 0x{lo_lim:08x}")
    e(f"s_mov_b32 s41, 0x{hi_lim:08x}")
    e(f"v_cmp_u_f32 s[42:43], v{T+4}, v{T+4}")
    e(f"v_cmp_nle_f32 s[44:45], s40, v{L}")
    e(f"v_cmp_nge_f32 s[46:47], s41, v{L}")
    e("s_nop 3")
    e("s_or_b64 s[42:43], s[42:43], s[44:45]")
    e("s_or_b64 s[42:43], s[42:43], s[46:47]")
    e("s_cmp_eq_u64 s[42:43], 0")
    e("s_cbranch_scc1 k2_epi")
    v0_, v1_ = VF[0]
    Sa, Pa = SS[0], PP[0]
    e(f"v_and_b32 v{T+2}, 31, v0")
    e(f"v_cmp_eq_u32 vcc, 20, v{T+2}")
    e(f"v_mov_b32 v{T+3}, 0x3f803f80")
    e("s_nop 0")
    for r in (v0_, v1_):
        for i in range(4):
            e(f"v_cndmask_b32 v{r+i}, 0, v{T+3}, vcc")
    lo, hi = KF[0]
    M = T + 6
    e(f"v_mov_b32 v{M}, 0xff800000")
    e("s_mov_b32 s40, 0")
    e(f"k2_fb1:")
    e(f"buffer_load_dwordx4 v[{lo}:{lo+3}], v{vK0}, s[12:15], s40 offen")
    e(f"buffer_load_dwordx2 v[{hi}:{hi+1}], v{vKh0}, s[12:15], s40 offen")
    e("s_waitcnt vmcnt(0)")
    for m in mS(Sa, 0):
        e(m)
    e("s_nop 15")
    e("s_nop 3")
    for i in range(8):
        e(f"v_max3_f32 v{M}, v{Sa+2*i}, v{Sa+2*i+1}, v{M}")
    e("s_add_u32 s40, s40, 2560")
    e(f"s_cmp_lt_u32 s40, {64*2560}")
    e(f"s_cbranch_scc1 k2_fb1")
    e(f"v_mov_b32 v{M+1}, v{M}")
    e("s_nop 1")
    e(f"v_permlane32_swap_b32 v{M}, v{M+1}")
    e("s_nop 1")
    e(f"v_max_f32 v{M}, v{M}, v{M+1}")
    for i in range(16):
        e(f"v_mov_b32 v{O+i}, 0")
    e("s_mov_b32 s40, 0")
    e(f"k2_fb2:")
    e(f"buffer_load_dwordx4 v[{lo}:{lo+3}], v{vK0}, s[12:15], s40 offen")
    e(f"buffer_load_dwordx2 v[{hi}:{hi+1}], v{vKh0}, s[12:15], s40 offen")
    e("s_mov_b64 exec, s[28:29]")
    e(f"buffer_load_dwordx4 v[{v0_}:{v0_+3}], v{vV0}, s[12:15], s40 offen")
    e(f"buffer_load_dwordx4 v[{v1_}:{v1_+3}], v{vV0}, s[12:15], s40 offen offset:640")
    e("s_mov_b64 exec, -1")
    e("s_waitcnt vmcnt(0)")
    for m in mS(Sa, 0):
        e(m)
    e("s_nop 15")
    e("s_nop 3")
    for i in range(16):
        e(f"v_sub_f32 v{Sa+i}, v{Sa+i}, v{M}")
    for i in range(16):
        e(f"v_exp_f32 v{Sa+i}, v{Sa+i}")
    e("s_nop 0")
    for i in range(8):
        e(f"v_cvt_pk_bf16_f32 v{Pa+i}, v{Sa+2*i}, v{Sa+2*i+1}")
    e("s_nop 1")
    for m in mPV(0, Pa):
        e(m)
    e("s_add_u32 s40, s40, 2560")
    e(f"s_cmp_lt_u32 s40, {64*2560}")
    e("s_nop 7")
    e(f"s_cbranch_scc1 k2_fb2")
    e("s_nop 15")
    bcast_l(L, T + 2)
    e("k2_epi:")
    e("s_lshl_b32 s41, s22, 6")
    e("s_add_u32 s41, s41, s32")
    e("s_lshl_b32 s41, s41, 10")
    e(f"s_add_u32 s41, s41, {O_OFF}")
    e("s_lshr_b32 s43, s22, 2")
    e("s_add_u32 s43, s43, 32")
    e("s_lshl_b32 s43, s43, 6")
    e("s_add_u32 s43, s43, s32")
    e("s_lshl_b32 s43, s43, 10")
    e("s_bfe_u32 s44, s22, 0x10001")
    e("s_lshl_b32 s44, s44, 9")
    e("s_add_u32 s43, s43, s44")
    e("s_and_b32 s44, s22, 1")
    e("s_lshl_b32 s44, s44, 3")
    e("s_add_u32 s43, s43, s44")
    e(f"s_add_u32 s43, s43, {O_OFF}")
    e(f"v_rcp_f32 v{L}, v{L}")
    e("s_nop 0")
    pk = PP[0]
    for i in range(12):
        e(f"v_mul_f32 v{O+i}, v{O+i}, v{L}")
    for i in range(6):
        e(f"v_cvt_pk_bf16_f32 v{pk+i}, v{O+2*i}, v{O+2*i+1}")
    e(f"buffer_store_dwordx4 v[{pk}:{pk+3}], v{vK0}, s[36:39], s41 offen")
    e("s_mov_b32 exec_hi, 0")
    e(f"buffer_store_dwordx2 v[{pk+4}:{pk+5}], v{vK0}, s[36:39], s43 offen")
    e("s_mov_b64 exec, -1")
    e("s_branch k2_end")

    e("k2_mlp:")
    if os.environ.get("PRIO", "none") != "none":
        e("s_setprio 3")
    g = Gemm("k2", NWM=2, NWN=2, TM=2, TN=1, KGS=K2_KGS, NBUF=K2_NBUF, KG=108, korder='d', NL=1, vbase=8, sbase=40)
    e("""
    s_sub_u32 s21, s2, 256
    s_lshr_b32 s21, s21, 3
    s_cmp_ge_u32 s21, 10
    s_cselect_b32 s22, 1, 0
    s_cselect_b32 s23, 10, 0
    s_sub_u32 s25, s21, s23
    s_lshl_b32 s23, s20, 1
    s_add_u32 s23, s23, s22
    s_lshl_b32 s28, s25, 7
    s_mov_b32 s29, 1280
    s_waitcnt lgkmcnt(0)
    """)
    srd(e, 36, "s4", "s5", WS_BYTES)
    stamp_rt(e, 10)
    stamp(e, 0)
    e("s_cmp_lt_u32 s24, 4")
    e("s_cbranch_scc1 k2_mc")
    e("s_cmp_gt_u32 s24, 4")
    e("s_cbranch_scc1 k2_done")
    e("""
    s_add_u32 s16, s6, s28
    s_addc_u32 s17, s7, 0
    s_and_b32 s17, s17, 0xffff
    """)
    e(f"s_sub_u32 s18, {1728*1280}, s28")
    e("s_mov_b32 s19, 0x00020000")
    e(f"s_add_u32 s12, s4, {H_OFF}")
    e("s_addc_u32 s13, s5, 0")
    e("s_and_b32 s13, s13, 0xffff")
    e(f"s_mov_b32 s14, {108*65536}")
    e("s_mov_b32 s15, 0x00020000")
    e("s_lshl_b32 s34, s23, 12")
    g.loader_setup(e, "s29", "s34")
    g.loader(e, 0, 12, 16, "k2_end")
    e("k2_mc:")
    g.setup(e, "s24")
    sWM, sWN = g.send, g.send + 1
    e(f"s_lshr_b32 s{sWM}, s24, 1")
    e(f"s_and_b32 s{sWN}, s24, 1")
    sT = (g.send + 2 + 3) // 4 * 4 + 2
    tmpv = g.vend
    srd(e, sT + 2, "s8", "s9", 640 * 2)
    e(f"s_lshl_b32 s{sT}, s{sWN}, 6")
    e(f"s_add_u32 s{sT}, s{sT}, s28")
    load_bias_init(e, g, sT + 2, f"s{sT}", tmpv)
    e(f"s_waitcnt vmcnt(0)")
    finish_bias_init(e, g, tmpv)
    g.main(e, 'n', 'm')
    e(f"s_lshl_b32 s{sT}, s23, 2")
    e(f"s_lshl_b32 s{sT+1}, s{sWM}, 1")
    e(f"s_add_u32 s{sT}, s{sT}, s{sT+1}")
    e(f"s_mul_i32 s{sT}, s{sT}, 20")
    e(f"s_lshl_b32 s{sT+1}, s25, 1")
    e(f"s_add_u32 s{sT}, s{sT}, s{sT+1}")
    e(f"s_add_u32 s{sT}, s{sT}, s{sWN}")
    e(f"s_lshl_b32 s{sT}, s{sT}, 11")
    e(f"s_add_u32 s{sT}, s{sT}, {G_OFF}")
    e(f"s_add_u32 s{sT+1}, s{sT}, {20*2048}")
    e(f"v_mov_b32 v{tmpv}, 0x{f32bits(-1.4426950408889634):08x}")
    for tm in range(2):
        a = g.accr(tm, 0)
        for half in range(2):
            t = tmpv + 4 + 8 * half
            pk = tmpv + 20 + 4 * half
            r0 = a + half * 8
            for i in range(8):
                e(f"v_mul_f32 v{t+i}, v{r0+i}, v{tmpv}")
            for i in range(8):
                e(f"v_exp_f32 v{t+i}, v{t+i}")
            for i in range(8):
                e(f"v_add_f32 v{t+i}, 1.0, v{t+i}")
            for i in range(8):
                e(f"v_rcp_f32 v{t+i}, v{t+i}")
            for i in range(8):
                e(f"v_mul_f32 v{t+i}, v{t+i}, v{r0+i}")
            for i in range(4):
                e(f"v_cvt_pk_bf16_f32 v{pk+i}, v{t+2*i}, v{t+2*i+1}")
            e(f"buffer_store_dwordx4 v[{pk}:{pk+3}], v{g.vDA}, s[36:39], s{sT+tm} offen offset:{half*1024}")
    e("k2_end:")
    stamp(e, 4)
    e("s_waitcnt vmcnt(0)")
    stamp(e, 5)
    stamp_rt(e, 11)
    stamp_store(e, 2, "s24", 36)
    e("k2_done:")
    e("s_endpgm")
    nv = max(T + 8, tmpv + 28)
    assert nv <= 128, nv
    return kd("attn_kernel", nv, 96), max(CA + 640 + 32, g.lds_bytes)


K3_NBUF = 11


def gen_k3(e):
    kernel_head(e, "out_kernel")
    g = Gemm("k3", NWM=2, NWN=2, TM=2, TN=1, KGS=2, NBUF=K3_NBUF, KG=40, korder='d', NL=2, vbase=8, sbase=48)
    e("""
    s_cmp_ge_u32 s2, 160
    s_cbranch_scc1 k3_done
    s_load_dwordx2 s[4:5], s[0:1], 80
    s_load_dwordx2 s[6:7], s[0:1], 16
    s_load_dwordx2 s[8:9], s[0:1], 0
    s_load_dwordx2 s[10:11], s[0:1], 64
    v_lshrrev_b32 v1, 6, v0
    v_and_b32 v0, 63, v0
    s_and_b32 s20, s2, 7
    v_readfirstlane_b32 s24, v1
    s_lshr_b32 s21, s2, 3
    s_cmp_ge_u32 s21, 10
    s_cselect_b32 s22, 1, 0
    s_cselect_b32 s23, 10, 0
    s_sub_u32 s25, s21, s23
    s_lshl_b32 s23, s20, 1
    s_add_u32 s23, s23, s22
    s_lshl_b32 s28, s25, 7
    s_mov_b32 s29, 1280
    s_waitcnt lgkmcnt(0)
    """)
    srd(e, 36, "s4", "s5", WS_BYTES)
    stamp_rt(e, 10)
    stamp(e, 0)
    e("s_cmp_lt_u32 s24, 4")
    e("s_cbranch_scc1 k3_c")
    e("""
    s_add_u32 s16, s6, s28
    s_addc_u32 s17, s7, 0
    s_and_b32 s17, s17, 0xffff
    """)
    e(f"s_sub_u32 s18, {640*1280}, s28")
    e("s_mov_b32 s19, 0x00020000")
    e(f"s_add_u32 s12, s4, {O_OFF}")
    e("s_addc_u32 s13, s5, 0")
    e("s_and_b32 s13, s13, 0xffff")
    e(f"s_mov_b32 s14, {FR}")
    e("s_mov_b32 s15, 0x00020000")
    e("s_lshl_b32 s34, s23, 12")
    g.loader_setup(e, "s29", "s34")
    t = g.vt
    e(f"v_lshrrev_b32 v{t+2}, 2, v{t}")
    e(f"v_mul_u32_u24 v{t+2}, 40, v{t+2}")
    e(f"v_and_b32 v{t+3}, 3, v{t}")
    e(f"v_add_u32 v{t+2}, v{t+2}, v{t+3}")
    e(f"v_mul_u32_u24 v{t+2}, 1280, v{t+2}")
    e(f"v_add_u32 v{g.vDB2}, v{t+2}, v{t+1}")
    e("s_cmp_eq_u32 s24, 5")
    e("s_cbranch_scc1 k3_ld1")
    D = 6
    for kgl in range(2):
        if kgl == 1:
            e("k3_ld1:")

        def issue(st_):
            buf = (st_ % g.NBUF) * g.SB
            kg = st_ * 2 + kgl
            e(f"s_mov_b32 m0, {buf + kgl*4096}")
            e(f"s_add_u32 s{g.st}, s34, {kg*65536}")
            for i in range(4):
                off = f" offset:{i*1024}" if i else ""
                e(f"buffer_load_dwordx4 v{g.vDA}, s[12:15], s{g.st} offen{off} lds")
            for tt in range(2):
                e(f"s_mov_b32 m0, {buf + g.ASB + (kgl*2+tt)*1024}")
                if kg < 32:
                    e(f"s_mov_b32 s{g.st}, {(20*kg + 8*tt)*1280}")
                    e(f"buffer_load_dwordx4 v{g.vDB}, s[16:19], s{g.st} offen lds")
                else:
                    G = kg - 32
                    e(f"s_mov_b32 s{g.st}, {((4*G + tt)*20 + 16)*1280}")
                    e(f"buffer_load_dwordx4 v{g.vDB2}, s[16:19], s{g.st} offen lds")
        npre = 4
        for s_ in range(npre):
            issue(s_)
        e(f"s_waitcnt vmcnt({(npre-1)*D})")
        e("s_barrier")
        for s_ in range(npre, g.NBUF - 1):
            issue(s_)
        for s_ in range(g.NST):
            outst = max(0, min(s_ + g.NBUF - 2, g.NST - 1) - (s_ + 1) + 1)
            e(f"s_waitcnt vmcnt({max(0, outst-1)*D})")
            e("s_barrier")
            if s_ + g.NBUF - 1 < g.NST:
                issue(s_ + g.NBUF - 1)
        e("s_branch k3_end")
    e("k3_c:")
    srd(e, 12, "s8", "s9", 2048 * 1280)
    srd(e, 32, "s10", "s11", 2048 * 1280)
    g.setup(e, "s24")
    sWM, sWN = g.send, g.send + 1
    e(f"s_lshr_b32 s{sWM}, s24, 1")
    e(f"s_and_b32 s{sWN}, s24, 1")
    sT = g.send + 2
    GV = g.vend
    XV = GV + 16
    vX = XV + 16
    T = vX + 4
    e(f"s_lshl_b32 s{sT}, s23, 2")
    e(f"s_lshl_b32 s{sT+1}, s{sWM}, 1")
    e(f"s_add_u32 s{sT}, s{sT}, s{sT+1}")
    e(f"s_mul_i32 s{sT+1}, s{sT}, 20")
    e(f"s_lshl_b32 s{sT+2}, s25, 1")
    e(f"s_add_u32 s{sT+1}, s{sT+1}, s{sT+2}")
    e(f"s_add_u32 s{sT+1}, s{sT+1}, s{sWN}")
    e(f"s_lshl_b32 s{sT+1}, s{sT+1}, 11")
    e(f"s_add_u32 s{sT+1}, s{sT+1}, {G_OFF}")
    e(f"s_add_u32 s{sT+2}, s{sT+1}, {20*2048}")
    e(f"v_and_b32 v{T}, 31, v0")
    e(f"v_mul_u32_u24 v{vX}, 1280, v{T}")
    e(f"v_lshrrev_b32 v{T+1}, 5, v0")
    e(f"v_lshl_add_u32 v{vX}, v{T+1}, 4, v{vX}")
    e(f"s_mul_i32 s{sT+3}, s{sT}, {32*1280}")
    e(f"s_add_u32 s{sT+3}, s{sT+3}, s28")
    e(f"s_lshl_b32 s{sT+4}, s{sWN}, 6")
    e(f"s_add_u32 s{sT+3}, s{sT+3}, s{sT+4}")
    e(f"s_add_u32 s{sT+4}, s{sT+3}, {32*1280}")
    for i in range(32):
        e(f"v_mov_b32 v{g.acc+i}, 0")

    def late_loads():
        for tm in range(2):
            for half in range(2):
                r = GV + tm * 8 + half * 4
                e(f"buffer_load_dwordx4 v[{r}:{r+3}], v{g.vDA}, s[36:39], s{sT+1+tm} offen offset:{half*1024}")
        for tm in range(2):
            for pp in range(2):
                r = XV + (tm * 2 + pp) * 4
                e(f"buffer_load_dwordx4 v[{r}:{r+3}], v{vX}, s[12:15], s{sT+3+tm} offen offset:{pp*32}")
    g.main(e, 'n', 'm', late_loads)
    e("s_waitcnt vmcnt(0)")
    for tm in range(2):
        for pp in range(2):
            r = XV + (tm * 2 + pp) * 4
            e(f"v_permlane32_swap_b32 v{r}, v{r+2}")
            e(f"v_permlane32_swap_b32 v{r+1}, v{r+3}")
    for tm in range(2):
        for pp in range(2):
            ob = T + ((tm * 2 + pp) & 1) * 4
            for q in range(2):
                gg = pp * 2 + q
                a = g.accr(tm, 0) + 4 * gg
                gr = GV + tm * 8 + gg * 2
                xr = XV + (tm * 2 + pp) * 4 + q * 2
                t = T + 8
                e(f"v_cvt_pk_bf16_f32 v{t}, v{a}, v{a+1}")
                e(f"v_cvt_pk_bf16_f32 v{t+1}, v{a+2}, v{a+3}")
                for i in range(2):
                    e(f"v_lshlrev_b32 v{t+2+2*i}, 16, v{t+i}")
                    e(f"v_and_b32 v{t+3+2*i}, 0xffff0000, v{t+i}")
                    e(f"v_lshlrev_b32 v{t+6+2*i}, 16, v{gr+i}")
                    e(f"v_and_b32 v{t+7+2*i}, 0xffff0000, v{gr+i}")
                for i in range(4):
                    e(f"v_mul_f32 v{t+2+i}, v{t+2+i}, v{t+6+i}")
                e(f"v_cvt_pk_bf16_f32 v{t}, v{t+2}, v{t+3}")
                e(f"v_cvt_pk_bf16_f32 v{t+1}, v{t+4}, v{t+5}")
                for i in range(2):
                    e(f"v_lshlrev_b32 v{t+2+2*i}, 16, v{t+i}")
                    e(f"v_and_b32 v{t+3+2*i}, 0xffff0000, v{t+i}")
                    e(f"v_lshlrev_b32 v{t+6+2*i}, 16, v{xr+i}")
                    e(f"v_and_b32 v{t+7+2*i}, 0xffff0000, v{xr+i}")
                for i in range(4):
                    e(f"v_add_f32 v{t+2+i}, v{t+2+i}, v{t+6+i}")
                e(f"v_cvt_pk_bf16_f32 v{ob+2*q}, v{t+2}, v{t+3}")
                e(f"v_cvt_pk_bf16_f32 v{ob+2*q+1}, v{t+4}, v{t+5}")
            e("s_nop 1")
            e(f"v_permlane32_swap_b32 v{ob}, v{ob+2}")
            e(f"v_permlane32_swap_b32 v{ob+1}, v{ob+3}")
            e(f"buffer_store_dwordx4 v[{ob}:{ob+3}], v{vX}, s[32:35], s{sT+3+tm} offen offset:{pp*32}")
    e("k3_end:")
    stamp(e, 4)
    e("s_waitcnt vmcnt(0)")
    stamp(e, 5)
    stamp_rt(e, 11)
    stamp_store(e, 3, "s24", 36)
    e("k3_done:")
    e("s_endpgm")
    return kd("out_kernel", T + 20, 96), g.lds_bytes


def main():
    e = Em()
    kds = []
    kds.append(gen_ln(e))
    k1kd, k1lds = gen_k1(e)
    kds.append(k1kd)
    k2kd, k2lds = gen_k2(e)
    kds.append(k2kd)
    k3kd, k3lds = gen_k3(e)
    kds.append(k3kd)
    launches = [
        f"; @launch kernel=ln_kernel grid=(768,1,1) block=(256,1,1) lds=0",
        f"; @launch kernel=gemm1_kernel grid=(256,1,1) block=(640,1,1) lds={k1lds}",
        f"; @launch kernel=attn_kernel grid=(416,1,1) block=(512,1,1) lds={k2lds}",
        f"; @launch kernel=out_kernel grid=(160,1,1) block=(384,1,1) lds={k3lds}",
    ]
    head = "\n".join(launches) + "\n" + '.amdgcn_target "amdgcn-amd-amdhsa--gfx950"\n.text\n'
    tail = '.section .rodata,"a"\n.p2align 6\n' + ".p2align 6\n".join(kds)
    out = head + e.text() + tail
    path = sys.argv[1] if len(sys.argv) > 1 else f"cdna_kernels/{NAME}.s"
    open(path, "w").write(out)
    print("wrote", path, len(out))


if __name__ == "__main__":
    main()
```

```python
import sys, math, struct
from layout import *

NAME = "recurrent_scan__softmax_full_mha__mixer_channel_mlp__prompt"
WS_BYTES = 268435456


def f32bits(x):
    return struct.unpack("<I", struct.pack("<f", x))[0]


class Em:
    def __init__(self):
        self.l = []

    def __call__(self, s):
        for line in s.split("\n"):
            line = line.strip()
            if not line:
                continue
            if line.endswith(":") or line.startswith("."):
                self.l.append(line)
            else:
                self.l.append("    " + line)

    def text(self):
        return "\n".join(self.l) + "\n"


def srd(e, s, lo, hi, nbytes):
    e(f"s_mov_b32 s{s}, {lo}")
    e(f"s_and_b32 s{s+1}, {hi}, 0xffff")
    e(f"s_mov_b32 s{s+2}, {nbytes}")
    e(f"s_mov_b32 s{s+3}, 0x00020000")


def csel(e, dst, a, b):
    e(f"s_mov_b32 {dst}, {b}")
    e(f"s_cselect_b32 {dst}, {a}, {dst}")


import os
STAMP = int(os.environ.get("STAMP", "0"))
STAMP_OFF = 64 << 20


def stamp(e, i):
    if STAMP != 1:
        return
    e(f"s_memtime s[86:87]")
    e("s_waitcnt lgkmcnt(0)")
    e(f"s_mov_b32 s{70+i}, s86")


def stamp_rt(e, i):
    if not STAMP:
        return
    e(f"s_memrealtime s[86:87]")
    e("s_waitcnt lgkmcnt(0)")
    e(f"s_mov_b32 s{70+i}, s86")


def stamp_store(e, kidx, sWave, srdws, n=12):
    if not STAMP:
        return
    if STAMP == 2:
        e("s_load_dwordx2 s[88:89], s[0:1], 72")
        e("s_waitcnt lgkmcnt(0)")
        e(f"s_sub_u32 s88, s88, {512*kidx}")
        e("s_subb_u32 s89, s89, 0")
        e("s_and_b32 s89, s89, 0xffff")
        e("s_mov_b32 s90, 256")
        e("s_mov_b32 s91, 0x00020000")
        e("v_mov_b32 v1, 0")
        e("s_not_b32 s80, s80")
        e("v_mov_b32 v2, s80")
        e("v_mov_b32 v3, s81")
        e("s_mov_b64 exec, 1")
        e(f"buffer_atomic_umax v2, v1, s[88:91], 0 offen offset:{8*kidx}")
        e(f"buffer_atomic_umax v3, v1, s[88:91], 0 offen offset:{8*kidx+4}")
        e("s_waitcnt vmcnt(0)")
        return
    e("s_getreg_b32 s78, hwreg(HW_REG_XCC_ID)")
    e("s_getreg_b32 s79, hwreg(HW_REG_HW_ID)")
    e(f"s_lshl_b32 s86, s2, 4")
    e(f"s_add_u32 s86, s86, {sWave}")
    e(f"s_lshl_b32 s86, s86, 6")
    e(f"s_add_u32 s86, s86, {STAMP_OFF + kidx * 0x100000}")
    e("v_mov_b32 v1, 0")
    for i in range(n):
        e(f"v_mov_b32 v2, s{70+i}")
        e(f"buffer_store_dword v2, v1, s[{srdws}:{srdws+3}], s86 offen offset:{4*i}")


def kernel_head(e, name):
    e(f".p2align 8")
    e(f".globl {name}")
    e(f".type {name},@function")
    e(f"{name}:")


def kd(name, vgpr, sgpr=96):
    acc = (vgpr + 3) // 4 * 4
    return f""".amdhsa_kernel {name}
  .amdhsa_next_free_vgpr {vgpr}
  .amdhsa_next_free_sgpr {sgpr}
  .amdhsa_accum_offset {acc}
  .amdhsa_group_segment_fixed_size 0
  .amdhsa_kernarg_size 88
  .amdhsa_user_sgpr_count 2
  .amdhsa_user_sgpr_kernarg_segment_ptr 1
  .amdhsa_system_sgpr_workgroup_id_x 1
.end_amdhsa_kernel
"""


def wave_sum(e, v, sdst):
    for sh in (1, 2, 4, 8):
        e("s_nop 1")
        e(f"v_add_f32_dpp v{v}, v{v}, v{v} row_shr:{sh} row_mask:0xf bank_mask:0xf bound_ctrl:0")
    e("s_nop 1")
    e(f"v_add_f32_dpp v{v}, v{v}, v{v} row_bcast:15 row_mask:0xa bank_mask:0xf")
    e("s_nop 1")
    e(f"v_add_f32_dpp v{v}, v{v}, v{v} row_bcast:31 row_mask:0xc bank_mask:0xf")
    e("s_nop 1")
    e(f"v_readlane_b32 s{sdst}, v{v}, 63")
    e("s_nop 1")


def bf16r(e, v, t):
    e(f"v_cvt_pk_bf16_f32 v{t}, v{v}, v{v}")
    e(f"v_lshlrev_b32 v{v}, 16, v{t}")


def gen_ln(e):
    kernel_head(e, "ln_kernel")
    e("""
    s_cmp_ge_u32 s2, 768
    s_cbranch_scc1 ln_done
    s_cmp_ge_u32 s2, 256
    s_cbranch_scc1 ln_main
    """)
    e("""
    s_load_dwordx2 s[4:5], s[0:1], 8
    s_load_dwordx2 s[6:7], s[0:1], 32
    s_load_dwordx2 s[8:9], s[0:1], 48
    s_load_dwordx2 s[10:11], s[0:1], 16
    v_lshrrev_b32 v1, 6, v0
    v_and_b32 v0, 63, v0
    v_lshlrev_b32 v2, 4, v0
    v_readfirstlane_b32 s20, v1
    s_and_b32 s21, s2, 7
    s_lshr_b32 s22, s2, 3
    s_lshr_b32 s23, s21, 2
    s_and_b32 s24, s21, 1
    s_waitcnt lgkmcnt(0)
    s_cmp_eq_u32 s23, 0
    s_cselect_b32 s12, s4, s6
    s_cselect_b32 s13, s5, s7
    """)
    csel(e, "s25", 3840, 3456)
    csel(e, "s14", 640*3840, 640*3456)
    csel(e, "s26", 2048, 1792)
    e("s_and_b32 s13, s13, 0xffff")
    e("s_mov_b32 s15, 0x00020000")
    e("s_mul_i32 s27, s22, 20")
    e("s_mul_i32 s28, s20, 5")
    e("s_add_u32 s27, s27, s28")
    e("s_mul_i32 s27, s27, s25")
    e("s_mul_i32 s28, s24, s26")
    e("s_add_u32 s27, s27, s28")
    for r in range(5):
        e(f"buffer_load_dwordx4 v[{4+8*r}:{7+8*r}], v2, s[12:15], s27 offen")
        e(f"buffer_load_dwordx4 v[{8+8*r}:{11+8*r}], v2, s[12:15], s27 offen offset:1024")
        e("s_add_u32 s27, s27, s25")
    srd(e, 16, "s8", "s9", 1728 * 1280)
    srd(e, 28, "s10", "s11", 640 * 1280)
    e("s_lshl_b32 s27, s2, 2")
    e("s_add_u32 s27, s27, s20")
    e("s_lshl_b32 s27, s27, 10")
    e("buffer_load_dwordx4 v[44:47], v2, s[28:31], s27 offen")
    e("buffer_load_dwordx4 v[4:7], v2, s[16:19], s27 offen")
    e("s_add_u32 s27, s27, 0x100000")
    e("buffer_load_dwordx4 v[8:11], v2, s[16:19], s27 offen")
    e("s_add_u32 s27, s27, 0x100000")
    e("buffer_load_dwordx4 v[12:15], v2, s[16:19], s27 offen")
    e("s_waitcnt vmcnt(0)")
    e("s_endpgm")
    e("""
    ln_main:
    s_sub_u32 s2, s2, 256
    s_load_dwordx2 s[4:5], s[0:1], 0
    s_load_dwordx2 s[6:7], s[0:1], 80
    v_lshrrev_b32 v1, 6, v0
    v_and_b32 v0, 63, v0
    v_lshlrev_b32 v2, 4, v0
    v_readfirstlane_b32 s20, v1
    v_lshlrev_b32 v3, 2, v0
    s_lshl_b32 s21, s2, 2
    s_nop 1
    s_add_u32 s21, s21, s20
    s_mul_i32 s22, s21, 1280
    s_waitcnt lgkmcnt(0)
    """)
    srd(e, 8, "s4", "s5", 2048 * 1280)
    srd(e, 12, "s6", "s7", WS_BYTES)
    stamp_rt(e, 10)
    stamp(e, 0)
    e("""
    buffer_load_dwordx4 v[4:7], v2, s[8:11], s22 offen
    buffer_load_dword v8, v3, s[8:11], s22 offen offset:1024
    s_lshr_b32 s23, s21, 5
    s_and_b32 s24, s21, 31
    s_lshl_b32 s23, s23, 10
    s_lshl_b32 s24, s24, 4
    s_add_u32 s23, s23, s24
    """)
    e(f"s_add_u32 s25, s23, {Y_OFF}")
    e(f"s_add_u32 s23, s23, {XN_OFF}")
    e("""
    v_lshrrev_b32 v40, 1, v0
    v_lshlrev_b32 v40, 16, v40
    v_and_b32 v42, 1, v0
    v_lshlrev_b32 v42, 9, v42
    v_add_u32 v40, v40, v42
    v_lshrrev_b32 v41, 3, v0
    v_add_u32 v41, 32, v41
    v_lshlrev_b32 v41, 16, v41
    v_bfe_u32 v42, v0, 2, 1
    v_lshlrev_b32 v42, 9, v42
    v_add_u32 v41, v41, v42
    v_and_b32 v42, 3, v0
    v_lshlrev_b32 v42, 2, v42
    v_add_u32 v41, v41, v42
    """)
    e(f"v_mov_b32 v38, 0x{f32bits(1.0/640.0):08x}")
    e(f"v_mov_b32 v39, 0x{f32bits(1e-5):08x}")
    e("s_waitcnt vmcnt(0)")
    F = list(range(10, 20))
    E_ = list(range(20, 30))
    P = [4, 5, 6, 7, 8]

    def unpack():
        for i in range(5):
            e(f"v_lshlrev_b32 v{F[2*i]}, 16, v{P[i]}")
            e(f"v_and_b32 v{F[2*i+1]}, 0xffff0000, v{P[i]}")

    def ln(soff):
        e(f"v_add_f32 v30, v{F[0]}, v{F[1]}")
        e(f"v_add_f32 v31, v{F[2]}, v{F[3]}")
        e(f"v_add_f32 v32, v{F[4]}, v{F[5]}")
        e(f"v_add_f32 v33, v{F[6]}, v{F[7]}")
        e(f"v_add_f32 v34, v{F[8]}, v{F[9]}")
        e("v_add_f32 v30, v30, v31")
        e("v_add_f32 v32, v32, v33")
        e("v_add_f32 v30, v30, v34")
        e("v_add_f32 v30, v30, v32")
        wave_sum(e, 30, 26)
        e("v_mul_f32 v31, s26, v38")
        for i in range(10):
            e(f"v_sub_f32 v{E_[i]}, v{F[i]}, v31")
        e(f"v_mul_f32 v30, v{E_[0]}, v{E_[0]}")
        e(f"v_mul_f32 v32, v{E_[1]}, v{E_[1]}")
        for i in range(2, 10, 2):
            e(f"v_fmac_f32 v30, v{E_[i]}, v{E_[i]}")
            e(f"v_fmac_f32 v32, v{E_[i+1]}, v{E_[i+1]}")
        e("v_add_f32 v30, v30, v32")
        wave_sum(e, 30, 26)
        e("v_mul_f32 v32, s26, v38")
        bf16r(e, 31, 33)
        bf16r(e, 32, 33)
        e("v_add_f32 v32, v32, v39")
        bf16r(e, 32, 33)
        e("v_sqrt_f32 v32, v32")
        e("s_nop 0")
        bf16r(e, 32, 33)
        e("v_rcp_f32 v32, v32")
        for i in range(10):
            e(f"v_sub_f32 v{E_[i]}, v{F[i]}, v31")
        for i in range(5):
            e(f"v_cvt_pk_bf16_f32 v{P[i]}, v{E_[2*i]}, v{E_[2*i+1]}")
        unpack()
        for i in range(10):
            e(f"v_mul_f32 v{F[i]}, v{F[i]}, v32")
        for i in range(5):
            e(f"v_cvt_pk_bf16_f32 v{P[i]}, v{F[2*i]}, v{F[2*i+1]}")
        e(f"buffer_store_dwordx4 v[4:7], v40, s[12:15], {soff} offen")
        e(f"buffer_store_dword v8, v41, s[12:15], {soff} offen")

    unpack()
    ln("s23")
    unpack()
    e("s_nop 1")
    ln("s25")
    if STAMP:
        for i in range(1, 5):
            stamp(e, i)
        e("s_waitcnt vmcnt(0)")
        stamp(e, 5)
        stamp_rt(e, 11)
        stamp_store(e, 0, "s20", 12)
    e("ln_done:")
    e("s_endpgm")
    return kd("ln_kernel", 48, 96)


class Gemm:
    def __init__(self, pfx, NWM, NWN, TM, TN, KGS, NBUF, KG, korder, NL, vbase, sbase, lds_base=0):
        self.pfx = pfx
        self.NWM, self.NWN, self.TM, self.TN = NWM, NWN, TM, TN
        self.KGS, self.NBUF, self.KG, self.korder, self.NL = KGS, NBUF, KG, korder, NL
        self.NW = NWM * NWN
        self.BM = NWM * TM * 32
        self.BN = NWN * TN * 32
        self.NT = self.BM // 32
        self.pitch = self.BN * 2
        self.ASB = self.NT * KGS * 1024
        self.BSB = KGS * 16 * self.pitch
        self.SB = self.ASB + self.BSB
        self.lds_base = lds_base
        self.lds_bytes = self.SB * NBUF
        assert KG % KGS == 0
        self.NST = KG // KGS
        self.rpi = 1024 // self.pitch
        ops = []
        for kg in range(KGS):
            for tg in range(0, self.NT, 4):
                for i in range(min(4, self.NT - tg)):
                    ops.append(('A', kg * self.NT * 1024 + tg * 1024, kg * 65536 + tg * 1024, i * 1024))
        for i in range(self.BSB // 1024):
            ops.append(('B', self.ASB + i * 1024, i, 0))
        assert len(ops) % NL == 0, (len(ops), NL)
        self.D = len(ops) // NL
        self.lops = [ops[k * self.D:(k + 1) * self.D] for k in range(NL)]
        assert (NBUF - 1) * self.D <= 63
        v = vbase
        self.acc = v; v += TM * TN * 16
        self.fr = []
        for p in range(2):
            a = [v + 4 * j for j in range(TM)]; v += 4 * TM
            b = [v + 4 * j for j in range(TN)]; v += 4 * TN
            self.fr.append((a, b))
        self.vA0 = v; v += 1
        self.vB0 = [v + j for j in range(TN)]; v += TN
        self.vA = v; v += 1
        self.vB = [v + j for j in range(TN)]; v += TN
        self.vDA = v; v += 1
        self.vDB = v; v += 1
        self.vDB2 = v; v += 1
        self.vt = v; v += 4
        self.vend = (v + 3) // 4 * 4
        s = sbase
        self.sRd = s; s += 1
        self.sWr = s; s += 1
        self.sAo = s; s += 1
        self.sBo = s; s += 1
        self.sBinc = s; s += 1
        self.sBstep = s; s += 1
        self.sCnt = s; s += 1
        self.sIss = s; s += 1
        self.st = s; s += 4
        self.send = s

    def accr(self, tm, tn):
        return self.acc + (tm * self.TN + tn) * 16

    def loader_setup(self, e, sLdw, sA0):
        t = self.vt
        ppr = self.pitch // 16
        lgp = int(math.log2(ppr))
        e(f"v_lshlrev_b32 v{self.vDA}, 4, v0")
        e(f"v_lshrrev_b32 v{t}, {lgp}, v0")
        e(f"v_and_b32 v{t+1}, {ppr-1}, v0")
        e(f"v_lshrrev_b32 v{t+2}, 2, v{t+1}")
        if self.pitch == 256:
            e(f"v_and_b32 v{t+3}, 3, v{t}")
        else:
            e(f"v_bfe_u32 v{t+3}, v{t}, 1, 1")
        e(f"v_xor_b32 v{t+2}, v{t+2}, v{t+3}")
        e(f"v_and_b32 v{t+1}, 3, v{t+1}")
        e(f"v_lshlrev_b32 v{t+1}, 4, v{t+1}")
        e(f"v_lshl_add_u32 v{t+1}, v{t+2}, 6, v{t+1}")
        e(f"v_mul_lo_u32 v{t+2}, v{t}, {sLdw}")
        e(f"v_add_u32 v{self.vDB}, v{t+2}, v{t+1}")
        e(f"s_mul_i32 s{self.sBinc}, {sLdw}, {16*self.KGS}")
        e(f"s_mul_i32 s{self.sBstep}, {sLdw}, {self.rpi}")
        e(f"s_mov_b32 s{self.sAo}, {sA0}")
        e(f"s_mov_b32 s{self.sBo}, 0")
        e(f"s_mov_b32 s{self.sIss}, 0")
        e(f"s_mov_b32 s{self.sWr}, {self.lds_base}")

    def issue(self, e, k, SA, SBd):
        st = self.st
        rep = int(os.environ.get('REP', '1'))
        e(f"s_cmp_lt_u32 s{self.sIss}, {self.NST}")
        e(f"s_cselect_b32 s{st+1}, s{self.sAo}, 0x7ff00000")
        e(f"s_cselect_b32 s{st+2}, s{self.sBo}, 0x7ff00000")
        cur = None
        lastb = 0
        for kind, lo, gd, io in self.lops[k]:
            if kind == 'A':
                if cur != ('A', lo):
                    e(f"s_add_u32 m0, s{self.sWr}, {lo}")
                    e(f"s_add_u32 s{st}, s{st+1}, {gd}")
                    cur = ('A', lo)
                off = f" offset:{io}" if io else ""
                e(f"buffer_load_dwordx4 v{self.vDA}, s[{SA}:{SA+3}], s{st} offen{off} lds")
            else:
                e(f"s_add_u32 m0, s{self.sWr}, {lo}")
                if gd != lastb:
                    if gd - lastb == 1:
                        e(f"s_add_u32 s{st+2}, s{st+2}, s{self.sBstep}")
                    else:
                        e(f"s_mul_i32 s{st+3}, s{self.sBstep}, {gd-lastb}")
                        e(f"s_add_u32 s{st+2}, s{st+2}, s{st+3}")
                    lastb = gd
                else:
                    e("s_nop 0")
                e(f"buffer_load_dwordx4 v{self.vDB}, s[{SBd}:{SBd+3}], s{st+2} offen lds")
                cur = None
        e(f"s_add_u32 s{self.sAo}, s{self.sAo}, {self.KGS*65536}")
        e(f"s_add_u32 s{self.sBo}, s{self.sBo}, s{self.sBinc}")
        e(f"s_add_u32 s{self.sIss}, s{self.sIss}, 1")
        e(f"s_add_u32 s{self.sWr}, s{self.sWr}, {self.SB}")
        e(f"s_cmp_eq_u32 s{self.sWr}, {self.lds_base + self.SB*self.NBUF}")
        e(f"s_cselect_b32 s{self.sWr}, {self.lds_base}, s{self.sWr}")

    def loader(self, e, k, SA, SBd, endlabel):
        L = f"{self.pfx}_ld{k}_loop"
        self.issue(e, k, SA, SBd)
        self.issue(e, k, SA, SBd)
        e(f"s_waitcnt vmcnt({self.D})")
        e("s_barrier")
        for s_ in range(2, self.NBUF - 1):
            self.issue(e, k, SA, SBd)
        e(f"s_mov_b32 s{self.sCnt}, {self.NST}")
        e(f"{L}:")
        e(f"s_waitcnt vmcnt({(self.NBUF-3)*self.D})")
        e("s_barrier")
        if not os.environ.get("NODMA"):
            self.issue(e, k, SA, SBd)
        e(f"s_sub_u32 s{self.sCnt}, s{self.sCnt}, 1")
        e(f"s_cmp_lg_u32 s{self.sCnt}, 0")
        e(f"s_cbranch_scc1 {L}")
        e(f"s_branch {endlabel}")

    def setup(self, e, sWave):
        t = self.vt
        TM, TN, KGS = self.TM, self.TN, self.KGS
        st = self.st
        lg = int(math.log2(self.NWN))
        e(f"s_lshr_b32 s{st}, {sWave}, {lg}")
        e(f"s_and_b32 s{st+1}, {sWave}, {self.NWN-1}")
        e(f"v_lshlrev_b32 v{self.vDA}, 4, v0")
        e(f"s_mul_i32 s{st}, s{st}, {TM*1024}")
        e(f"s_add_u32 s{st}, s{st}, {self.lds_base}")
        e(f"v_add_u32 v{self.vA0}, s{st}, v{self.vDA}")
        e(f"v_bfe_u32 v{t}, v0, 2, 2")
        e(f"v_lshrrev_b32 v{t+1}, 5, v0")
        hmul = 8 if self.korder == 'nat' else 4
        e(f"v_mad_u32_u24 v{t+1}, v{t+1}, {hmul}, v{t}")
        e(f"v_mul_u32_u24 v{t+1}, {self.pitch}, v{t+1}")
        e(f"v_bfe_u32 v{t+2}, v0, 4, 1")
        e(f"v_lshl_add_u32 v{t+1}, v{t+2}, 5, v{t+1}")
        e(f"v_and_b32 v{t+2}, 3, v0")
        e(f"v_lshl_add_u32 v{t+1}, v{t+2}, 3, v{t+1}")
        e(f"v_add_u32 v{t+1}, {self.lds_base + self.ASB}, v{t+1}")
        if self.pitch == 128:
            e(f"v_lshrrev_b32 v{t}, 1, v{t}")
        for j in range(TN):
            e(f"s_mul_i32 s{st}, s{st+1}, {TN}")
            e(f"s_add_u32 s{st}, s{st}, {j}")
            e(f"v_xor_b32 v{t+2}, s{st}, v{t}")
            e(f"v_lshl_add_u32 v{self.vB0[j]}, v{t+2}, 6, v{t+1}")
        e(f"s_mov_b32 s{self.sRd}, 0")

    def reads(self, e, p, kg):
        a, b = self.fr[p]
        ra = [f"ds_read_b128 v[{a[j]}:{a[j]+3}], v{self.vA} offset:{kg*self.NT*1024 + j*1024}" for j in range(self.TM)]
        tmul = 4 if self.korder == 'nat' else 8
        rb = []
        for j in range(self.TN):
            for t in range(2):
                rb.append(f"ds_read_b64_tr_b16 v[{b[j]+2*t}:{b[j]+2*t+1}], v{self.vB[j]} offset:{(kg*16 + t*tmul)*self.pitch}")
        return ra[:1] + rb + ra[1:]

    def nreads(self):
        return self.TM + 2 * self.TN

    def mfmas(self, p, orient):
        a, b = self.fr[p]
        out = []
        for tm in range(self.TM):
            for tn in range(self.TN):
                d = self.accr(tm, tn)
                if orient == 'n':
                    s0, s1 = b[tn], a[tm]
                else:
                    s0, s1 = a[tm], b[tn]
                out.append(f"v_mfma_f32_32x32x16_bf16 v[{d}:{d+15}], v[{s0}:{s0+3}], v[{s1}:{s1+3}], v[{d}:{d+15}]")
        return out

    def set_bases(self, e):
        e(f"v_add_u32 v{self.vA}, s{self.sRd}, v{self.vA0}")
        for j in range(self.TN):
            e(f"v_add_u32 v{self.vB[j]}, s{self.sRd}, v{self.vB0[j]}")

    def adv_rd(self, e):
        e(f"s_add_u32 s{self.sRd}, s{self.sRd}, {self.SB}")
        e(f"s_cmp_eq_u32 s{self.sRd}, {self.SB*self.NBUF}")
        e(f"s_cselect_b32 s{self.sRd}, 0, s{self.sRd}")

    def main(self, e, orient, tag, after_first=None):
        L = f"{self.pfx}_{tag}_loop"
        self.set_bases(e)
        e(f"s_mov_b32 s{self.sCnt}, {self.NST}")
        stamp(e, 1)
        e("s_barrier")
        stamp(e, 2)
        for r in self.reads(e, 0, 0):
            e(r)
        if after_first:
            after_first()
        e(f"{L}:")
        e("s_barrier")
        nr = self.nreads()
        for kg in range(self.KGS):
            p = kg & 1
            last = kg == self.KGS - 1
            rd = self.reads(e, p ^ 1, 0 if last else kg + 1)
            mf = self.mfmas(p, orient)
            need = []
            for tm in range(self.TM):
                for tn in range(self.TN):
                    nb = 1 + 2 * (tn + 1)
                    na = 1 if tm == 0 else 1 + 2 * self.TN + tm
                    need.append(max(nb, na))
            nm = len(mf)
            gaps = max(1, nm - 2) if nm > 2 else 1
            per = (nr + gaps - 1) // gaps
            issued = 0
            have = 0
            for i in range(nm):
                if need[i] > have:
                    if not os.environ.get("NOLDS"):
                        e(f"s_waitcnt lgkmcnt({nr - need[i] + issued})")
                    have = need[i]
                if not os.environ.get("NOMFMA"):
                    e(mf[i])
                if i == 0 and last:
                    self.adv_rd(e)
                    self.set_bases(e)
                for r in rd[issued:issued + per]:
                    if not os.environ.get("NOLDS"):
                        e(r)
                issued = min(nr, issued + per)
            assert issued == nr
        e(f"s_sub_u32 s{self.sCnt}, s{self.sCnt}, 1")
        e(f"s_cmp_lg_u32 s{self.sCnt}, 0")
        e(f"s_cbranch_scc1 {L}")
        e("s_waitcnt lgkmcnt(0)")
        e("s_nop 15")
        stamp(e, 3)


def load_bias_init(e, g, srdB, sN0, tmp):
    e(f"v_lshrrev_b32 v{g.vt}, 5, v0")
    e(f"v_lshlrev_b32 v{g.vt}, 3, v{g.vt}")
    for tn in range(g.TN):
        for gg in range(4):
            r = tmp + (tn * 4 + gg) * 2
            e(f"buffer_load_dwordx2 v[{r}:{r+1}], v{g.vt}, s[{srdB}:{srdB+3}], {sN0} offen offset:{(tn*32+gg*8)*2}")


def finish_bias_init(e, g, tmp):
    for tn in range(g.TN):
        for gg in range(4):
            r = tmp + (tn * 4 + gg) * 2
            for tm in range(g.TM):
                d = g.accr(tm, tn) + gg * 4
                e(f"v_lshlrev_b32 v{d}, 16, v{r}")
                e(f"v_and_b32 v{d+1}, 0xffff0000, v{r}")
                e(f"v_lshlrev_b32 v{d+2}, 16, v{r+1}")
                e(f"v_and_b32 v{d+3}, 0xffff0000, v{r+1}")


K1_KGS = 2
K1_NBUF = 6


def gen_k1(e):
    g = Gemm("k1", NWM=4, NWN=2, TM=2, TN=2, KGS=K1_KGS, NBUF=K1_NBUF, KG=40, korder='nat', NL=2, vbase=8, sbase=40)
    kernel_head(e, "gemm1_kernel")
    e("""
    s_cmp_ge_u32 s2, 256
    s_cbranch_scc1 k1_done
    s_load_dwordx2 s[4:5], s[0:1], 80
    s_load_dwordx2 s[6:7], s[0:1], 8
    s_load_dwordx2 s[8:9], s[0:1], 32
    s_load_dwordx2 s[10:11], s[0:1], 40
    v_lshrrev_b32 v1, 6, v0
    v_and_b32 v0, 63, v0
    s_and_b32 s20, s2, 7
    v_readfirstlane_b32 s24, v1
    s_lshr_b32 s21, s2, 3
    s_and_b32 s22, s21, 3
    s_lshr_b32 s21, s21, 2
    s_lshr_b32 s26, s20, 2
    s_bfe_u32 s23, s20, 0x10001
    s_lshl_b32 s23, s23, 2
    s_add_u32 s23, s23, s22
    s_and_b32 s27, s20, 1
    """)
    e("""
    s_cmp_eq_u32 s26, 0
    s_cselect_b32 s25, 8, 7
    s_mul_i32 s25, s25, s27
    s_add_u32 s25, s25, s21
    s_cmp_eq_u32 s26, 0
    s_cselect_b32 s27, 15, 14
    s_cselect_b32 s28, 8, 7
    s_cmp_ge_u32 s25, s27
    s_cbranch_scc1 k1_done
    s_cmp_ge_u32 s21, s28
    s_cbranch_scc1 k1_done
    s_lshl_b32 s28, s25, 8
    s_waitcnt lgkmcnt(0)
    """)
    srd(e, 36, "s4", "s5", WS_BYTES)
    stamp_rt(e, 10)
    stamp(e, 0)
    e("s_cmp_lt_u32 s24, 8")
    e("s_cbranch_scc1 k1_compute")
    e("""
    s_cmp_eq_u32 s26, 0
    s_cselect_b32 s30, s6, s8
    s_cselect_b32 s31, s7, s9
    """)
    csel(e, "s29", 3840, 3456)
    csel(e, "s32", XN_OFF, Y_OFF)
    csel(e, "s33", 640*3840, 640*3456)
    e("""
    s_add_u32 s16, s30, s28
    s_addc_u32 s17, s31, 0
    s_and_b32 s17, s17, 0xffff
    s_sub_u32 s18, s33, s28
    s_mov_b32 s19, 0x00020000
    s_add_u32 s12, s4, s32
    s_addc_u32 s13, s5, 0
    s_and_b32 s13, s13, 0xffff
    """)
    e(f"s_mov_b32 s14, {FR}")
    e("s_mov_b32 s15, 0x00020000")
    e("s_lshl_b32 s34, s23, 13")
    g.loader_setup(e, "s29", "s34")
    e("s_cmp_eq_u32 s24, 9")
    e("s_cbranch_scc1 k1_ld1")
    g.loader(e, 0, 12, 16, "k1_end")
    e("k1_ld1:")
    g.loader(e, 1, 12, 16, "k1_end")
    e("k1_compute:")
    g.setup(e, "s24")
    sWM, sWN = g.send, g.send + 1
    e(f"s_lshr_b32 s{sWM}, s24, 1")
    e(f"s_and_b32 s{sWN}, s24, 1")
    sT = (g.send + 2 + 3) // 4 * 4 + 2
    tmpv = g.vend
    e("s_cmp_eq_u32 s26, 0")
    e("s_cbranch_scc1 k1_qkv")
    srd(e, sT + 2, "s10", "s11", 1728 * 2)
    assert (sT + 2) % 4 == 0, sT
    e(f"s_lshl_b32 s{sT}, s{sWN}, 7")
    e(f"s_add_u32 s{sT}, s{sT}, s28")
    load_bias_init(e, g, sT + 2, f"s{sT}", tmpv)
    e(f"s_waitcnt vmcnt(0)")
    finish_bias_init(e, g, tmpv)
    g.main(e, 'n', 'mlp')
    e(f"s_lshl_b32 s{sT}, s{sWN}, 6")
    e(f"s_lshr_b32 s{sT+1}, s28, 1")
    e(f"s_add_u32 s{sT}, s{sT}, s{sT+1}")
    e(f"s_cmp_ge_u32 s{sT}, 1728")
    e("s_cbranch_scc1 k1_end")
    e(f"s_lshl_b32 s{sT+1}, s23, 3")
    e(f"s_lshl_b32 s{sT+6}, s{sWM}, 1")
    e(f"s_add_u32 s{sT+1}, s{sT+1}, s{sT+6}")
    e(f"s_lshr_b32 s{sT}, s{sT}, 4")
    e(f"s_lshl_b32 s{sT}, s{sT}, 6")
    e(f"s_add_u32 s{sT}, s{sT}, s{sT+1}")
    e(f"s_lshl_b32 s{sT}, s{sT}, 10")
    e(f"s_add_u32 s{sT}, s{sT}, {H_OFF}")
    for i in range(1, 4):
        e(f"s_add_u32 s{sT+i}, s{sT}, {65536*i}")
    c0 = -2.0 * math.sqrt(2.0 / math.pi) * 1.4426950408889634
    c1 = c0 * 0.044715
    e(f"v_mov_b32 v{tmpv}, 0x{f32bits(c0):08x}")
    e(f"v_mov_b32 v{tmpv+1}, 0x{f32bits(c1):08x}")
    for tm in range(2):
        for tn in range(2):
            a = g.accr(tm, tn)
            for half in range(2):
                t = tmpv + 4 + 8 * ((tm * 4 + tn * 2 + half) & 1)
                pk = tmpv + 20 + 4 * ((tm * 4 + tn * 2 + half) & 1)
                r0 = a + half * 8
                for i in range(8):
                    e(f"v_mul_f32 v{t+i}, v{r0+i}, v{r0+i}")
                for i in range(8):
                    e(f"v_fma_f32 v{t+i}, v{t+i}, v{tmpv+1}, v{tmpv}")
                for i in range(8):
                    e(f"v_mul_f32 v{t+i}, v{t+i}, v{r0+i}")
                for i in range(8):
                    e(f"v_exp_f32 v{t+i}, v{t+i}")
                for i in range(8):
                    e(f"v_add_f32 v{t+i}, 1.0, v{t+i}")
                for i in range(8):
                    e(f"v_rcp_f32 v{t+i}, v{t+i}")
                for i in range(8):
                    e(f"v_mul_f32 v{t+i}, v{t+i}, v{r0+i}")
                for i in range(4):
                    e(f"v_cvt_pk_bf16_f32 v{pk+i}, v{t+2*i}, v{t+2*i+1}")
                so = sT + tn * 2 + half
                e(f"buffer_store_dwordx4 v[{pk}:{pk+3}], v{g.vDA}, s[36:39], s{so} offen offset:{tm*1024}")
    e("s_branch k1_end")
    e("k1_qkv:")
    for i in range(64):
        e(f"v_mov_b32 v{g.acc+i}, 0")
    e("s_cmp_ge_u32 s25, 10")
    e("s_cbranch_scc1 k1_v")
    g.main(e, 'n', 'qk')
    qs = (20 ** -0.5) * 1.4426950408889634
    e("s_cmp_lt_u32 s25, 5")
    e(f"s_cselect_b32 s{sT}, 0x{f32bits(qs):08x}, 1.0")
    csel(e, f"s{sT+1}", 1280, 2560)
    csel(e, f"s{sT+6}", QF_OFF, KV_OFF)
    e(f"s_cselect_b32 s{sT+7}, 0, 5")
    e(f"s_sub_u32 s{sT+7}, s25, s{sT+7}")
    e(f"s_lshl_b32 s{sT+7}, s{sT+7}, 5")
    e(f"s_lshl_b32 s{sT+2}, s{sWN}, 4")
    e(f"s_add_u32 s{sT+7}, s{sT+7}, s{sT+2}")
    e(f"s_lshl_b32 s{sT+2}, s23, 3")
    e(f"s_lshl_b32 s{sT+3}, s{sWM}, 1")
    e(f"s_add_u32 s{sT+2}, s{sT+2}, s{sT+3}")
    e(f"s_mul_i32 s{sT+2}, s{sT+2}, s{sT+1}")
    e(f"s_add_u32 s{sT+2}, s{sT+2}, s{sT+6}")
    e(f"s_add_u32 s{sT+3}, s{sT+2}, s{sT+1}")
    e(f"s_lshl_b32 s{sT+4}, s{sT+1}, 6")
    t = tmpv
    e(f"v_lshrrev_b32 v{t}, 5, v0")
    e(f"v_add_u32 v{t}, s{sT+7}, v{t}")
    e(f"v_and_b32 v{t+1}, 31, v0")
    e(f"v_lshlrev_b32 v{t+2}, 4, v{t+1}")
    e(f"v_lshlrev_b32 v{t+3}, 3, v{t+1}")
    for tn in range(2):
        for gg in range(4):
            c, hd, j, ad = t + 4, t + 5, t + 6, t + 7
            e(f"v_add_u32 v{c}, {8*tn+2*gg}, v{t}")
            e(f"v_mul_u32_u24 v{hd}, 205, v{c}")
            e(f"v_lshrrev_b32 v{hd}, 10, v{hd}")
            e(f"v_mul_u32_u24 v{j}, 5, v{hd}")
            e(f"v_sub_u32 v{j}, v{c}, v{j}")
            e(f"v_cmp_eq_u32 vcc, 4, v{j}")
            e(f"v_mul_lo_u32 v{ad}, v{hd}, s{sT+4}")
            e(f"v_lshrrev_b32 v{c}, 1, v{j}")
            e(f"v_lshl_add_u32 v{ad}, v{c}, 9, v{ad}")
            e(f"v_and_b32 v{c}, 1, v{j}")
            e(f"v_lshl_add_u32 v{ad}, v{c}, 3, v{ad}")
            e(f"v_cndmask_b32 v{c}, v{t+2}, v{t+3}, vcc")
            e(f"v_add_u32 v{ad}, v{ad}, v{c}")
            for tm in range(2):
                a = g.accr(tm, tn) + gg * 4
                pk = t + 8 + 2 * tm
                for i in range(4):
                    e(f"v_mul_f32 v{a+i}, s{sT}, v{a+i}")
                e(f"v_cvt_pk_bf16_f32 v{pk}, v{a}, v{a+1}")
                e(f"v_cvt_pk_bf16_f32 v{pk+1}, v{a+2}, v{a+3}")
                e(f"buffer_store_dwordx2 v[{pk}:{pk+1}], v{ad}, s[36:39], s{sT+2+tm} offen")
    e("s_branch k1_end")
    e("k1_v:")
    g.main(e, 't', 'v')
    e(f"s_sub_u32 s{sT}, s25, 10")
    e(f"s_lshl_b32 s{sT}, s{sT}, 7")
    e(f"s_lshl_b32 s{sT+1}, s{sWN}, 6")
    e(f"s_add_u32 s{sT}, s{sT}, s{sT+1}")
    e(f"s_lshl_b32 s{sT+2}, s23, 3")
    e(f"s_lshl_b32 s{sT+3}, s{sWM}, 1")
    e(f"s_add_u32 s{sT+2}, s{sT+2}, s{sT+3}")
    e(f"s_mul_i32 s{sT+2}, s{sT+2}, 2560")
    e(f"s_add_u32 s{sT+2}, s{sT+2}, {KV_OFF + 1280}")
    e(f"s_mov_b32 s{sT+4}, {64*2560}")
    t = tmpv
    e(f"v_and_b32 v{t}, 31, v0")
    e(f"v_add_u32 v{t}, s{sT}, v{t}")
    e(f"v_lshrrev_b32 v{t+1}, 5, v0")
    e(f"v_mul_u32_u24 v{t+1}, 320, v{t+1}")
    for tn in range(2):
        c, hd, d, ad = t + 4, t + 5, t + 6, t + 7
        e(f"v_add_u32 v{c}, {32*tn}, v{t}")
        e(f"v_mul_u32_u24 v{hd}, 3277, v{c}")
        e(f"v_lshrrev_b32 v{hd}, 16, v{hd}")
        e(f"v_mul_u32_u24 v{d}, 20, v{hd}")
        e(f"v_sub_u32 v{d}, v{c}, v{d}")
        e(f"v_mul_lo_u32 v{ad}, v{hd}, s{sT+4}")
        e(f"v_lshl_add_u32 v{ad}, v{d}, 4, v{ad}")
        e(f"v_add_u32 v{ad}, v{ad}, v{t+1}")
        for tm in range(2):
            a = g.accr(tm, tn)
            for half in range(2):
                pk = t + 8 + 4 * ((tm * 2 + half) & 1)
                for i in range(4):
                    e(f"v_cvt_pk_bf16_f32 v{pk+i}, v{a+half*8+2*i}, v{a+half*8+2*i+1}")
                e(f"buffer_store_dwordx4 v[{pk}:{pk+3}], v{ad}, s[36:39], s{sT+2} offen offset:{tm*2560+half*640}")
    e("k1_end:")
    stamp(e, 4)
    e("s_waitcnt vmcnt(0)")
    stamp(e, 5)
    stamp_rt(e, 11)
    stamp_store(e, 1, "s24", 36)
    e("k1_done:")
    e("s_endpgm")
    nv = tmpv + 28
    return kd("gemm1_kernel", nv, 96), g.lds_bytes


AT_STAGE = 8 * 2560
K2_KGS = 2
K2_NBUF = 5


def gen_k2(e):
    kernel_head(e, "attn_kernel")
    e("""
    s_cmp_ge_u32 s2, 416
    s_cbranch_scc1 k2_done
    s_load_dwordx2 s[4:5], s[0:1], 80
    s_load_dwordx2 s[6:7], s[0:1], 48
    s_load_dwordx2 s[8:9], s[0:1], 56
    v_lshrrev_b32 v1, 6, v0
    v_and_b32 v0, 63, v0
    s_and_b32 s20, s2, 7
    v_readfirstlane_b32 s24, v1
    s_cmp_ge_u32 s2, 256
    s_cbranch_scc1 k2_mlp
    """)
    Q1, Q2 = 4, 8
    KF = [(12, 16), (20, 24)]
    VF = [(28, 32), (36, 40)]
    SS = [44, 60]
    PP = [76, 84]
    O = 92
    vK, vKh, vV, vKn, vKhn = 108, 109, 110, 111, 112
    vK0, vKh0, vV0 = 113, 114, 115
    vInc, vIncW, vMask, vD2 = 116, 117, 118, 119
    T = 120
    CA = 3 * AT_STAGE
    e("""
    s_lshr_b32 s21, s2, 3
    s_lshr_b32 s22, s21, 3
    s_lshl_b32 s23, s20, 2
    s_add_u32 s22, s22, s23
    s_and_b32 s23, s21, 7
    """)
    e("s_waitcnt lgkmcnt(0)")
    srd(e, 36, "s4", "s5", WS_BYTES)
    stamp_rt(e, 10)
    stamp(e, 0)
    e(f"s_mul_i32 s25, s22, {64*2560}")
    e(f"s_add_u32 s25, s25, {KV_OFF}")
    e("s_add_u32 s12, s4, s25")
    e("s_addc_u32 s13, s5, 0")
    e("s_and_b32 s13, s13, 0xffff")
    e(f"s_mov_b32 s14, {64*2560}")
    e("s_mov_b32 s15, 0x00020000")
    e(f"v_lshlrev_b32 v{vK0}, 4, v0")
    e("s_cmp_lt_u32 s24, 4")
    e("s_mul_i32 s26, s24, 3072")
    e("s_lshl_b32 s27, s24, 11")
    e("s_add_u32 s27, s27, 4096")
    e("s_cmp_lt_u32 s24, 4")
    e("s_cselect_b32 s26, s26, s27")
    e("s_mov_b32 s30, s26")
    e("s_mov_b32 s31, s26")

    def dma(tag):
        e("s_mov_b32 m0, s31")
        e("s_cmp_lt_u32 s24, 4")
        e(f"buffer_load_dwordx4 v{vK0}, s[12:15], s30 offen lds")
        e(f"buffer_load_dwordx4 v{vK0}, s[12:15], s30 offen offset:1024 lds")
        e(f"s_cbranch_scc0 k2_dm{tag}")
        e(f"buffer_load_dwordx4 v{vK0}, s[12:15], s30 offen offset:2048 lds")
        e(f"k2_dm{tag}:")
        e(f"s_add_u32 s31, s31, {AT_STAGE}")
        e(f"s_add_u32 s30, s30, {AT_STAGE}")
        e(f"s_cmp_ge_u32 s31, {3*AT_STAGE}")
        e("s_cselect_b32 s31, s26, s31")
    e(f"v_and_b32 v{T}, 31, v0")
    e(f"v_lshlrev_b32 v{vKh0}, 3, v{T}")
    e(f"v_add_u32 v{vKh0}, 1024, v{vKh0}")
    e("s_lshl_b32 s32, s23, 3")
    e("s_add_u32 s32, s32, s24")
    e("s_lshl_b32 s33, s22, 6")
    e("s_add_u32 s33, s33, s32")
    e("s_mul_i32 s33, s33, 1280")
    e(f"s_add_u32 s33, s33, {QF_OFF}")
    for i in range(4):
        e(f"v_mov_b32 v{Q2+i}, 0")
    dma("p0")
    e(f"buffer_load_dwordx4 v[{Q1}:{Q1+3}], v{vK0}, s[36:39], s33 offen")
    e("s_mov_b32 exec_hi, 0")
    e(f"buffer_load_dwordx2 v[{Q2}:{Q2+1}], v{vKh0}, s[36:39], s33 offen")
    e("s_mov_b64 exec, -1")
    e(f"v_lshrrev_b32 v{T+1}, 5, v0")
    e(f"v_mad_u32_u24 v{vV0}, v{T+1}, 20, v{T}")
    e(f"v_lshlrev_b32 v{vV0}, 4, v{vV0}")
    e(f"v_add_u32 v{vV0}, 1280, v{vV0}")
    e("s_mov_b32 s28, 0x000fffff")
    e("s_mov_b32 s29, 0x000fffff")
    X = SS[0]
    e(f"v_and_b32 v{T+2}, 1, v0")
    e(f"v_cmp_eq_u32 vcc, 0, v{T+2}")
    e(f"v_mov_b32 v{T+3}, 0x3f803f80")
    e(f"v_bfe_u32 v{T+4}, v0, 1, 1")
    e(f"v_mul_u32_u24 v{T+4}, 640, v{T+4}")
    e(f"v_lshl_add_u32 v{T+4}, v{T+2}, 4, v{T+4}")
    for i in range(4):
        e(f"v_cndmask_b32 v{X+i}, 0, v{T+3}, vcc")
    e(f"ds_write_b128 v{T+4}, v[{X}:{X+3}] offset:{CA}")
    e(f"v_cmp_gt_u32 vcc, 20, v{T}")
    e(f"v_cmp_eq_u32 s[40:41], 20, v{T}")
    e(f"v_mov_b32 v{T+5}, {CA+16}")
    e(f"v_mov_b32 v{T+6}, {CA}")
    e(f"v_cndmask_b32 v{T+5}, v{T+5}, v{T+6}, s[40:41]")
    e(f"v_cndmask_b32 v{vV}, v{T+5}, v{vV0}, vcc")
    e(f"v_cndmask_b32 v{vMask}, 0, 1, vcc")
    e(f"v_mul_u32_u24 v{vInc}, 2560, v{vMask}")
    for lo, hi in KF:
        for i in range(4):
            e(f"v_mov_b32 v{hi+i}, 0")
    for a, b in VF:
        for r in (a, b):
            for i in range(4):
                e(f"v_mov_b32 v{r+i}, 0")
    for i in range(8):
        e(f"v_mov_b32 v{PP[1]+i}, 0")
    for i in range(16):
        e(f"v_mov_b32 v{O+i}, 0")
    e(f"v_mov_b32 v{vKn}, v{vK0}")
    e(f"v_mov_b32 v{vKhn}, v{vKh0}")
    e(f"s_mov_b32 s34, {AT_STAGE}")
    e("s_mov_b32 s35, 8")

    def rdK(t, p):
        lo, hi = KF[p]
        a, b = (vK, vKh) if t < 8 else (vKn, vKhn)
        o = (t % 8) * 2560
        return [f"ds_read_b128 v[{lo}:{lo+3}], v{a} offset:{o}",
                f"ds_read_b64 v[{hi}:{hi+1}], v{b} offset:{o}"]

    def rdV(p):
        v0_, v1_ = VF[p]
        return [f"ds_read_b128 v[{v0_}:{v0_+3}], v{vV}",
                f"ds_read_b128 v[{v1_}:{v1_+3}], v{vV} offset:640"]

    def mS(S, p):
        lo, hi = KF[p]
        return [f"v_mfma_f32_32x32x16_bf16 v[{S}:{S+15}], v[{lo}:{lo+3}], v[{Q1}:{Q1+3}], 0",
                f"v_mfma_f32_32x32x16_bf16 v[{S}:{S+15}], v[{hi}:{hi+3}], v[{Q2}:{Q2+3}], v[{S}:{S+15}]"]

    def mPV(p, P):
        v0_, v1_ = VF[p]
        return [f"v_mfma_f32_32x32x16_bf16 v[{O}:{O+15}], v[{v0_}:{v0_+3}], v[{P}:{P+3}], v[{O}:{O+15}]",
                f"v_mfma_f32_32x32x16_bf16 v[{O}:{O+15}], v[{v1_}:{v1_+3}], v[{P+4}:{P+7}], v[{O}:{O+15}]"]

    stamp(e, 1)
    e("s_waitcnt vmcnt(0) lgkmcnt(0)")
    e("s_barrier")
    stamp(e, 2)
    dma("p1")
    for r in rdK(8, 0) + rdK(9, 1):
        e(r)
    e("s_waitcnt lgkmcnt(0)")
    for m in mS(SS[0], 0):
        e(m)
    e("s_nop 7")
    e("k2_stage:")
    e("s_waitcnt vmcnt(0)")
    e("s_barrier")
    dma("l")
    e(f"v_mov_b32 v{vK}, v{vKn}")
    e(f"v_mov_b32 v{vKh}, v{vKhn}")
    e(f"v_add_u32 v{vKn}, s34, v{vK0}")
    e(f"v_add_u32 v{vKhn}, s34, v{vKh0}")
    e("s_cmp_eq_u32 s34, 0")
    csel(e, "s27", 2560 - 3 * AT_STAGE, 2560)
    e(f"v_mul_lo_u32 v{vIncW}, v{vMask}, s27")
    e(f"s_add_u32 s34, s34, {AT_STAGE}")
    e(f"s_cmp_eq_u32 s34, {3*AT_STAGE}")
    e("s_cselect_b32 s34, 0, s34")

    def phase(S, P, mf, extra):
        ex = list(extra)
        for q in range(4):
            e(mf[q])
            for i in range(4):
                e(f"v_exp_f32 v{S+4*q+i}, v{S+4*q+i}")
                if ex and i in (0, 2):
                    x = ex.pop(0)
                    if x:
                        e(x)
            e(f"v_cvt_pk_bf16_f32 v{P+2*q}, v{S+4*q}, v{S+4*q+1}")
            e(f"v_cvt_pk_bf16_f32 v{P+2*q+1}, v{S+4*q+2}, v{S+4*q+3}")
        assert not ex

    for t in range(8):
        p = t & 1
        inc = vIncW if t == 7 else vInc
        X_ = os.environ.get("ATX", "")
        ex = rdV(p) + rdK(t + 2, p) + [f"v_add_u32 v{vV}, v{vV}, v{inc}", None, None, "s_waitcnt lgkmcnt(0)"]
        if "nolds" in X_:
            ex = []
        if "nowait" in X_:
            ex = ex[:-1]
        if "nopsonly" in X_:
            ex = ["s_nop 0"] * 4 + ex[4:]
        if "onlyk" in X_:
            ex = ["s_nop 0"] * 2 + ex[2:]
        if "onlyv" in X_:
            ex = ex[:2] + ["s_nop 0"] * 2 + ex[4:]
        if "late" in X_:
            pass
        PR = os.environ.get("PRIO", "none")
        if PR != "none" and (t == 0 or PR[t] != PR[t-1]):
            e(f"s_setprio {PR[t]}")
        mf = mS(SS[p ^ 1], p ^ 1) + mPV(p ^ 1, PP[p ^ 1])
        if "nopv" in X_:
            mf = mf[:2] + ["s_nop 0", "s_nop 0"]
        if "nos" in X_:
            mf = ["s_nop 0", "s_nop 0"] + mf[2:]
        if "pvq" in X_:
            mf = mf[:2] + [f"v_mfma_f32_32x32x16_bf16 v[{O}:{O+15}], v[{VF[0][0]}:{VF[0][0]+3}], v[{Q1}:{Q1+3}], v[{O}:{O+15}]"] * 2
        if "sacc" in X_:
            mf = [f"v_mfma_f32_32x32x16_bf16 v[{O}:{O+15}], v[{KF[0][0]}:{KF[0][0]+3}], v[{Q1}:{Q1+3}], v[{O}:{O+15}]"] * 2 + mf[2:]
        phase(SS[p], PP[p], mf, ex)
    e("s_sub_u32 s35, s35, 1")
    e("s_cmp_lg_u32 s35, 0")
    e("s_cbranch_scc1 k2_stage")
    for m in mPV(1, PP[1]):
        e(m)
    e("s_waitcnt lgkmcnt(0) vmcnt(0)")
    e("s_nop 15")
    stamp(e, 3)
    L = T
    lo_lim = f32bits(2.0 ** -80)
    hi_lim = f32bits(2.0 ** 100)

    def bcast_l(dst, tmp):
        e(f"v_mov_b32 v{tmp}, v{O+8}")
        e(f"v_mov_b32 v{dst}, v{O+8}")
        e("s_nop 1")
        e(f"v_permlane32_swap_b32 v{tmp}, v{dst}")

    e(f"v_mov_b32 v{T+4}, 0")
    bcast_l(L, T + 2)
    for i in range(12):
        e(f"v_fma_f32 v{T+4}, v{O+i}, 0, v{T+4}")
    e(f"s_mov_b32 s40, 0x{lo_lim:08x}")
    e(f"s_mov_b32 s41, 0x{hi_lim:08x}")
    e(f"v_cmp_u_f32 s[42:43], v{T+4}, v{T+4}")
    e(f"v_cmp_nle_f32 s[44:45], s40, v{L}")
    e(f"v_cmp_nge_f32 s[46:47], s41, v{L}")
    e("s_nop 3")
    e("s_or_b64 s[42:43], s[42:43], s[44:45]")
    e("s_or_b64 s[42:43], s[42:43], s[46:47]")
    e("s_cmp_eq_u64 s[42:43], 0")
    e("s_cbranch_scc1 k2_epi")
    v0_, v1_ = VF[0]
    Sa, Pa = SS[0], PP[0]
    e(f"v_and_b32 v{T+2}, 31, v0")
    e(f"v_cmp_eq_u32 vcc, 20, v{T+2}")
    e(f"v_mov_b32 v{T+3}, 0x3f803f80")
    e("s_nop 0")
    for r in (v0_, v1_):
        for i in range(4):
            e(f"v_cndmask_b32 v{r+i}, 0, v{T+3}, vcc")
    lo, hi = KF[0]
    M = T + 6
    e(f"v_mov_b32 v{M}, 0xff800000")
    e("s_mov_b32 s40, 0")
    e(f"k2_fb1:")
    e(f"buffer_load_dwordx4 v[{lo}:{lo+3}], v{vK0}, s[12:15], s40 offen")
    e(f"buffer_load_dwordx2 v[{hi}:{hi+1}], v{vKh0}, s[12:15], s40 offen")
    e("s_waitcnt vmcnt(0)")
    for m in mS(Sa, 0):
        e(m)
    e("s_nop 15")
    e("s_nop 3")
    for i in range(8):
        e(f"v_max3_f32 v{M}, v{Sa+2*i}, v{Sa+2*i+1}, v{M}")
    e("s_add_u32 s40, s40, 2560")
    e(f"s_cmp_lt_u32 s40, {64*2560}")
    e(f"s_cbranch_scc1 k2_fb1")
    e(f"v_mov_b32 v{M+1}, v{M}")
    e("s_nop 1")
    e(f"v_permlane32_swap_b32 v{M}, v{M+1}")
    e("s_nop 1")
    e(f"v_max_f32 v{M}, v{M}, v{M+1}")
    for i in range(16):
        e(f"v_mov_b32 v{O+i}, 0")
    e("s_mov_b32 s40, 0")
    e(f"k2_fb2:")
    e(f"buffer_load_dwordx4 v[{lo}:{lo+3}], v{vK0}, s[12:15], s40 offen")
    e(f"buffer_load_dwordx2 v[{hi}:{hi+1}], v{vKh0}, s[12:15], s40 offen")
    e("s_mov_b64 exec, s[28:29]")
    e(f"buffer_load_dwordx4 v[{v0_}:{v0_+3}], v{vV0}, s[12:15], s40 offen")
    e(f"buffer_load_dwordx4 v[{v1_}:{v1_+3}], v{vV0}, s[12:15], s40 offen offset:640")
    e("s_mov_b64 exec, -1")
    e("s_waitcnt vmcnt(0)")
    for m in mS(Sa, 0):
        e(m)
    e("s_nop 15")
    e("s_nop 3")
    for i in range(16):
        e(f"v_sub_f32 v{Sa+i}, v{Sa+i}, v{M}")
    for i in range(16):
        e(f"v_exp_f32 v{Sa+i}, v{Sa+i}")
    e("s_nop 0")
    for i in range(8):
        e(f"v_cvt_pk_bf16_f32 v{Pa+i}, v{Sa+2*i}, v{Sa+2*i+1}")
    e("s_nop 1")
    for m in mPV(0, Pa):
        e(m)
    e("s_add_u32 s40, s40, 2560")
    e(f"s_cmp_lt_u32 s40, {64*2560}")
    e("s_nop 7")
    e(f"s_cbranch_scc1 k2_fb2")
    e("s_nop 15")
    bcast_l(L, T + 2)
    e("k2_epi:")
    e("s_lshl_b32 s41, s22, 6")
    e("s_add_u32 s41, s41, s32")
    e("s_lshl_b32 s41, s41, 10")
    e(f"s_add_u32 s41, s41, {O_OFF}")
    e("s_lshr_b32 s43, s22, 2")
    e("s_add_u32 s43, s43, 32")
    e("s_lshl_b32 s43, s43, 6")
    e("s_add_u32 s43, s43, s32")
    e("s_lshl_b32 s43, s43, 10")
    e("s_bfe_u32 s44, s22, 0x10001")
    e("s_lshl_b32 s44, s44, 9")
    e("s_add_u32 s43, s43, s44")
    e("s_and_b32 s44, s22, 1")
    e("s_lshl_b32 s44, s44, 3")
    e("s_add_u32 s43, s43, s44")
    e(f"s_add_u32 s43, s43, {O_OFF}")
    e(f"v_rcp_f32 v{L}, v{L}")
    e("s_nop 0")
    pk = PP[0]
    for i in range(12):
        e(f"v_mul_f32 v{O+i}, v{O+i}, v{L}")
    for i in range(6):
        e(f"v_cvt_pk_bf16_f32 v{pk+i}, v{O+2*i}, v{O+2*i+1}")
    e(f"buffer_store_dwordx4 v[{pk}:{pk+3}], v{vK0}, s[36:39], s41 offen")
    e("s_mov_b32 exec_hi, 0")
    e(f"buffer_store_dwordx2 v[{pk+4}:{pk+5}], v{vK0}, s[36:39], s43 offen")
    e("s_mov_b64 exec, -1")
    e("s_branch k2_end")

    e("k2_mlp:")
    if os.environ.get("PRIO", "none") != "none":
        e("s_setprio 3")
    g = Gemm("k2", NWM=2, NWN=2, TM=2, TN=1, KGS=K2_KGS, NBUF=K2_NBUF, KG=108, korder='d', NL=1, vbase=8, sbase=40)
    e("""
    s_sub_u32 s21, s2, 256
    s_lshr_b32 s21, s21, 3
    s_cmp_ge_u32 s21, 10
    s_cselect_b32 s22, 1, 0
    s_cselect_b32 s23, 10, 0
    s_sub_u32 s25, s21, s23
    s_lshl_b32 s23, s20, 1
    s_add_u32 s23, s23, s22
    s_lshl_b32 s28, s25, 7
    s_mov_b32 s29, 1280
    s_waitcnt lgkmcnt(0)
    """)
    srd(e, 36, "s4", "s5", WS_BYTES)
    stamp_rt(e, 10)
    stamp(e, 0)
    e("s_cmp_lt_u32 s24, 4")
    e("s_cbranch_scc1 k2_mc")
    e("s_cmp_gt_u32 s24, 4")
    e("s_cbranch_scc1 k2_done")
    e("""
    s_add_u32 s16, s6, s28
    s_addc_u32 s17, s7, 0
    s_and_b32 s17, s17, 0xffff
    """)
    e(f"s_sub_u32 s18, {1728*1280}, s28")
    e("s_mov_b32 s19, 0x00020000")
    e(f"s_add_u32 s12, s4, {H_OFF}")
    e("s_addc_u32 s13, s5, 0")
    e("s_and_b32 s13, s13, 0xffff")
    e(f"s_mov_b32 s14, {108*65536}")
    e("s_mov_b32 s15, 0x00020000")
    e("s_lshl_b32 s34, s23, 12")
    g.loader_setup(e, "s29", "s34")
    g.loader(e, 0, 12, 16, "k2_end")
    e("k2_mc:")
    g.setup(e, "s24")
    sWM, sWN = g.send, g.send + 1
    e(f"s_lshr_b32 s{sWM}, s24, 1")
    e(f"s_and_b32 s{sWN}, s24, 1")
    sT = (g.send + 2 + 3) // 4 * 4 + 2
    tmpv = g.vend
    srd(e, sT + 2, "s8", "s9", 640 * 2)
    e(f"s_lshl_b32 s{sT}, s{sWN}, 6")
    e(f"s_add_u32 s{sT}, s{sT}, s28")
    load_bias_init(e, g, sT + 2, f"s{sT}", tmpv)
    e(f"s_waitcnt vmcnt(0)")
    finish_bias_init(e, g, tmpv)
    g.main(e, 'n', 'm')
    e(f"s_lshl_b32 s{sT}, s23, 2")
    e(f"s_lshl_b32 s{sT+1}, s{sWM}, 1")
    e(f"s_add_u32 s{sT}, s{sT}, s{sT+1}")
    e(f"s_mul_i32 s{sT}, s{sT}, 20")
    e(f"s_lshl_b32 s{sT+1}, s25, 1")
    e(f"s_add_u32 s{sT}, s{sT}, s{sT+1}")
    e(f"s_add_u32 s{sT}, s{sT}, s{sWN}")
    e(f"s_lshl_b32 s{sT}, s{sT}, 11")
    e(f"s_add_u32 s{sT}, s{sT}, {G_OFF}")
    e(f"s_add_u32 s{sT+1}, s{sT}, {20*2048}")
    e(f"v_mov_b32 v{tmpv}, 0x{f32bits(-1.4426950408889634):08x}")
    for tm in range(2):
        a = g.accr(tm, 0)
        for half in range(2):
            t = tmpv + 4 + 8 * half
            pk = tmpv + 20 + 4 * half
            r0 = a + half * 8
            for i in range(8):
                e(f"v_mul_f32 v{t+i}, v{r0+i}, v{tmpv}")
            for i in range(8):
                e(f"v_exp_f32 v{t+i}, v{t+i}")
            for i in range(8):
                e(f"v_add_f32 v{t+i}, 1.0, v{t+i}")
            for i in range(8):
                e(f"v_rcp_f32 v{t+i}, v{t+i}")
            for i in range(8):
                e(f"v_mul_f32 v{t+i}, v{t+i}, v{r0+i}")
            for i in range(4):
                e(f"v_cvt_pk_bf16_f32 v{pk+i}, v{t+2*i}, v{t+2*i+1}")
            e(f"buffer_store_dwordx4 v[{pk}:{pk+3}], v{g.vDA}, s[36:39], s{sT+tm} offen offset:{half*1024}")
    e("k2_end:")
    stamp(e, 4)
    e("s_waitcnt vmcnt(0)")
    stamp(e, 5)
    stamp_rt(e, 11)
    stamp_store(e, 2, "s24", 36)
    e("k2_done:")
    e("s_endpgm")
    nv = max(T + 8, tmpv + 28)
    assert nv <= 128, nv
    return kd("attn_kernel", nv, 96), max(CA + 640 + 32, g.lds_bytes)


K3_NBUF = 11


def gen_k3(e):
    kernel_head(e, "out_kernel")
    g = Gemm("k3", NWM=2, NWN=2, TM=2, TN=1, KGS=2, NBUF=K3_NBUF, KG=40, korder='d', NL=2, vbase=8, sbase=48)
    e("""
    s_cmp_ge_u32 s2, 160
    s_cbranch_scc1 k3_done
    s_load_dwordx2 s[4:5], s[0:1], 80
    s_load_dwordx2 s[6:7], s[0:1], 16
    s_load_dwordx2 s[8:9], s[0:1], 0
    s_load_dwordx2 s[10:11], s[0:1], 64
    v_lshrrev_b32 v1, 6, v0
    v_and_b32 v0, 63, v0
    s_and_b32 s20, s2, 7
    v_readfirstlane_b32 s24, v1
    s_lshr_b32 s21, s2, 3
    s_cmp_ge_u32 s21, 10
    s_cselect_b32 s22, 1, 0
    s_cselect_b32 s23, 10, 0
    s_sub_u32 s25, s21, s23
    s_lshl_b32 s23, s20, 1
    s_add_u32 s23, s23, s22
    s_lshl_b32 s28, s25, 7
    s_mov_b32 s29, 1280
    s_waitcnt lgkmcnt(0)
    """)
    srd(e, 36, "s4", "s5", WS_BYTES)
    stamp_rt(e, 10)
    stamp(e, 0)
    e("s_cmp_lt_u32 s24, 4")
    e("s_cbranch_scc1 k3_c")
    e("""
    s_add_u32 s16, s6, s28
    s_addc_u32 s17, s7, 0
    s_and_b32 s17, s17, 0xffff
    """)
    e(f"s_sub_u32 s18, {640*1280}, s28")
    e("s_mov_b32 s19, 0x00020000")
    e(f"s_add_u32 s12, s4, {O_OFF}")
    e("s_addc_u32 s13, s5, 0")
    e("s_and_b32 s13, s13, 0xffff")
    e(f"s_mov_b32 s14, {FR}")
    e("s_mov_b32 s15, 0x00020000")
    e("s_lshl_b32 s34, s23, 12")
    g.loader_setup(e, "s29", "s34")
    t = g.vt
    e(f"v_lshrrev_b32 v{t+2}, 2, v{t}")
    e(f"v_mul_u32_u24 v{t+2}, 40, v{t+2}")
    e(f"v_and_b32 v{t+3}, 3, v{t}")
    e(f"v_add_u32 v{t+2}, v{t+2}, v{t+3}")
    e(f"v_mul_u32_u24 v{t+2}, 1280, v{t+2}")
    e(f"v_add_u32 v{g.vDB2}, v{t+2}, v{t+1}")
    e("s_cmp_eq_u32 s24, 5")
    e("s_cbranch_scc1 k3_ld1")
    D = 6
    for kgl in range(2):
        if kgl == 1:
            e("k3_ld1:")

        def issue(st_):
            buf = (st_ % g.NBUF) * g.SB
            kg = st_ * 2 + kgl
            e(f"s_mov_b32 m0, {buf + kgl*4096}")
            e(f"s_add_u32 s{g.st}, s34, {kg*65536}")
            for i in range(4):
                off = f" offset:{i*1024}" if i else ""
                e(f"buffer_load_dwordx4 v{g.vDA}, s[12:15], s{g.st} offen{off} lds")
            for tt in range(2):
                e(f"s_mov_b32 m0, {buf + g.ASB + (kgl*2+tt)*1024}")
                if kg < 32:
                    e(f"s_mov_b32 s{g.st}, {(20*kg + 8*tt)*1280}")
                    e(f"buffer_load_dwordx4 v{g.vDB}, s[16:19], s{g.st} offen lds")
                else:
                    G = kg - 32
                    e(f"s_mov_b32 s{g.st}, {((4*G + tt)*20 + 16)*1280}")
                    e(f"buffer_load_dwordx4 v{g.vDB2}, s[16:19], s{g.st} offen lds")
        npre = 4
        for s_ in range(npre):
            issue(s_)
        e(f"s_waitcnt vmcnt({(npre-1)*D})")
        e("s_barrier")
        for s_ in range(npre, g.NBUF - 1):
            issue(s_)
        for s_ in range(g.NST):
            outst = max(0, min(s_ + g.NBUF - 2, g.NST - 1) - (s_ + 1) + 1)
            e(f"s_waitcnt vmcnt({max(0, outst-1)*D})")
            e("s_barrier")
            if s_ + g.NBUF - 1 < g.NST:
                issue(s_ + g.NBUF - 1)
        e("s_branch k3_end")
    e("k3_c:")
    srd(e, 12, "s8", "s9", 2048 * 1280)
    srd(e, 32, "s10", "s11", 2048 * 1280)
    g.setup(e, "s24")
    sWM, sWN = g.send, g.send + 1
    e(f"s_lshr_b32 s{sWM}, s24, 1")
    e(f"s_and_b32 s{sWN}, s24, 1")
    sT = g.send + 2
    GV = g.vend
    XV = GV + 16
    vX = XV + 16
    T = vX + 4
    e(f"s_lshl_b32 s{sT}, s23, 2")
    e(f"s_lshl_b32 s{sT+1}, s{sWM}, 1")
    e(f"s_add_u32 s{sT}, s{sT}, s{sT+1}")
    e(f"s_mul_i32 s{sT+1}, s{sT}, 20")
    e(f"s_lshl_b32 s{sT+2}, s25, 1")
    e(f"s_add_u32 s{sT+1}, s{sT+1}, s{sT+2}")
    e(f"s_add_u32 s{sT+1}, s{sT+1}, s{sWN}")
    e(f"s_lshl_b32 s{sT+1}, s{sT+1}, 11")
    e(f"s_add_u32 s{sT+1}, s{sT+1}, {G_OFF}")
    e(f"s_add_u32 s{sT+2}, s{sT+1}, {20*2048}")
    e(f"v_and_b32 v{T}, 31, v0")
    e(f"v_mul_u32_u24 v{vX}, 1280, v{T}")
    e(f"v_lshrrev_b32 v{T+1}, 5, v0")
    e(f"v_lshl_add_u32 v{vX}, v{T+1}, 4, v{vX}")
    e(f"s_mul_i32 s{sT+3}, s{sT}, {32*1280}")
    e(f"s_add_u32 s{sT+3}, s{sT+3}, s28")
    e(f"s_lshl_b32 s{sT+4}, s{sWN}, 6")
    e(f"s_add_u32 s{sT+3}, s{sT+3}, s{sT+4}")
    e(f"s_add_u32 s{sT+4}, s{sT+3}, {32*1280}")
    for i in range(32):
        e(f"v_mov_b32 v{g.acc+i}, 0")

    def late_loads():
        for tm in range(2):
            for half in range(2):
                r = GV + tm * 8 + half * 4
                e(f"buffer_load_dwordx4 v[{r}:{r+3}], v{g.vDA}, s[36:39], s{sT+1+tm} offen offset:{half*1024}")
        for tm in range(2):
            for pp in range(2):
                r = XV + (tm * 2 + pp) * 4
                e(f"buffer_load_dwordx4 v[{r}:{r+3}], v{vX}, s[12:15], s{sT+3+tm} offen offset:{pp*32}")
    g.main(e, 'n', 'm', late_loads)
    e("s_waitcnt vmcnt(0)")
    for tm in range(2):
        for pp in range(2):
            r = XV + (tm * 2 + pp) * 4
            e(f"v_permlane32_swap_b32 v{r}, v{r+2}")
            e(f"v_permlane32_swap_b32 v{r+1}, v{r+3}")
    for tm in range(2):
        for pp in range(2):
            ob = T + ((tm * 2 + pp) & 1) * 4
            for q in range(2):
                gg = pp * 2 + q
                a = g.accr(tm, 0) + 4 * gg
                gr = GV + tm * 8 + gg * 2
                xr = XV + (tm * 2 + pp) * 4 + q * 2
                t = T + 8
                e(f"v_cvt_pk_bf16_f32 v{t}, v{a}, v{a+1}")
                e(f"v_cvt_pk_bf16_f32 v{t+1}, v{a+2}, v{a+3}")
                for i in range(2):
                    e(f"v_lshlrev_b32 v{t+2+2*i}, 16, v{t+i}")
                    e(f"v_and_b32 v{t+3+2*i}, 0xffff0000, v{t+i}")
                    e(f"v_lshlrev_b32 v{t+6+2*i}, 16, v{gr+i}")
                    e(f"v_and_b32 v{t+7+2*i}, 0xffff0000, v{gr+i}")
                for i in range(4):
                    e(f"v_mul_f32 v{t+2+i}, v{t+2+i}, v{t+6+i}")
                e(f"v_cvt_pk_bf16_f32 v{t}, v{t+2}, v{t+3}")
                e(f"v_cvt_pk_bf16_f32 v{t+1}, v{t+4}, v{t+5}")
                for i in range(2):
                    e(f"v_lshlrev_b32 v{t+2+2*i}, 16, v{t+i}")
                    e(f"v_and_b32 v{t+3+2*i}, 0xffff0000, v{t+i}")
                    e(f"v_lshlrev_b32 v{t+6+2*i}, 16, v{xr+i}")
                    e(f"v_and_b32 v{t+7+2*i}, 0xffff0000, v{xr+i}")
                for i in range(4):
                    e(f"v_add_f32 v{t+2+i}, v{t+2+i}, v{t+6+i}")
                e(f"v_cvt_pk_bf16_f32 v{ob+2*q}, v{t+2}, v{t+3}")
                e(f"v_cvt_pk_bf16_f32 v{ob+2*q+1}, v{t+4}, v{t+5}")
            e("s_nop 1")
            e(f"v_permlane32_swap_b32 v{ob}, v{ob+2}")
            e(f"v_permlane32_swap_b32 v{ob+1}, v{ob+3}")
            e(f"buffer_store_dwordx4 v[{ob}:{ob+3}], v{vX}, s[32:35], s{sT+3+tm} offen offset:{pp*32}")
    e("k3_end:")
    stamp(e, 4)
    e("s_waitcnt vmcnt(0)")
    stamp(e, 5)
    stamp_rt(e, 11)
    stamp_store(e, 3, "s24", 36)
    e("k3_done:")
    e("s_endpgm")
    return kd("out_kernel", T + 20, 96), g.lds_bytes


def main():
    e = Em()
    kds = []
    kds.append(gen_ln(e))
    k1kd, k1lds = gen_k1(e)
    kds.append(k1kd)
    k2kd, k2lds = gen_k2(e)
    kds.append(k2kd)
    k3kd, k3lds = gen_k3(e)
    kds.append(k3kd)
    launches = [
        f"; @launch kernel=ln_kernel grid=(768,1,1) block=(256,1,1) lds=0",
        f"; @launch kernel=gemm1_kernel grid=(256,1,1) block=(640,1,1) lds={k1lds}",
        f"; @launch kernel=attn_kernel grid=(416,1,1) block=(512,1,1) lds={k2lds}",
        f"; @launch kernel=out_kernel grid=(160,1,1) block=(384,1,1) lds={k3lds}",
    ]
    head = "\n".join(launches) + "\n" + '.amdgcn_target "amdgcn-amd-amdhsa--gfx950"\n.text\n'
    tail = '.section .rodata,"a"\n.p2align 6\n' + ".p2align 6\n".join(kds)
    out = head + e.text() + tail
    path = sys.argv[1] if len(sys.argv) > 1 else f"cdna_kernels/{NAME}.s"
    open(path, "w").write(out)
    print("wrote", path, len(out))


if __name__ == "__main__":
    main()
```

```python
import sys, math, struct
from layout import *

NAME = "recurrent_scan__softmax_full_mha__mixer_channel_mlp__prompt"
WS_BYTES = 268435456


def f32bits(x):
    return struct.unpack("<I", struct.pack("<f", x))[0]


class Em:
    def __init__(self):
        self.l = []

    def __call__(self, s):
        for line in s.split("\n"):
            line = line.strip()
            if not line:
                continue
            if line.endswith(":") or line.startswith("."):
                self.l.append(line)
            else:
                self.l.append("    " + line)

    def text(self):
        return "\n".join(self.l) + "\n"


def srd(e, s, lo, hi, nbytes):
    e(f"s_mov_b32 s{s}, {lo}")
    e(f"s_and_b32 s{s+1}, {hi}, 0xffff")
    e(f"s_mov_b32 s{s+2}, {nbytes}")
    e(f"s_mov_b32 s{s+3}, 0x00020000")


def csel(e, dst, a, b):
    e(f"s_mov_b32 {dst}, {b}")
    e(f"s_cselect_b32 {dst}, {a}, {dst}")


import os
STAMP = int(os.environ.get("STAMP", "0"))
STAMP_OFF = 64 << 20


def stamp(e, i):
    if STAMP != 1:
        return
    e(f"s_memtime s[86:87]")
    e("s_waitcnt lgkmcnt(0)")
    e(f"s_mov_b32 s{70+i}, s86")


def stamp_rt(e, i):
    if not STAMP:
        return
    e(f"s_memrealtime s[86:87]")
    e("s_waitcnt lgkmcnt(0)")
    e(f"s_mov_b32 s{70+i}, s86")


def stamp_store(e, kidx, sWave, srdws, n=12):
    if not STAMP:
        return
    if STAMP == 2:
        e(f"s_cmp_lg_u32 {sWave}, 0")
        e(f"s_cbranch_scc1 dbg_skip{kidx}")
        e("s_load_dwordx2 s[88:89], s[0:1], 72")
        e("s_waitcnt lgkmcnt(0)")
        e(f"s_add_u32 s88, s88, {512*(3-kidx)}")
        e("s_addc_u32 s89, s89, 0")
        e("s_and_b32 s89, s89, 0xffff")
        e("s_mov_b32 s90, 256")
        e("s_mov_b32 s91, 0x00020000")
        e("v_mov_b32 v1, 0")
        e("s_not_b32 s80, s80")
        e("v_mov_b32 v2, s80")
        e("v_mov_b32 v3, s81")
        e("s_mov_b64 exec, 1")
        e(f"buffer_atomic_umax v2, v1, s[88:91], 0 offen offset:{8*kidx}")
        e(f"buffer_atomic_umax v3, v1, s[88:91], 0 offen offset:{8*kidx+4}")
        e("s_waitcnt vmcnt(0)")
        e(f"dbg_skip{kidx}:")
        return
    e("s_getreg_b32 s78, hwreg(HW_REG_XCC_ID)")
    e("s_getreg_b32 s79, hwreg(HW_REG_HW_ID)")
    e(f"s_lshl_b32 s86, s2, 4")
    e(f"s_add_u32 s86, s86, {sWave}")
    e(f"s_lshl_b32 s86, s86, 6")
    e(f"s_add_u32 s86, s86, {STAMP_OFF + kidx * 0x100000}")
    e("v_mov_b32 v1, 0")
    for i in range(n):
        e(f"v_mov_b32 v2, s{70+i}")
        e(f"buffer_store_dword v2, v1, s[{srdws}:{srdws+3}], s86 offen offset:{4*i}")


def kernel_head(e, name):
    e(f".p2align 8")
    e(f".globl {name}")
    e(f".type {name},@function")
    e(f"{name}:")


def kd(name, vgpr, sgpr=96):
    acc = (vgpr + 3) // 4 * 4
    return f""".amdhsa_kernel {name}
  .amdhsa_next_free_vgpr {vgpr}
  .amdhsa_next_free_sgpr {sgpr}
  .amdhsa_accum_offset {acc}
  .amdhsa_group_segment_fixed_size 0
  .amdhsa_kernarg_size 88
  .amdhsa_user_sgpr_count 2
  .amdhsa_user_sgpr_kernarg_segment_ptr 1
  .amdhsa_system_sgpr_workgroup_id_x 1
.end_amdhsa_kernel
"""


def wave_sum(e, v, sdst):
    for sh in (1, 2, 4, 8):
        e("s_nop 1")
        e(f"v_add_f32_dpp v{v}, v{v}, v{v} row_shr:{sh} row_mask:0xf bank_mask:0xf bound_ctrl:0")
    e("s_nop 1")
    e(f"v_add_f32_dpp v{v}, v{v}, v{v} row_bcast:15 row_mask:0xa bank_mask:0xf")
    e("s_nop 1")
    e(f"v_add_f32_dpp v{v}, v{v}, v{v} row_bcast:31 row_mask:0xc bank_mask:0xf")
    e("s_nop 1")
    e(f"v_readlane_b32 s{sdst}, v{v}, 63")
    e("s_nop 1")


def bf16r(e, v, t):
    e(f"v_cvt_pk_bf16_f32 v{t}, v{v}, v{v}")
    e(f"v_lshlrev_b32 v{v}, 16, v{t}")


def gen_ln(e):
    kernel_head(e, "ln_kernel")
    e("""
    s_cmp_ge_u32 s2, 768
    s_cbranch_scc1 ln_done
    s_cmp_ge_u32 s2, 256
    s_cbranch_scc1 ln_main
    """)
    e("""
    s_load_dwordx2 s[4:5], s[0:1], 8
    s_load_dwordx2 s[6:7], s[0:1], 32
    s_load_dwordx2 s[8:9], s[0:1], 48
    s_load_dwordx2 s[10:11], s[0:1], 16
    v_lshrrev_b32 v1, 6, v0
    v_and_b32 v0, 63, v0
    v_lshlrev_b32 v2, 4, v0
    v_readfirstlane_b32 s20, v1
    s_and_b32 s21, s2, 7
    s_lshr_b32 s22, s2, 3
    s_lshr_b32 s23, s21, 2
    s_and_b32 s24, s21, 1
    s_waitcnt lgkmcnt(0)
    s_cmp_eq_u32 s23, 0
    s_cselect_b32 s12, s4, s6
    s_cselect_b32 s13, s5, s7
    """)
    csel(e, "s25", 3840, 3456)
    csel(e, "s14", 640*3840, 640*3456)
    csel(e, "s26", 2048, 1792)
    e("s_and_b32 s13, s13, 0xffff")
    e("s_mov_b32 s15, 0x00020000")
    e("s_mul_i32 s27, s22, 20")
    e("s_mul_i32 s28, s20, 5")
    e("s_add_u32 s27, s27, s28")
    e("s_mul_i32 s27, s27, s25")
    e("s_mul_i32 s28, s24, s26")
    e("s_add_u32 s27, s27, s28")
    for r in range(5):
        e(f"buffer_load_dwordx4 v[{4+8*r}:{7+8*r}], v2, s[12:15], s27 offen")
        e(f"buffer_load_dwordx4 v[{8+8*r}:{11+8*r}], v2, s[12:15], s27 offen offset:1024")
        e("s_add_u32 s27, s27, s25")
    srd(e, 16, "s8", "s9", 1728 * 1280)
    srd(e, 28, "s10", "s11", 640 * 1280)
    e("s_lshl_b32 s27, s2, 2")
    e("s_add_u32 s27, s27, s20")
    e("s_lshl_b32 s27, s27, 10")
    e("buffer_load_dwordx4 v[44:47], v2, s[28:31], s27 offen")
    e("buffer_load_dwordx4 v[4:7], v2, s[16:19], s27 offen")
    e("s_add_u32 s27, s27, 0x100000")
    e("buffer_load_dwordx4 v[8:11], v2, s[16:19], s27 offen")
    e("s_add_u32 s27, s27, 0x100000")
    e("buffer_load_dwordx4 v[12:15], v2, s[16:19], s27 offen")
    e("s_waitcnt vmcnt(0)")
    e("s_endpgm")
    e("""
    ln_main:
    s_sub_u32 s2, s2, 256
    s_load_dwordx2 s[4:5], s[0:1], 0
    s_load_dwordx2 s[6:7], s[0:1], 80
    v_lshrrev_b32 v1, 6, v0
    v_and_b32 v0, 63, v0
    v_lshlrev_b32 v2, 4, v0
    v_readfirstlane_b32 s20, v1
    v_lshlrev_b32 v3, 2, v0
    s_lshl_b32 s21, s2, 2
    s_nop 1
    s_add_u32 s21, s21, s20
    s_mul_i32 s22, s21, 1280
    s_waitcnt lgkmcnt(0)
    """)
    srd(e, 8, "s4", "s5", 2048 * 1280)
    srd(e, 12, "s6", "s7", WS_BYTES)
    stamp_rt(e, 10)
    stamp(e, 0)
    e("""
    buffer_load_dwordx4 v[4:7], v2, s[8:11], s22 offen
    buffer_load_dword v8, v3, s[8:11], s22 offen offset:1024
    s_lshr_b32 s23, s21, 5
    s_and_b32 s24, s21, 31
    s_lshl_b32 s23, s23, 10
    s_lshl_b32 s24, s24, 4
    s_add_u32 s23, s23, s24
    """)
    e(f"s_add_u32 s25, s23, {Y_OFF}")
    e(f"s_add_u32 s23, s23, {XN_OFF}")
    e("""
    v_lshrrev_b32 v40, 1, v0
    v_lshlrev_b32 v40, 16, v40
    v_and_b32 v42, 1, v0
    v_lshlrev_b32 v42, 9, v42
    v_add_u32 v40, v40, v42
    v_lshrrev_b32 v41, 3, v0
    v_add_u32 v41, 32, v41
    v_lshlrev_b32 v41, 16, v41
    v_bfe_u32 v42, v0, 2, 1
    v_lshlrev_b32 v42, 9, v42
    v_add_u32 v41, v41, v42
    v_and_b32 v42, 3, v0
    v_lshlrev_b32 v42, 2, v42
    v_add_u32 v41, v41, v42
    """)
    e(f"v_mov_b32 v38, 0x{f32bits(1.0/640.0):08x}")
    e(f"v_mov_b32 v39, 0x{f32bits(1e-5):08x}")
    e("s_waitcnt vmcnt(0)")
    F = list(range(10, 20))
    E_ = list(range(20, 30))
    P = [4, 5, 6, 7, 8]

    def unpack():
        for i in range(5):
            e(f"v_lshlrev_b32 v{F[2*i]}, 16, v{P[i]}")
            e(f"v_and_b32 v{F[2*i+1]}, 0xffff0000, v{P[i]}")

    def ln(soff):
        e(f"v_add_f32 v30, v{F[0]}, v{F[1]}")
        e(f"v_add_f32 v31, v{F[2]}, v{F[3]}")
        e(f"v_add_f32 v32, v{F[4]}, v{F[5]}")
        e(f"v_add_f32 v33, v{F[6]}, v{F[7]}")
        e(f"v_add_f32 v34, v{F[8]}, v{F[9]}")
        e("v_add_f32 v30, v30, v31")
        e("v_add_f32 v32, v32, v33")
        e("v_add_f32 v30, v30, v34")
        e("v_add_f32 v30, v30, v32")
        wave_sum(e, 30, 26)
        e("v_mul_f32 v31, s26, v38")
        for i in range(10):
            e(f"v_sub_f32 v{E_[i]}, v{F[i]}, v31")
        e(f"v_mul_f32 v30, v{E_[0]}, v{E_[0]}")
        e(f"v_mul_f32 v32, v{E_[1]}, v{E_[1]}")
        for i in range(2, 10, 2):
            e(f"v_fmac_f32 v30, v{E_[i]}, v{E_[i]}")
            e(f"v_fmac_f32 v32, v{E_[i+1]}, v{E_[i+1]}")
        e("v_add_f32 v30, v30, v32")
        wave_sum(e, 30, 26)
        e("v_mul_f32 v32, s26, v38")
        bf16r(e, 31, 33)
        bf16r(e, 32, 33)
        e("v_add_f32 v32, v32, v39")
        bf16r(e, 32, 33)
        e("v_sqrt_f32 v32, v32")
        e("s_nop 0")
        bf16r(e, 32, 33)
        e("v_rcp_f32 v32, v32")
        for i in range(10):
            e(f"v_sub_f32 v{E_[i]}, v{F[i]}, v31")
        for i in range(5):
            e(f"v_cvt_pk_bf16_f32 v{P[i]}, v{E_[2*i]}, v{E_[2*i+1]}")
        unpack()
        for i in range(10):
            e(f"v_mul_f32 v{F[i]}, v{F[i]}, v32")
        for i in range(5):
            e(f"v_cvt_pk_bf16_f32 v{P[i]}, v{F[2*i]}, v{F[2*i+1]}")
        e(f"buffer_store_dwordx4 v[4:7], v40, s[12:15], {soff} offen")
        e(f"buffer_store_dword v8, v41, s[12:15], {soff} offen")

    unpack()
    ln("s23")
    unpack()
    e("s_nop 1")
    ln("s25")
    if STAMP:
        for i in range(1, 5):
            stamp(e, i)
        e("s_waitcnt vmcnt(0)")
        stamp(e, 5)
        stamp_rt(e, 11)
        stamp_store(e, 0, "s20", 12)
    e("ln_done:")
    e("s_endpgm")
    return kd("ln_kernel", 48, 96)


class Gemm:
    def __init__(self, pfx, NWM, NWN, TM, TN, KGS, NBUF, KG, korder, NL, vbase, sbase, lds_base=0):
        self.pfx = pfx
        self.NWM, self.NWN, self.TM, self.TN = NWM, NWN, TM, TN
        self.KGS, self.NBUF, self.KG, self.korder, self.NL = KGS, NBUF, KG, korder, NL
        self.NW = NWM * NWN
        self.BM = NWM * TM * 32
        self.BN = NWN * TN * 32
        self.NT = self.BM // 32
        self.pitch = self.BN * 2
        self.ASB = self.NT * KGS * 1024
        self.BSB = KGS * 16 * self.pitch
        self.SB = self.ASB + self.BSB
        self.lds_base = lds_base
        self.lds_bytes = self.SB * NBUF
        assert KG % KGS == 0
        self.NST = KG // KGS
        self.rpi = 1024 // self.pitch
        ops = []
        for kg in range(KGS):
            for tg in range(0, self.NT, 4):
                for i in range(min(4, self.NT - tg)):
                    ops.append(('A', kg * self.NT * 1024 + tg * 1024, kg * 65536 + tg * 1024, i * 1024))
        for i in range(self.BSB // 1024):
            ops.append(('B', self.ASB + i * 1024, i, 0))
        assert len(ops) % NL == 0, (len(ops), NL)
        self.D = len(ops) // NL
        self.lops = [ops[k * self.D:(k + 1) * self.D] for k in range(NL)]
        assert (NBUF - 1) * self.D <= 63
        v = vbase
        self.acc = v; v += TM * TN * 16
        self.fr = []
        for p in range(2):
            a = [v + 4 * j for j in range(TM)]; v += 4 * TM
            b = [v + 4 * j for j in range(TN)]; v += 4 * TN
            self.fr.append((a, b))
        self.vA0 = v; v += 1
        self.vB0 = [v + j for j in range(TN)]; v += TN
        self.vA = v; v += 1
        self.vB = [v + j for j in range(TN)]; v += TN
        self.vDA = v; v += 1
        self.vDB = v; v += 1
        self.vDB2 = v; v += 1
        self.vt = v; v += 4
        self.vend = (v + 3) // 4 * 4
        s = sbase
        self.sRd = s; s += 1
        self.sWr = s; s += 1
        self.sAo = s; s += 1
        self.sBo = s; s += 1
        self.sBinc = s; s += 1
        self.sBstep = s; s += 1
        self.sCnt = s; s += 1
        self.sIss = s; s += 1
        self.st = s; s += 4
        self.send = s

    def accr(self, tm, tn):
        return self.acc + (tm * self.TN + tn) * 16

    def loader_setup(self, e, sLdw, sA0):
        t = self.vt
        ppr = self.pitch // 16
        lgp = int(math.log2(ppr))
        e(f"v_lshlrev_b32 v{self.vDA}, 4, v0")
        e(f"v_lshrrev_b32 v{t}, {lgp}, v0")
        e(f"v_and_b32 v{t+1}, {ppr-1}, v0")
        e(f"v_lshrrev_b32 v{t+2}, 2, v{t+1}")
        if self.pitch == 256:
            e(f"v_and_b32 v{t+3}, 3, v{t}")
        else:
            e(f"v_bfe_u32 v{t+3}, v{t}, 1, 1")
        e(f"v_xor_b32 v{t+2}, v{t+2}, v{t+3}")
        e(f"v_and_b32 v{t+1}, 3, v{t+1}")
        e(f"v_lshlrev_b32 v{t+1}, 4, v{t+1}")
        e(f"v_lshl_add_u32 v{t+1}, v{t+2}, 6, v{t+1}")
        e(f"v_mul_lo_u32 v{t+2}, v{t}, {sLdw}")
        e(f"v_add_u32 v{self.vDB}, v{t+2}, v{t+1}")
        e(f"s_mul_i32 s{self.sBinc}, {sLdw}, {16*self.KGS}")
        e(f"s_mul_i32 s{self.sBstep}, {sLdw}, {self.rpi}")
        e(f"s_mov_b32 s{self.sAo}, {sA0}")
        e(f"s_mov_b32 s{self.sBo}, 0")
        e(f"s_mov_b32 s{self.sIss}, 0")
        e(f"s_mov_b32 s{self.sWr}, {self.lds_base}")

    def issue(self, e, k, SA, SBd):
        st = self.st
        rep = int(os.environ.get('REP', '1'))
        e(f"s_cmp_lt_u32 s{self.sIss}, {self.NST}")
        e(f"s_cselect_b32 s{st+1}, s{self.sAo}, 0x7ff00000")
        e(f"s_cselect_b32 s{st+2}, s{self.sBo}, 0x7ff00000")
        cur = None
        lastb = 0
        for kind, lo, gd, io in self.lops[k]:
            if kind == 'A':
                if cur != ('A', lo):
                    e(f"s_add_u32 m0, s{self.sWr}, {lo}")
                    e(f"s_add_u32 s{st}, s{st+1}, {gd}")
                    cur = ('A', lo)
                off = f" offset:{io}" if io else ""
                e(f"buffer_load_dwordx4 v{self.vDA}, s[{SA}:{SA+3}], s{st} offen{off} lds")
            else:
                e(f"s_add_u32 m0, s{self.sWr}, {lo}")
                if gd != lastb:
                    if gd - lastb == 1:
                        e(f"s_add_u32 s{st+2}, s{st+2}, s{self.sBstep}")
                    else:
                        e(f"s_mul_i32 s{st+3}, s{self.sBstep}, {gd-lastb}")
                        e(f"s_add_u32 s{st+2}, s{st+2}, s{st+3}")
                    lastb = gd
                else:
                    e("s_nop 0")
                e(f"buffer_load_dwordx4 v{self.vDB}, s[{SBd}:{SBd+3}], s{st+2} offen lds")
                cur = None
        e(f"s_add_u32 s{self.sAo}, s{self.sAo}, {self.KGS*65536}")
        e(f"s_add_u32 s{self.sBo}, s{self.sBo}, s{self.sBinc}")
        e(f"s_add_u32 s{self.sIss}, s{self.sIss}, 1")
        e(f"s_add_u32 s{self.sWr}, s{self.sWr}, {self.SB}")
        e(f"s_cmp_eq_u32 s{self.sWr}, {self.lds_base + self.SB*self.NBUF}")
        e(f"s_cselect_b32 s{self.sWr}, {self.lds_base}, s{self.sWr}")

    def loader(self, e, k, SA, SBd, endlabel):
        L = f"{self.pfx}_ld{k}_loop"
        self.issue(e, k, SA, SBd)
        self.issue(e, k, SA, SBd)
        e(f"s_waitcnt vmcnt({self.D})")
        e("s_barrier")
        for s_ in range(2, self.NBUF - 1):
            self.issue(e, k, SA, SBd)
        e(f"s_mov_b32 s{self.sCnt}, {self.NST}")
        e(f"{L}:")
        e(f"s_waitcnt vmcnt({(self.NBUF-3)*self.D})")
        e("s_barrier")
        if not os.environ.get("NODMA"):
            self.issue(e, k, SA, SBd)
        e(f"s_sub_u32 s{self.sCnt}, s{self.sCnt}, 1")
        e(f"s_cmp_lg_u32 s{self.sCnt}, 0")
        e(f"s_cbranch_scc1 {L}")
        e(f"s_branch {endlabel}")

    def setup(self, e, sWave):
        t = self.vt
        TM, TN, KGS = self.TM, self.TN, self.KGS
        st = self.st
        lg = int(math.log2(self.NWN))
        e(f"s_lshr_b32 s{st}, {sWave}, {lg}")
        e(f"s_and_b32 s{st+1}, {sWave}, {self.NWN-1}")
        e(f"v_lshlrev_b32 v{self.vDA}, 4, v0")
        e(f"s_mul_i32 s{st}, s{st}, {TM*1024}")
        e(f"s_add_u32 s{st}, s{st}, {self.lds_base}")
        e(f"v_add_u32 v{self.vA0}, s{st}, v{self.vDA}")
        e(f"v_bfe_u32 v{t}, v0, 2, 2")
        e(f"v_lshrrev_b32 v{t+1}, 5, v0")
        hmul = 8 if self.korder == 'nat' else 4
        e(f"v_mad_u32_u24 v{t+1}, v{t+1}, {hmul}, v{t}")
        e(f"v_mul_u32_u24 v{t+1}, {self.pitch}, v{t+1}")
        e(f"v_bfe_u32 v{t+2}, v0, 4, 1")
        e(f"v_lshl_add_u32 v{t+1}, v{t+2}, 5, v{t+1}")
        e(f"v_and_b32 v{t+2}, 3, v0")
        e(f"v_lshl_add_u32 v{t+1}, v{t+2}, 3, v{t+1}")
        e(f"v_add_u32 v{t+1}, {self.lds_base + self.ASB}, v{t+1}")
        if self.pitch == 128:
            e(f"v_lshrrev_b32 v{t}, 1, v{t}")
        for j in range(TN):
            e(f"s_mul_i32 s{st}, s{st+1}, {TN}")
            e(f"s_add_u32 s{st}, s{st}, {j}")
            e(f"v_xor_b32 v{t+2}, s{st}, v{t}")
            e(f"v_lshl_add_u32 v{self.vB0[j]}, v{t+2}, 6, v{t+1}")
        e(f"s_mov_b32 s{self.sRd}, 0")

    def reads(self, e, p, kg):
        a, b = self.fr[p]
        ra = [f"ds_read_b128 v[{a[j]}:{a[j]+3}], v{self.vA} offset:{kg*self.NT*1024 + j*1024}" for j in range(self.TM)]
        tmul = 4 if self.korder == 'nat' else 8
        rb = []
        for j in range(self.TN):
            for t in range(2):
                rb.append(f"ds_read_b64_tr_b16 v[{b[j]+2*t}:{b[j]+2*t+1}], v{self.vB[j]} offset:{(kg*16 + t*tmul)*self.pitch}")
        return ra[:1] + rb + ra[1:]

    def nreads(self):
        return self.TM + 2 * self.TN

    def mfmas(self, p, orient):
        a, b = self.fr[p]
        out = []
        for tm in range(self.TM):
            for tn in range(self.TN):
                d = self.accr(tm, tn)
                if orient == 'n':
                    s0, s1 = b[tn], a[tm]
                else:
                    s0, s1 = a[tm], b[tn]
                out.append(f"v_mfma_f32_32x32x16_bf16 v[{d}:{d+15}], v[{s0}:{s0+3}], v[{s1}:{s1+3}], v[{d}:{d+15}]")
        return out

    def set_bases(self, e):
        e(f"v_add_u32 v{self.vA}, s{self.sRd}, v{self.vA0}")
        for j in range(self.TN):
            e(f"v_add_u32 v{self.vB[j]}, s{self.sRd}, v{self.vB0[j]}")

    def adv_rd(self, e):
        e(f"s_add_u32 s{self.sRd}, s{self.sRd}, {self.SB}")
        e(f"s_cmp_eq_u32 s{self.sRd}, {self.SB*self.NBUF}")
        e(f"s_cselect_b32 s{self.sRd}, 0, s{self.sRd}")

    def main(self, e, orient, tag, after_first=None):
        L = f"{self.pfx}_{tag}_loop"
        self.set_bases(e)
        e(f"s_mov_b32 s{self.sCnt}, {self.NST}")
        stamp(e, 1)
        e("s_barrier")
        stamp(e, 2)
        for r in self.reads(e, 0, 0):
            e(r)
        if after_first:
            after_first()
        e(f"{L}:")
        e("s_barrier")
        nr = self.nreads()
        for kg in range(self.KGS):
            p = kg & 1
            last = kg == self.KGS - 1
            rd = self.reads(e, p ^ 1, 0 if last else kg + 1)
            mf = self.mfmas(p, orient)
            need = []
            for tm in range(self.TM):
                for tn in range(self.TN):
                    nb = 1 + 2 * (tn + 1)
                    na = 1 if tm == 0 else 1 + 2 * self.TN + tm
                    need.append(max(nb, na))
            nm = len(mf)
            gaps = max(1, nm - 2) if nm > 2 else 1
            per = (nr + gaps - 1) // gaps
            issued = 0
            have = 0
            for i in range(nm):
                if need[i] > have:
                    if not os.environ.get("NOLDS"):
                        e(f"s_waitcnt lgkmcnt({nr - need[i] + issued})")
                    have = need[i]
                if not os.environ.get("NOMFMA"):
                    e(mf[i])
                if i == 0 and last:
                    self.adv_rd(e)
                    self.set_bases(e)
                for r in rd[issued:issued + per]:
                    if not os.environ.get("NOLDS"):
                        e(r)
                issued = min(nr, issued + per)
            assert issued == nr
        e(f"s_sub_u32 s{self.sCnt}, s{self.sCnt}, 1")
        e(f"s_cmp_lg_u32 s{self.sCnt}, 0")
        e(f"s_cbranch_scc1 {L}")
        e("s_waitcnt lgkmcnt(0)")
        e("s_nop 15")
        stamp(e, 3)


def load_bias_init(e, g, srdB, sN0, tmp):
    e(f"v_lshrrev_b32 v{g.vt}, 5, v0")
    e(f"v_lshlrev_b32 v{g.vt}, 3, v{g.vt}")
    for tn in range(g.TN):
        for gg in range(4):
            r = tmp + (tn * 4 + gg) * 2
            e(f"buffer_load_dwordx2 v[{r}:{r+1}], v{g.vt}, s[{srdB}:{srdB+3}], {sN0} offen offset:{(tn*32+gg*8)*2}")


def finish_bias_init(e, g, tmp):
    for tn in range(g.TN):
        for gg in range(4):
            r = tmp + (tn * 4 + gg) * 2
            for tm in range(g.TM):
                d = g.accr(tm, tn) + gg * 4
                e(f"v_lshlrev_b32 v{d}, 16, v{r}")
                e(f"v_and_b32 v{d+1}, 0xffff0000, v{r}")
                e(f"v_lshlrev_b32 v{d+2}, 16, v{r+1}")
                e(f"v_and_b32 v{d+3}, 0xffff0000, v{r+1}")


K1_KGS = 2
K1_NBUF = 6


def gen_k1(e):
    g = Gemm("k1", NWM=4, NWN=2, TM=2, TN=2, KGS=K1_KGS, NBUF=K1_NBUF, KG=40, korder='nat', NL=2, vbase=8, sbase=40)
    kernel_head(e, "gemm1_kernel")
    e("""
    s_cmp_ge_u32 s2, 256
    s_cbranch_scc1 k1_done
    s_load_dwordx2 s[4:5], s[0:1], 80
    s_load_dwordx2 s[6:7], s[0:1], 8
    s_load_dwordx2 s[8:9], s[0:1], 32
    s_load_dwordx2 s[10:11], s[0:1], 40
    v_lshrrev_b32 v1, 6, v0
    v_and_b32 v0, 63, v0
    s_and_b32 s20, s2, 7
    v_readfirstlane_b32 s24, v1
    s_lshr_b32 s21, s2, 3
    s_and_b32 s22, s21, 3
    s_lshr_b32 s21, s21, 2
    s_lshr_b32 s26, s20, 2
    s_bfe_u32 s23, s20, 0x10001
    s_lshl_b32 s23, s23, 2
    s_add_u32 s23, s23, s22
    s_and_b32 s27, s20, 1
    """)
    e("""
    s_cmp_eq_u32 s26, 0
    s_cselect_b32 s25, 8, 7
    s_mul_i32 s25, s25, s27
    s_add_u32 s25, s25, s21
    s_cmp_eq_u32 s26, 0
    s_cselect_b32 s27, 15, 14
    s_cselect_b32 s28, 8, 7
    s_cmp_ge_u32 s25, s27
    s_cbranch_scc1 k1_done
    s_cmp_ge_u32 s21, s28
    s_cbranch_scc1 k1_done
    s_lshl_b32 s28, s25, 8
    s_waitcnt lgkmcnt(0)
    """)
    srd(e, 36, "s4", "s5", WS_BYTES)
    stamp_rt(e, 10)
    stamp(e, 0)
    e("s_cmp_lt_u32 s24, 8")
    e("s_cbranch_scc1 k1_compute")
    e("""
    s_cmp_eq_u32 s26, 0
    s_cselect_b32 s30, s6, s8
    s_cselect_b32 s31, s7, s9
    """)
    csel(e, "s29", 3840, 3456)
    csel(e, "s32", XN_OFF, Y_OFF)
    csel(e, "s33", 640*3840, 640*3456)
    e("""
    s_add_u32 s16, s30, s28
    s_addc_u32 s17, s31, 0
    s_and_b32 s17, s17, 0xffff
    s_sub_u32 s18, s33, s28
    s_mov_b32 s19, 0x00020000
    s_add_u32 s12, s4, s32
    s_addc_u32 s13, s5, 0
    s_and_b32 s13, s13, 0xffff
    """)
    e(f"s_mov_b32 s14, {FR}")
    e("s_mov_b32 s15, 0x00020000")
    e("s_lshl_b32 s34, s23, 13")
    g.loader_setup(e, "s29", "s34")
    e("s_cmp_eq_u32 s24, 9")
    e("s_cbranch_scc1 k1_ld1")
    g.loader(e, 0, 12, 16, "k1_end")
    e("k1_ld1:")
    g.loader(e, 1, 12, 16, "k1_end")
    e("k1_compute:")
    g.setup(e, "s24")
    sWM, sWN = g.send, g.send + 1
    e(f"s_lshr_b32 s{sWM}, s24, 1")
    e(f"s_and_b32 s{sWN}, s24, 1")
    sT = (g.send + 2 + 3) // 4 * 4 + 2
    tmpv = g.vend
    e("s_cmp_eq_u32 s26, 0")
    e("s_cbranch_scc1 k1_qkv")
    srd(e, sT + 2, "s10", "s11", 1728 * 2)
    assert (sT + 2) % 4 == 0, sT
    e(f"s_lshl_b32 s{sT}, s{sWN}, 7")
    e(f"s_add_u32 s{sT}, s{sT}, s28")
    load_bias_init(e, g, sT + 2, f"s{sT}", tmpv)
    e(f"s_waitcnt vmcnt(0)")
    finish_bias_init(e, g, tmpv)
    g.main(e, 'n', 'mlp')
    e(f"s_lshl_b32 s{sT}, s{sWN}, 6")
    e(f"s_lshr_b32 s{sT+1}, s28, 1")
    e(f"s_add_u32 s{sT}, s{sT}, s{sT+1}")
    e(f"s_cmp_ge_u32 s{sT}, 1728")
    e("s_cbranch_scc1 k1_end")
    e(f"s_lshl_b32 s{sT+1}, s23, 3")
    e(f"s_lshl_b32 s{sT+6}, s{sWM}, 1")
    e(f"s_add_u32 s{sT+1}, s{sT+1}, s{sT+6}")
    e(f"s_lshr_b32 s{sT}, s{sT}, 4")
    e(f"s_lshl_b32 s{sT}, s{sT}, 6")
    e(f"s_add_u32 s{sT}, s{sT}, s{sT+1}")
    e(f"s_lshl_b32 s{sT}, s{sT}, 10")
    e(f"s_add_u32 s{sT}, s{sT}, {H_OFF}")
    for i in range(1, 4):
        e(f"s_add_u32 s{sT+i}, s{sT}, {65536*i}")
    c0 = -2.0 * math.sqrt(2.0 / math.pi) * 1.4426950408889634
    c1 = c0 * 0.044715
    e(f"v_mov_b32 v{tmpv}, 0x{f32bits(c0):08x}")
    e(f"v_mov_b32 v{tmpv+1}, 0x{f32bits(c1):08x}")
    for tm in range(2):
        for tn in range(2):
            a = g.accr(tm, tn)
            for half in range(2):
                t = tmpv + 4 + 8 * ((tm * 4 + tn * 2 + half) & 1)
                pk = tmpv + 20 + 4 * ((tm * 4 + tn * 2 + half) & 1)
                r0 = a + half * 8
                for i in range(8):
                    e(f"v_mul_f32 v{t+i}, v{r0+i}, v{r0+i}")
                for i in range(8):
                    e(f"v_fma_f32 v{t+i}, v{t+i}, v{tmpv+1}, v{tmpv}")
                for i in range(8):
                    e(f"v_mul_f32 v{t+i}, v{t+i}, v{r0+i}")
                for i in range(8):
                    e(f"v_exp_f32 v{t+i}, v{t+i}")
                for i in range(8):
                    e(f"v_add_f32 v{t+i}, 1.0, v{t+i}")
                for i in range(8):
                    e(f"v_rcp_f32 v{t+i}, v{t+i}")
                for i in range(8):
                    e(f"v_mul_f32 v{t+i}, v{t+i}, v{r0+i}")
                for i in range(4):
                    e(f"v_cvt_pk_bf16_f32 v{pk+i}, v{t+2*i}, v{t+2*i+1}")
                so = sT + tn * 2 + half
                e(f"buffer_store_dwordx4 v[{pk}:{pk+3}], v{g.vDA}, s[36:39], s{so} offen offset:{tm*1024}")
    e("s_branch k1_end")
    e("k1_qkv:")
    for i in range(64):
        e(f"v_mov_b32 v{g.acc+i}, 0")
    e("s_cmp_ge_u32 s25, 10")
    e("s_cbranch_scc1 k1_v")
    g.main(e, 'n', 'qk')
    qs = (20 ** -0.5) * 1.4426950408889634
    e("s_cmp_lt_u32 s25, 5")
    e(f"s_cselect_b32 s{sT}, 0x{f32bits(qs):08x}, 1.0")
    csel(e, f"s{sT+1}", 1280, 2560)
    csel(e, f"s{sT+6}", QF_OFF, KV_OFF)
    e(f"s_cselect_b32 s{sT+7}, 0, 5")
    e(f"s_sub_u32 s{sT+7}, s25, s{sT+7}")
    e(f"s_lshl_b32 s{sT+7}, s{sT+7}, 5")
    e(f"s_lshl_b32 s{sT+2}, s{sWN}, 4")
    e(f"s_add_u32 s{sT+7}, s{sT+7}, s{sT+2}")
    e(f"s_lshl_b32 s{sT+2}, s23, 3")
    e(f"s_lshl_b32 s{sT+3}, s{sWM}, 1")
    e(f"s_add_u32 s{sT+2}, s{sT+2}, s{sT+3}")
    e(f"s_mul_i32 s{sT+2}, s{sT+2}, s{sT+1}")
    e(f"s_add_u32 s{sT+2}, s{sT+2}, s{sT+6}")
    e(f"s_add_u32 s{sT+3}, s{sT+2}, s{sT+1}")
    e(f"s_lshl_b32 s{sT+4}, s{sT+1}, 6")
    t = tmpv
    e(f"v_lshrrev_b32 v{t}, 5, v0")
    e(f"v_add_u32 v{t}, s{sT+7}, v{t}")
    e(f"v_and_b32 v{t+1}, 31, v0")
    e(f"v_lshlrev_b32 v{t+2}, 4, v{t+1}")
    e(f"v_lshlrev_b32 v{t+3}, 3, v{t+1}")
    for tn in range(2):
        for gg in range(4):
            c, hd, j, ad = t + 4, t + 5, t + 6, t + 7
            e(f"v_add_u32 v{c}, {8*tn+2*gg}, v{t}")
            e(f"v_mul_u32_u24 v{hd}, 205, v{c}")
            e(f"v_lshrrev_b32 v{hd}, 10, v{hd}")
            e(f"v_mul_u32_u24 v{j}, 5, v{hd}")
            e(f"v_sub_u32 v{j}, v{c}, v{j}")
            e(f"v_cmp_eq_u32 vcc, 4, v{j}")
            e(f"v_mul_lo_u32 v{ad}, v{hd}, s{sT+4}")
            e(f"v_lshrrev_b32 v{c}, 1, v{j}")
            e(f"v_lshl_add_u32 v{ad}, v{c}, 9, v{ad}")
            e(f"v_and_b32 v{c}, 1, v{j}")
            e(f"v_lshl_add_u32 v{ad}, v{c}, 3, v{ad}")
            e(f"v_cndmask_b32 v{c}, v{t+2}, v{t+3}, vcc")
            e(f"v_add_u32 v{ad}, v{ad}, v{c}")
            for tm in range(2):
                a = g.accr(tm, tn) + gg * 4
                pk = t + 8 + 2 * tm
                for i in range(4):
                    e(f"v_mul_f32 v{a+i}, s{sT}, v{a+i}")
                e(f"v_cvt_pk_bf16_f32 v{pk}, v{a}, v{a+1}")
                e(f"v_cvt_pk_bf16_f32 v{pk+1}, v{a+2}, v{a+3}")
                e(f"buffer_store_dwordx2 v[{pk}:{pk+1}], v{ad}, s[36:39], s{sT+2+tm} offen")
    e("s_branch k1_end")
    e("k1_v:")
    g.main(e, 't', 'v')
    e(f"s_sub_u32 s{sT}, s25, 10")
    e(f"s_lshl_b32 s{sT}, s{sT}, 7")
    e(f"s_lshl_b32 s{sT+1}, s{sWN}, 6")
    e(f"s_add_u32 s{sT}, s{sT}, s{sT+1}")
    e(f"s_lshl_b32 s{sT+2}, s23, 3")
    e(f"s_lshl_b32 s{sT+3}, s{sWM}, 1")
    e(f"s_add_u32 s{sT+2}, s{sT+2}, s{sT+3}")
    e(f"s_mul_i32 s{sT+2}, s{sT+2}, 2560")
    e(f"s_add_u32 s{sT+2}, s{sT+2}, {KV_OFF + 1280}")
    e(f"s_mov_b32 s{sT+4}, {64*2560}")
    t = tmpv
    e(f"v_and_b32 v{t}, 31, v0")
    e(f"v_add_u32 v{t}, s{sT}, v{t}")
    e(f"v_lshrrev_b32 v{t+1}, 5, v0")
    e(f"v_mul_u32_u24 v{t+1}, 320, v{t+1}")
    for tn in range(2):
        c, hd, d, ad = t + 4, t + 5, t + 6, t + 7
        e(f"v_add_u32 v{c}, {32*tn}, v{t}")
        e(f"v_mul_u32_u24 v{hd}, 3277, v{c}")
        e(f"v_lshrrev_b32 v{hd}, 16, v{hd}")
        e(f"v_mul_u32_u24 v{d}, 20, v{hd}")
        e(f"v_sub_u32 v{d}, v{c}, v{d}")
        e(f"v_mul_lo_u32 v{ad}, v{hd}, s{sT+4}")
        e(f"v_lshl_add_u32 v{ad}, v{d}, 4, v{ad}")
        e(f"v_add_u32 v{ad}, v{ad}, v{t+1}")
        for tm in range(2):
            a = g.accr(tm, tn)
            for half in range(2):
                pk = t + 8 + 4 * ((tm * 2 + half) & 1)
                for i in range(4):
                    e(f"v_cvt_pk_bf16_f32 v{pk+i}, v{a+half*8+2*i}, v{a+half*8+2*i+1}")
                e(f"buffer_store_dwordx4 v[{pk}:{pk+3}], v{ad}, s[36:39], s{sT+2} offen offset:{tm*2560+half*640}")
    e("k1_end:")
    stamp(e, 4)
    e("s_waitcnt vmcnt(0)")
    stamp(e, 5)
    stamp_rt(e, 11)
    stamp_store(e, 1, "s24", 36)
    e("k1_done:")
    e("s_endpgm")
    nv = tmpv + 28
    return kd("gemm1_kernel", nv, 96), g.lds_bytes


AT_STAGE = 8 * 2560
K2_KGS = 2
K2_NBUF = 5


def gen_k2(e):
    kernel_head(e, "attn_kernel")
    e("""
    s_cmp_ge_u32 s2, 416
    s_cbranch_scc1 k2_done
    s_load_dwordx2 s[4:5], s[0:1], 80
    s_load_dwordx2 s[6:7], s[0:1], 48
    s_load_dwordx2 s[8:9], s[0:1], 56
    v_lshrrev_b32 v1, 6, v0
    v_and_b32 v0, 63, v0
    s_and_b32 s20, s2, 7
    v_readfirstlane_b32 s24, v1
    s_cmp_ge_u32 s2, 256
    s_cbranch_scc1 k2_mlp
    """)
    Q1, Q2 = 4, 8
    KF = [(12, 16), (20, 24)]
    VF = [(28, 32), (36, 40)]
    SS = [44, 60]
    PP = [76, 84]
    O = 92
    vK, vKh, vV, vKn, vKhn = 108, 109, 110, 111, 112
    vK0, vKh0, vV0 = 113, 114, 115
    vInc, vIncW, vMask, vD2 = 116, 117, 118, 119
    T = 120
    CA = 3 * AT_STAGE
    e("""
    s_lshr_b32 s21, s2, 3
    s_lshr_b32 s22, s21, 3
    s_lshl_b32 s23, s20, 2
    s_add_u32 s22, s22, s23
    s_and_b32 s23, s21, 7
    """)
    e("s_waitcnt lgkmcnt(0)")
    srd(e, 36, "s4", "s5", WS_BYTES)
    stamp_rt(e, 10)
    stamp(e, 0)
    e(f"s_mul_i32 s25, s22, {64*2560}")
    e(f"s_add_u32 s25, s25, {KV_OFF}")
    e("s_add_u32 s12, s4, s25")
    e("s_addc_u32 s13, s5, 0")
    e("s_and_b32 s13, s13, 0xffff")
    e(f"s_mov_b32 s14, {64*2560}")
    e("s_mov_b32 s15, 0x00020000")
    e(f"v_lshlrev_b32 v{vK0}, 4, v0")
    e("s_cmp_lt_u32 s24, 4")
    e("s_mul_i32 s26, s24, 3072")
    e("s_lshl_b32 s27, s24, 11")
    e("s_add_u32 s27, s27, 4096")
    e("s_cmp_lt_u32 s24, 4")
    e("s_cselect_b32 s26, s26, s27")
    e("s_mov_b32 s30, s26")
    e("s_mov_b32 s31, s26")

    def dma(tag):
        e("s_mov_b32 m0, s31")
        e("s_cmp_lt_u32 s24, 4")
        e(f"buffer_load_dwordx4 v{vK0}, s[12:15], s30 offen lds")
        e(f"buffer_load_dwordx4 v{vK0}, s[12:15], s30 offen offset:1024 lds")
        e(f"s_cbranch_scc0 k2_dm{tag}")
        e(f"buffer_load_dwordx4 v{vK0}, s[12:15], s30 offen offset:2048 lds")
        e(f"k2_dm{tag}:")
        e(f"s_add_u32 s31, s31, {AT_STAGE}")
        e(f"s_add_u32 s30, s30, {AT_STAGE}")
        e(f"s_cmp_ge_u32 s31, {3*AT_STAGE}")
        e("s_cselect_b32 s31, s26, s31")
    e(f"v_and_b32 v{T}, 31, v0")
    e(f"v_lshlrev_b32 v{vKh0}, 3, v{T}")
    e(f"v_add_u32 v{vKh0}, 1024, v{vKh0}")
    e("s_lshl_b32 s32, s23, 3")
    e("s_add_u32 s32, s32, s24")
    e("s_lshl_b32 s33, s22, 6")
    e("s_add_u32 s33, s33, s32")
    e("s_mul_i32 s33, s33, 1280")
    e(f"s_add_u32 s33, s33, {QF_OFF}")
    for i in range(4):
        e(f"v_mov_b32 v{Q2+i}, 0")
    dma("p0")
    e(f"buffer_load_dwordx4 v[{Q1}:{Q1+3}], v{vK0}, s[36:39], s33 offen")
    e("s_mov_b32 exec_hi, 0")
    e(f"buffer_load_dwordx2 v[{Q2}:{Q2+1}], v{vKh0}, s[36:39], s33 offen")
    e("s_mov_b64 exec, -1")
    e(f"v_lshrrev_b32 v{T+1}, 5, v0")
    e(f"v_mad_u32_u24 v{vV0}, v{T+1}, 20, v{T}")
    e(f"v_lshlrev_b32 v{vV0}, 4, v{vV0}")
    e(f"v_add_u32 v{vV0}, 1280, v{vV0}")
    e("s_mov_b32 s28, 0x000fffff")
    e("s_mov_b32 s29, 0x000fffff")
    X = SS[0]
    e(f"v_and_b32 v{T+2}, 1, v0")
    e(f"v_cmp_eq_u32 vcc, 0, v{T+2}")
    e(f"v_mov_b32 v{T+3}, 0x3f803f80")
    e(f"v_bfe_u32 v{T+4}, v0, 1, 1")
    e(f"v_mul_u32_u24 v{T+4}, 640, v{T+4}")
    e(f"v_lshl_add_u32 v{T+4}, v{T+2}, 4, v{T+4}")
    for i in range(4):
        e(f"v_cndmask_b32 v{X+i}, 0, v{T+3}, vcc")
    e(f"ds_write_b128 v{T+4}, v[{X}:{X+3}] offset:{CA}")
    e(f"v_cmp_gt_u32 vcc, 20, v{T}")
    e(f"v_cmp_eq_u32 s[40:41], 20, v{T}")
    e(f"v_mov_b32 v{T+5}, {CA+16}")
    e(f"v_mov_b32 v{T+6}, {CA}")
    e(f"v_cndmask_b32 v{T+5}, v{T+5}, v{T+6}, s[40:41]")
    e(f"v_cndmask_b32 v{vV}, v{T+5}, v{vV0}, vcc")
    e(f"v_cndmask_b32 v{vMask}, 0, 1, vcc")
    e(f"v_mul_u32_u24 v{vInc}, 2560, v{vMask}")
    for lo, hi in KF:
        for i in range(4):
            e(f"v_mov_b32 v{hi+i}, 0")
    for a, b in VF:
        for r in (a, b):
            for i in range(4):
                e(f"v_mov_b32 v{r+i}, 0")
    for i in range(8):
        e(f"v_mov_b32 v{PP[1]+i}, 0")
    for i in range(16):
        e(f"v_mov_b32 v{O+i}, 0")
    e(f"v_mov_b32 v{vKn}, v{vK0}")
    e(f"v_mov_b32 v{vKhn}, v{vKh0}")
    e(f"s_mov_b32 s34, {AT_STAGE}")
    e("s_mov_b32 s35, 8")

    def rdK(t, p):
        lo, hi = KF[p]
        a, b = (vK, vKh) if t < 8 else (vKn, vKhn)
        o = (t % 8) * 2560
        return [f"ds_read_b128 v[{lo}:{lo+3}], v{a} offset:{o}",
                f"ds_read_b64 v[{hi}:{hi+1}], v{b} offset:{o}"]

    def rdV(p):
        v0_, v1_ = VF[p]
        return [f"ds_read_b128 v[{v0_}:{v0_+3}], v{vV}",
                f"ds_read_b128 v[{v1_}:{v1_+3}], v{vV} offset:640"]

    def mS(S, p):
        lo, hi = KF[p]
        return [f"v_mfma_f32_32x32x16_bf16 v[{S}:{S+15}], v[{lo}:{lo+3}], v[{Q1}:{Q1+3}], 0",
                f"v_mfma_f32_32x32x16_bf16 v[{S}:{S+15}], v[{hi}:{hi+3}], v[{Q2}:{Q2+3}], v[{S}:{S+15}]"]

    def mPV(p, P):
        v0_, v1_ = VF[p]
        return [f"v_mfma_f32_32x32x16_bf16 v[{O}:{O+15}], v[{v0_}:{v0_+3}], v[{P}:{P+3}], v[{O}:{O+15}]",
                f"v_mfma_f32_32x32x16_bf16 v[{O}:{O+15}], v[{v1_}:{v1_+3}], v[{P+4}:{P+7}], v[{O}:{O+15}]"]

    stamp(e, 1)
    e("s_waitcnt vmcnt(0) lgkmcnt(0)")
    e("s_barrier")
    stamp(e, 2)
    dma("p1")
    for r in rdK(8, 0) + rdK(9, 1):
        e(r)
    e("s_waitcnt lgkmcnt(0)")
    for m in mS(SS[0], 0):
        e(m)
    e("s_nop 7")
    e("k2_stage:")
    e("s_waitcnt vmcnt(0)")
    e("s_barrier")
    dma("l")
    e(f"v_mov_b32 v{vK}, v{vKn}")
    e(f"v_mov_b32 v{vKh}, v{vKhn}")
    e(f"v_add_u32 v{vKn}, s34, v{vK0}")
    e(f"v_add_u32 v{vKhn}, s34, v{vKh0}")
    e("s_cmp_eq_u32 s34, 0")
    csel(e, "s27", 2560 - 3 * AT_STAGE, 2560)
    e(f"v_mul_lo_u32 v{vIncW}, v{vMask}, s27")
    e(f"s_add_u32 s34, s34, {AT_STAGE}")
    e(f"s_cmp_eq_u32 s34, {3*AT_STAGE}")
    e("s_cselect_b32 s34, 0, s34")

    def phase(S, P, mf, extra):
        ex = list(extra)
        for q in range(4):
            e(mf[q])
            for i in range(4):
                e(f"v_exp_f32 v{S+4*q+i}, v{S+4*q+i}")
                if ex and i in (0, 2):
                    x = ex.pop(0)
                    if x:
                        e(x)
            e(f"v_cvt_pk_bf16_f32 v{P+2*q}, v{S+4*q}, v{S+4*q+1}")
            e(f"v_cvt_pk_bf16_f32 v{P+2*q+1}, v{S+4*q+2}, v{S+4*q+3}")
        assert not ex

    for t in range(8):
        p = t & 1
        inc = vIncW if t == 7 else vInc
        X_ = os.environ.get("ATX", "")
        ex = rdV(p) + rdK(t + 2, p) + [f"v_add_u32 v{vV}, v{vV}, v{inc}", None, None, "s_waitcnt lgkmcnt(0)"]
        if "nolds" in X_:
            ex = []
        if "nowait" in X_:
            ex = ex[:-1]
        if "nopsonly" in X_:
            ex = ["s_nop 0"] * 4 + ex[4:]
        if "onlyk" in X_:
            ex = ["s_nop 0"] * 2 + ex[2:]
        if "onlyv" in X_:
            ex = ex[:2] + ["s_nop 0"] * 2 + ex[4:]
        if "late" in X_:
            pass
        PR = os.environ.get("PRIO", "none")
        if PR != "none" and (t == 0 or PR[t] != PR[t-1]):
            e(f"s_setprio {PR[t]}")
        mf = mS(SS[p ^ 1], p ^ 1) + mPV(p ^ 1, PP[p ^ 1])
        if "nopv" in X_:
            mf = mf[:2] + ["s_nop 0", "s_nop 0"]
        if "nos" in X_:
            mf = ["s_nop 0", "s_nop 0"] + mf[2:]
        if "pvq" in X_:
            mf = mf[:2] + [f"v_mfma_f32_32x32x16_bf16 v[{O}:{O+15}], v[{VF[0][0]}:{VF[0][0]+3}], v[{Q1}:{Q1+3}], v[{O}:{O+15}]"] * 2
        if "sacc" in X_:
            mf = [f"v_mfma_f32_32x32x16_bf16 v[{O}:{O+15}], v[{KF[0][0]}:{KF[0][0]+3}], v[{Q1}:{Q1+3}], v[{O}:{O+15}]"] * 2 + mf[2:]
        phase(SS[p], PP[p], mf, ex)
    e("s_sub_u32 s35, s35, 1")
    e("s_cmp_lg_u32 s35, 0")
    e("s_cbranch_scc1 k2_stage")
    for m in mPV(1, PP[1]):
        e(m)
    e("s_waitcnt lgkmcnt(0) vmcnt(0)")
    e("s_nop 15")
    stamp(e, 3)
    L = T
    lo_lim = f32bits(2.0 ** -80)
    hi_lim = f32bits(2.0 ** 100)

    def bcast_l(dst, tmp):
        e(f"v_mov_b32 v{tmp}, v{O+8}")
        e(f"v_mov_b32 v{dst}, v{O+8}")
        e("s_nop 1")
        e(f"v_permlane32_swap_b32 v{tmp}, v{dst}")

    e(f"v_mov_b32 v{T+4}, 0")
    bcast_l(L, T + 2)
    for i in range(12):
        e(f"v_fma_f32 v{T+4}, v{O+i}, 0, v{T+4}")
    e(f"s_mov_b32 s40, 0x{lo_lim:08x}")
    e(f"s_mov_b32 s41, 0x{hi_lim:08x}")
    e(f"v_cmp_u_f32 s[42:43], v{T+4}, v{T+4}")
    e(f"v_cmp_nle_f32 s[44:45], s40, v{L}")
    e(f"v_cmp_nge_f32 s[46:47], s41, v{L}")
    e("s_nop 3")
    e("s_or_b64 s[42:43], s[42:43], s[44:45]")
    e("s_or_b64 s[42:43], s[42:43], s[46:47]")
    e("s_cmp_eq_u64 s[42:43], 0")
    e("s_cbranch_scc1 k2_epi")
    v0_, v1_ = VF[0]
    Sa, Pa = SS[0], PP[0]
    e(f"v_and_b32 v{T+2}, 31, v0")
    e(f"v_cmp_eq_u32 vcc, 20, v{T+2}")
    e(f"v_mov_b32 v{T+3}, 0x3f803f80")
    e("s_nop 0")
    for r in (v0_, v1_):
        for i in range(4):
            e(f"v_cndmask_b32 v{r+i}, 0, v{T+3}, vcc")
    lo, hi = KF[0]
    M = T + 6
    e(f"v_mov_b32 v{M}, 0xff800000")
    e("s_mov_b32 s40, 0")
    e(f"k2_fb1:")
    e(f"buffer_load_dwordx4 v[{lo}:{lo+3}], v{vK0}, s[12:15], s40 offen")
    e(f"buffer_load_dwordx2 v[{hi}:{hi+1}], v{vKh0}, s[12:15], s40 offen")
    e("s_waitcnt vmcnt(0)")
    for m in mS(Sa, 0):
        e(m)
    e("s_nop 15")
    e("s_nop 3")
    for i in range(8):
        e(f"v_max3_f32 v{M}, v{Sa+2*i}, v{Sa+2*i+1}, v{M}")
    e("s_add_u32 s40, s40, 2560")
    e(f"s_cmp_lt_u32 s40, {64*2560}")
    e(f"s_cbranch_scc1 k2_fb1")
    e(f"v_mov_b32 v{M+1}, v{M}")
    e("s_nop 1")
    e(f"v_permlane32_swap_b32 v{M}, v{M+1}")
    e("s_nop 1")
    e(f"v_max_f32 v{M}, v{M}, v{M+1}")
    for i in range(16):
        e(f"v_mov_b32 v{O+i}, 0")
    e("s_mov_b32 s40, 0")
    e(f"k2_fb2:")
    e(f"buffer_load_dwordx4 v[{lo}:{lo+3}], v{vK0}, s[12:15], s40 offen")
    e(f"buffer_load_dwordx2 v[{hi}:{hi+1}], v{vKh0}, s[12:15], s40 offen")
    e("s_mov_b64 exec, s[28:29]")
    e(f"buffer_load_dwordx4 v[{v0_}:{v0_+3}], v{vV0}, s[12:15], s40 offen")
    e(f"buffer_load_dwordx4 v[{v1_}:{v1_+3}], v{vV0}, s[12:15], s40 offen offset:640")
    e("s_mov_b64 exec, -1")
    e("s_waitcnt vmcnt(0)")
    for m in mS(Sa, 0):
        e(m)
    e("s_nop 15")
    e("s_nop 3")
    for i in range(16):
        e(f"v_sub_f32 v{Sa+i}, v{Sa+i}, v{M}")
    for i in range(16):
        e(f"v_exp_f32 v{Sa+i}, v{Sa+i}")
    e("s_nop 0")
    for i in range(8):
        e(f"v_cvt_pk_bf16_f32 v{Pa+i}, v{Sa+2*i}, v{Sa+2*i+1}")
    e("s_nop 1")
    for m in mPV(0, Pa):
        e(m)
    e("s_add_u32 s40, s40, 2560")
    e(f"s_cmp_lt_u32 s40, {64*2560}")
    e("s_nop 7")
    e(f"s_cbranch_scc1 k2_fb2")
    e("s_nop 15")
    bcast_l(L, T + 2)
    e("k2_epi:")
    e("s_lshl_b32 s41, s22, 6")
    e("s_add_u32 s41, s41, s32")
    e("s_lshl_b32 s41, s41, 10")
    e(f"s_add_u32 s41, s41, {O_OFF}")
    e("s_lshr_b32 s43, s22, 2")
    e("s_add_u32 s43, s43, 32")
    e("s_lshl_b32 s43, s43, 6")
    e("s_add_u32 s43, s43, s32")
    e("s_lshl_b32 s43, s43, 10")
    e("s_bfe_u32 s44, s22, 0x10001")
    e("s_lshl_b32 s44, s44, 9")
    e("s_add_u32 s43, s43, s44")
    e("s_and_b32 s44, s22, 1")
    e("s_lshl_b32 s44, s44, 3")
    e("s_add_u32 s43, s43, s44")
    e(f"s_add_u32 s43, s43, {O_OFF}")
    e(f"v_rcp_f32 v{L}, v{L}")
    e("s_nop 0")
    pk = PP[0]
    for i in range(12):
        e(f"v_mul_f32 v{O+i}, v{O+i}, v{L}")
    for i in range(6):
        e(f"v_cvt_pk_bf16_f32 v{pk+i}, v{O+2*i}, v{O+2*i+1}")
    e(f"buffer_store_dwordx4 v[{pk}:{pk+3}], v{vK0}, s[36:39], s41 offen")
    e("s_mov_b32 exec_hi, 0")
    e(f"buffer_store_dwordx2 v[{pk+4}:{pk+5}], v{vK0}, s[36:39], s43 offen")
    e("s_mov_b64 exec, -1")
    e("s_branch k2_end")

    e("k2_mlp:")
    if os.environ.get("PRIO", "none") != "none":
        e("s_setprio 3")
    g = Gemm("k2", NWM=2, NWN=2, TM=2, TN=1, KGS=K2_KGS, NBUF=K2_NBUF, KG=108, korder='d', NL=1, vbase=8, sbase=40)
    e("""
    s_sub_u32 s21, s2, 256
    s_lshr_b32 s21, s21, 3
    s_cmp_ge_u32 s21, 10
    s_cselect_b32 s22, 1, 0
    s_cselect_b32 s23, 10, 0
    s_sub_u32 s25, s21, s23
    s_lshl_b32 s23, s20, 1
    s_add_u32 s23, s23, s22
    s_lshl_b32 s28, s25, 7
    s_mov_b32 s29, 1280
    s_waitcnt lgkmcnt(0)
    """)
    srd(e, 36, "s4", "s5", WS_BYTES)
    stamp_rt(e, 10)
    stamp(e, 0)
    e("s_cmp_lt_u32 s24, 4")
    e("s_cbranch_scc1 k2_mc")
    e("s_cmp_gt_u32 s24, 4")
    e("s_cbranch_scc1 k2_done")
    e("""
    s_add_u32 s16, s6, s28
    s_addc_u32 s17, s7, 0
    s_and_b32 s17, s17, 0xffff
    """)
    e(f"s_sub_u32 s18, {1728*1280}, s28")
    e("s_mov_b32 s19, 0x00020000")
    e(f"s_add_u32 s12, s4, {H_OFF}")
    e("s_addc_u32 s13, s5, 0")
    e("s_and_b32 s13, s13, 0xffff")
    e(f"s_mov_b32 s14, {108*65536}")
    e("s_mov_b32 s15, 0x00020000")
    e("s_lshl_b32 s34, s23, 12")
    g.loader_setup(e, "s29", "s34")
    g.loader(e, 0, 12, 16, "k2_end")
    e("k2_mc:")
    g.setup(e, "s24")
    sWM, sWN = g.send, g.send + 1
    e(f"s_lshr_b32 s{sWM}, s24, 1")
    e(f"s_and_b32 s{sWN}, s24, 1")
    sT = (g.send + 2 + 3) // 4 * 4 + 2
    tmpv = g.vend
    srd(e, sT + 2, "s8", "s9", 640 * 2)
    e(f"s_lshl_b32 s{sT}, s{sWN}, 6")
    e(f"s_add_u32 s{sT}, s{sT}, s28")
    load_bias_init(e, g, sT + 2, f"s{sT}", tmpv)
    e(f"s_waitcnt vmcnt(0)")
    finish_bias_init(e, g, tmpv)
    g.main(e, 'n', 'm')
    e(f"s_lshl_b32 s{sT}, s23, 2")
    e(f"s_lshl_b32 s{sT+1}, s{sWM}, 1")
    e(f"s_add_u32 s{sT}, s{sT}, s{sT+1}")
    e(f"s_mul_i32 s{sT}, s{sT}, 20")
    e(f"s_lshl_b32 s{sT+1}, s25, 1")
    e(f"s_add_u32 s{sT}, s{sT}, s{sT+1}")
    e(f"s_add_u32 s{sT}, s{sT}, s{sWN}")
    e(f"s_lshl_b32 s{sT}, s{sT}, 11")
    e(f"s_add_u32 s{sT}, s{sT}, {G_OFF}")
    e(f"s_add_u32 s{sT+1}, s{sT}, {20*2048}")
    e(f"v_mov_b32 v{tmpv}, 0x{f32bits(-1.4426950408889634):08x}")
    for tm in range(2):
        a = g.accr(tm, 0)
        for half in range(2):
            t = tmpv + 4 + 8 * half
            pk = tmpv + 20 + 4 * half
            r0 = a + half * 8
            for i in range(8):
                e(f"v_mul_f32 v{t+i}, v{r0+i}, v{tmpv}")
            for i in range(8):
                e(f"v_exp_f32 v{t+i}, v{t+i}")
            for i in range(8):
                e(f"v_add_f32 v{t+i}, 1.0, v{t+i}")
            for i in range(8):
                e(f"v_rcp_f32 v{t+i}, v{t+i}")
            for i in range(8):
                e(f"v_mul_f32 v{t+i}, v{t+i}, v{r0+i}")
            for i in range(4):
                e(f"v_cvt_pk_bf16_f32 v{pk+i}, v{t+2*i}, v{t+2*i+1}")
            e(f"buffer_store_dwordx4 v[{pk}:{pk+3}], v{g.vDA}, s[36:39], s{sT+tm} offen offset:{half*1024}")
    e("k2_end:")
    stamp(e, 4)
    e("s_waitcnt vmcnt(0)")
    stamp(e, 5)
    stamp_rt(e, 11)
    stamp_store(e, 2, "s24", 36)
    e("k2_done:")
    e("s_endpgm")
    nv = max(T + 8, tmpv + 28)
    assert nv <= 128, nv
    return kd("attn_kernel", nv, 96), max(CA + 640 + 32, g.lds_bytes)


K3_NBUF = 11


def gen_k3(e):
    kernel_head(e, "out_kernel")
    g = Gemm("k3", NWM=2, NWN=2, TM=2, TN=1, KGS=2, NBUF=K3_NBUF, KG=40, korder='d', NL=2, vbase=8, sbase=48)
    e("""
    s_cmp_ge_u32 s2, 160
    s_cbranch_scc1 k3_done
    s_load_dwordx2 s[4:5], s[0:1], 80
    s_load_dwordx2 s[6:7], s[0:1], 16
    s_load_dwordx2 s[8:9], s[0:1], 0
    s_load_dwordx2 s[10:11], s[0:1], 64
    v_lshrrev_b32 v1, 6, v0
    v_and_b32 v0, 63, v0
    s_and_b32 s20, s2, 7
    v_readfirstlane_b32 s24, v1
    s_lshr_b32 s21, s2, 3
    s_cmp_ge_u32 s21, 10
    s_cselect_b32 s22, 1, 0
    s_cselect_b32 s23, 10, 0
    s_sub_u32 s25, s21, s23
    s_lshl_b32 s23, s20, 1
    s_add_u32 s23, s23, s22
    s_lshl_b32 s28, s25, 7
    s_mov_b32 s29, 1280
    s_waitcnt lgkmcnt(0)
    """)
    srd(e, 36, "s4", "s5", WS_BYTES)
    stamp_rt(e, 10)
    stamp(e, 0)
    e("s_cmp_lt_u32 s24, 4")
    e("s_cbranch_scc1 k3_c")
    e("""
    s_add_u32 s16, s6, s28
    s_addc_u32 s17, s7, 0
    s_and_b32 s17, s17, 0xffff
    """)
    e(f"s_sub_u32 s18, {640*1280}, s28")
    e("s_mov_b32 s19, 0x00020000")
    e(f"s_add_u32 s12, s4, {O_OFF}")
    e("s_addc_u32 s13, s5, 0")
    e("s_and_b32 s13, s13, 0xffff")
    e(f"s_mov_b32 s14, {FR}")
    e("s_mov_b32 s15, 0x00020000")
    e("s_lshl_b32 s34, s23, 12")
    g.loader_setup(e, "s29", "s34")
    t = g.vt
    e(f"v_lshrrev_b32 v{t+2}, 2, v{t}")
    e(f"v_mul_u32_u24 v{t+2}, 40, v{t+2}")
    e(f"v_and_b32 v{t+3}, 3, v{t}")
    e(f"v_add_u32 v{t+2}, v{t+2}, v{t+3}")
    e(f"v_mul_u32_u24 v{t+2}, 1280, v{t+2}")
    e(f"v_add_u32 v{g.vDB2}, v{t+2}, v{t+1}")
    e("s_cmp_eq_u32 s24, 5")
    e("s_cbranch_scc1 k3_ld1")
    D = 6
    for kgl in range(2):
        if kgl == 1:
            e("k3_ld1:")

        def issue(st_):
            buf = (st_ % g.NBUF) * g.SB
            kg = st_ * 2 + kgl
            e(f"s_mov_b32 m0, {buf + kgl*4096}")
            e(f"s_add_u32 s{g.st}, s34, {kg*65536}")
            for i in range(4):
                off = f" offset:{i*1024}" if i else ""
                e(f"buffer_load_dwordx4 v{g.vDA}, s[12:15], s{g.st} offen{off} lds")
            for tt in range(2):
                e(f"s_mov_b32 m0, {buf + g.ASB + (kgl*2+tt)*1024}")
                if kg < 32:
                    e(f"s_mov_b32 s{g.st}, {(20*kg + 8*tt)*1280}")
                    e(f"buffer_load_dwordx4 v{g.vDB}, s[16:19], s{g.st} offen lds")
                else:
                    G = kg - 32
                    e(f"s_mov_b32 s{g.st}, {((4*G + tt)*20 + 16)*1280}")
                    e(f"buffer_load_dwordx4 v{g.vDB2}, s[16:19], s{g.st} offen lds")
        npre = 4
        for s_ in range(npre):
            issue(s_)
        e(f"s_waitcnt vmcnt({(npre-1)*D})")
        e("s_barrier")
        for s_ in range(npre, g.NBUF - 1):
            issue(s_)
        for s_ in range(g.NST):
            outst = max(0, min(s_ + g.NBUF - 2, g.NST - 1) - (s_ + 1) + 1)
            e(f"s_waitcnt vmcnt({max(0, outst-1)*D})")
            e("s_barrier")
            if s_ + g.NBUF - 1 < g.NST:
                issue(s_ + g.NBUF - 1)
        e("s_branch k3_end")
    e("k3_c:")
    srd(e, 12, "s8", "s9", 2048 * 1280)
    srd(e, 32, "s10", "s11", 2048 * 1280)
    g.setup(e, "s24")
    sWM, sWN = g.send, g.send + 1
    e(f"s_lshr_b32 s{sWM}, s24, 1")
    e(f"s_and_b32 s{sWN}, s24, 1")
    sT = g.send + 2
    GV = g.vend
    XV = GV + 16
    vX = XV + 16
    T = vX + 4
    e(f"s_lshl_b32 s{sT}, s23, 2")
    e(f"s_lshl_b32 s{sT+1}, s{sWM}, 1")
    e(f"s_add_u32 s{sT}, s{sT}, s{sT+1}")
    e(f"s_mul_i32 s{sT+1}, s{sT}, 20")
    e(f"s_lshl_b32 s{sT+2}, s25, 1")
    e(f"s_add_u32 s{sT+1}, s{sT+1}, s{sT+2}")
    e(f"s_add_u32 s{sT+1}, s{sT+1}, s{sWN}")
    e(f"s_lshl_b32 s{sT+1}, s{sT+1}, 11")
    e(f"s_add_u32 s{sT+1}, s{sT+1}, {G_OFF}")
    e(f"s_add_u32 s{sT+2}, s{sT+1}, {20*2048}")
    e(f"v_and_b32 v{T}, 31, v0")
    e(f"v_mul_u32_u24 v{vX}, 1280, v{T}")
    e(f"v_lshrrev_b32 v{T+1}, 5, v0")
    e(f"v_lshl_add_u32 v{vX}, v{T+1}, 4, v{vX}")
    e(f"s_mul_i32 s{sT+3}, s{sT}, {32*1280}")
    e(f"s_add_u32 s{sT+3}, s{sT+3}, s28")
    e(f"s_lshl_b32 s{sT+4}, s{sWN}, 6")
    e(f"s_add_u32 s{sT+3}, s{sT+3}, s{sT+4}")
    e(f"s_add_u32 s{sT+4}, s{sT+3}, {32*1280}")
    for i in range(32):
        e(f"v_mov_b32 v{g.acc+i}, 0")

    def late_loads():
        for tm in range(2):
            for half in range(2):
                r = GV + tm * 8 + half * 4
                e(f"buffer_load_dwordx4 v[{r}:{r+3}], v{g.vDA}, s[36:39], s{sT+1+tm} offen offset:{half*1024}")
        for tm in range(2):
            for pp in range(2):
                r = XV + (tm * 2 + pp) * 4
                e(f"buffer_load_dwordx4 v[{r}:{r+3}], v{vX}, s[12:15], s{sT+3+tm} offen offset:{pp*32}")
    g.main(e, 'n', 'm', late_loads)
    e("s_waitcnt vmcnt(0)")
    for tm in range(2):
        for pp in range(2):
            r = XV + (tm * 2 + pp) * 4
            e(f"v_permlane32_swap_b32 v{r}, v{r+2}")
            e(f"v_permlane32_swap_b32 v{r+1}, v{r+3}")
    for tm in range(2):
        for pp in range(2):
            ob = T + ((tm * 2 + pp) & 1) * 4
            for q in range(2):
                gg = pp * 2 + q
                a = g.accr(tm, 0) + 4 * gg
                gr = GV + tm * 8 + gg * 2
                xr = XV + (tm * 2 + pp) * 4 + q * 2
                t = T + 8
                e(f"v_cvt_pk_bf16_f32 v{t}, v{a}, v{a+1}")
                e(f"v_cvt_pk_bf16_f32 v{t+1}, v{a+2}, v{a+3}")
                for i in range(2):
                    e(f"v_lshlrev_b32 v{t+2+2*i}, 16, v{t+i}")
                    e(f"v_and_b32 v{t+3+2*i}, 0xffff0000, v{t+i}")
                    e(f"v_lshlrev_b32 v{t+6+2*i}, 16, v{gr+i}")
                    e(f"v_and_b32 v{t+7+2*i}, 0xffff0000, v{gr+i}")
                for i in range(4):
                    e(f"v_mul_f32 v{t+2+i}, v{t+2+i}, v{t+6+i}")
                e(f"v_cvt_pk_bf16_f32 v{t}, v{t+2}, v{t+3}")
                e(f"v_cvt_pk_bf16_f32 v{t+1}, v{t+4}, v{t+5}")
                for i in range(2):
                    e(f"v_lshlrev_b32 v{t+2+2*i}, 16, v{t+i}")
                    e(f"v_and_b32 v{t+3+2*i}, 0xffff0000, v{t+i}")
                    e(f"v_lshlrev_b32 v{t+6+2*i}, 16, v{xr+i}")
                    e(f"v_and_b32 v{t+7+2*i}, 0xffff0000, v{xr+i}")
                for i in range(4):
                    e(f"v_add_f32 v{t+2+i}, v{t+2+i}, v{t+6+i}")
                e(f"v_cvt_pk_bf16_f32 v{ob+2*q}, v{t+2}, v{t+3}")
                e(f"v_cvt_pk_bf16_f32 v{ob+2*q+1}, v{t+4}, v{t+5}")
            e("s_nop 1")
            e(f"v_permlane32_swap_b32 v{ob}, v{ob+2}")
            e(f"v_permlane32_swap_b32 v{ob+1}, v{ob+3}")
            e(f"buffer_store_dwordx4 v[{ob}:{ob+3}], v{vX}, s[32:35], s{sT+3+tm} offen offset:{pp*32}")
    e("k3_end:")
    stamp(e, 4)
    e("s_waitcnt vmcnt(0)")
    stamp(e, 5)
    stamp_rt(e, 11)
    stamp_store(e, 3, "s24", 36)
    e("k3_done:")
    e("s_endpgm")
    return kd("out_kernel", T + 20, 96), g.lds_bytes


def main():
    e = Em()
    kds = []
    kds.append(gen_ln(e))
    k1kd, k1lds = gen_k1(e)
    kds.append(k1kd)
    k2kd, k2lds = gen_k2(e)
    kds.append(k2kd)
    k3kd, k3lds = gen_k3(e)
    kds.append(k3kd)
    launches = [
        f"; @launch kernel=ln_kernel grid=(768,1,1) block=(256,1,1) lds=0",
        f"; @launch kernel=gemm1_kernel grid=(256,1,1) block=(640,1,1) lds={k1lds}",
        f"; @launch kernel=attn_kernel grid=(416,1,1) block=(512,1,1) lds={k2lds}",
        f"; @launch kernel=out_kernel grid=(160,1,1) block=(384,1,1) lds={k3lds}",
    ]
    head = "\n".join(launches) + "\n" + '.amdgcn_target "amdgcn-amd-amdhsa--gfx950"\n.text\n'
    tail = '.section .rodata,"a"\n.p2align 6\n' + ".p2align 6\n".join(kds)
    out = head + e.text() + tail
    path = sys.argv[1] if len(sys.argv) > 1 else f"cdna_kernels/{NAME}.s"
    open(path, "w").write(out)
    print("wrote", path, len(out))


if __name__ == "__main__":
    main()
```

```python
import sys, math, struct
from layout import *

NAME = "recurrent_scan__softmax_full_mha__mixer_channel_mlp__prompt"
WS_BYTES = 268435456


def f32bits(x):
    return struct.unpack("<I", struct.pack("<f", x))[0]


class Em:
    def __init__(self):
        self.l = []

    def __call__(self, s):
        for line in s.split("\n"):
            line = line.strip()
            if not line:
                continue
            if line.endswith(":") or line.startswith("."):
                self.l.append(line)
            else:
                self.l.append("    " + line)

    def text(self):
        return "\n".join(self.l) + "\n"


def srd(e, s, lo, hi, nbytes):
    e(f"s_mov_b32 s{s}, {lo}")
    e(f"s_and_b32 s{s+1}, {hi}, 0xffff")
    e(f"s_mov_b32 s{s+2}, {nbytes}")
    e(f"s_mov_b32 s{s+3}, 0x00020000")


def csel(e, dst, a, b):
    e(f"s_mov_b32 {dst}, {b}")
    e(f"s_cselect_b32 {dst}, {a}, {dst}")


import os
STAMP = int(os.environ.get("STAMP", "0"))
STAMP_OFF = 64 << 20


def stamp(e, i):
    if STAMP != 1:
        return
    e(f"s_memtime s[86:87]")
    e("s_waitcnt lgkmcnt(0)")
    e(f"s_mov_b32 s{70+i}, s86")


def stamp_rt(e, i):
    if not STAMP:
        return
    e(f"s_memrealtime s[86:87]")
    e("s_waitcnt lgkmcnt(0)")
    e(f"s_mov_b32 s{70+i}, s86")


def stamp_store(e, kidx, sWave, srdws, n=12):
    if not STAMP:
        return
    if STAMP == 2:
        e(f"s_cmp_lg_u32 {sWave}, 0")
        e(f"s_cbranch_scc1 dbg_skip{kidx}")
        e("s_and_b32 s88, s2, 15")
        e(f"s_cmp_lg_u32 s88, 5")
        e(f"s_cbranch_scc1 dbg_skip{kidx}")
        e("s_load_dwordx2 s[88:89], s[0:1], 72")
        e("s_waitcnt lgkmcnt(0)")
        e(f"s_add_u32 s88, s88, {512*(3-kidx)}")
        e("s_addc_u32 s89, s89, 0")
        e("s_and_b32 s89, s89, 0xffff")
        e("s_mov_b32 s90, 256")
        e("s_mov_b32 s91, 0x00020000")
        e("v_mov_b32 v1, 0")
        e("s_not_b32 s80, s80")
        e("v_mov_b32 v2, s80")
        e("v_mov_b32 v3, s81")
        e("s_mov_b64 exec, 1")
        e(f"buffer_atomic_umax v2, v1, s[88:91], 0 offen offset:{8*kidx}")
        e(f"buffer_atomic_umax v3, v1, s[88:91], 0 offen offset:{8*kidx+4}")
        e("s_waitcnt vmcnt(0)")
        e(f"dbg_skip{kidx}:")
        return
    e("s_getreg_b32 s78, hwreg(HW_REG_XCC_ID)")
    e("s_getreg_b32 s79, hwreg(HW_REG_HW_ID)")
    e(f"s_lshl_b32 s86, s2, 4")
    e(f"s_add_u32 s86, s86, {sWave}")
    e(f"s_lshl_b32 s86, s86, 6")
    e(f"s_add_u32 s86, s86, {STAMP_OFF + kidx * 0x100000}")
    e("v_mov_b32 v1, 0")
    for i in range(n):
        e(f"v_mov_b32 v2, s{70+i}")
        e(f"buffer_store_dword v2, v1, s[{srdws}:{srdws+3}], s86 offen offset:{4*i}")


def kernel_head(e, name):
    e(f".p2align 8")
    e(f".globl {name}")
    e(f".type {name},@function")
    e(f"{name}:")


def kd(name, vgpr, sgpr=96):
    acc = (vgpr + 3) // 4 * 4
    return f""".amdhsa_kernel {name}
  .amdhsa_next_free_vgpr {vgpr}
  .amdhsa_next_free_sgpr {sgpr}
  .amdhsa_accum_offset {acc}
  .amdhsa_group_segment_fixed_size 0
  .amdhsa_kernarg_size 88
  .amdhsa_user_sgpr_count 2
  .amdhsa_user_sgpr_kernarg_segment_ptr 1
  .amdhsa_system_sgpr_workgroup_id_x 1
.end_amdhsa_kernel
"""


def wave_sum(e, v, sdst):
    for sh in (1, 2, 4, 8):
        e("s_nop 1")
        e(f"v_add_f32_dpp v{v}, v{v}, v{v} row_shr:{sh} row_mask:0xf bank_mask:0xf bound_ctrl:0")
    e("s_nop 1")
    e(f"v_add_f32_dpp v{v}, v{v}, v{v} row_bcast:15 row_mask:0xa bank_mask:0xf")
    e("s_nop 1")
    e(f"v_add_f32_dpp v{v}, v{v}, v{v} row_bcast:31 row_mask:0xc bank_mask:0xf")
    e("s_nop 1")
    e(f"v_readlane_b32 s{sdst}, v{v}, 63")
    e("s_nop 1")


def bf16r(e, v, t):
    e(f"v_cvt_pk_bf16_f32 v{t}, v{v}, v{v}")
    e(f"v_lshlrev_b32 v{v}, 16, v{t}")


def gen_ln(e):
    kernel_head(e, "ln_kernel")
    e("""
    s_cmp_ge_u32 s2, 768
    s_cbranch_scc1 ln_done
    s_cmp_ge_u32 s2, 256
    s_cbranch_scc1 ln_main
    """)
    e("""
    s_load_dwordx2 s[4:5], s[0:1], 8
    s_load_dwordx2 s[6:7], s[0:1], 32
    s_load_dwordx2 s[8:9], s[0:1], 48
    s_load_dwordx2 s[10:11], s[0:1], 16
    v_lshrrev_b32 v1, 6, v0
    v_and_b32 v0, 63, v0
    v_lshlrev_b32 v2, 4, v0
    v_readfirstlane_b32 s20, v1
    s_and_b32 s21, s2, 7
    s_lshr_b32 s22, s2, 3
    s_lshr_b32 s23, s21, 2
    s_and_b32 s24, s21, 1
    s_waitcnt lgkmcnt(0)
    s_cmp_eq_u32 s23, 0
    s_cselect_b32 s12, s4, s6
    s_cselect_b32 s13, s5, s7
    """)
    csel(e, "s25", 3840, 3456)
    csel(e, "s14", 640*3840, 640*3456)
    csel(e, "s26", 2048, 1792)
    e("s_and_b32 s13, s13, 0xffff")
    e("s_mov_b32 s15, 0x00020000")
    e("s_mul_i32 s27, s22, 20")
    e("s_mul_i32 s28, s20, 5")
    e("s_add_u32 s27, s27, s28")
    e("s_mul_i32 s27, s27, s25")
    e("s_mul_i32 s28, s24, s26")
    e("s_add_u32 s27, s27, s28")
    for r in range(5):
        e(f"buffer_load_dwordx4 v[{4+8*r}:{7+8*r}], v2, s[12:15], s27 offen")
        e(f"buffer_load_dwordx4 v[{8+8*r}:{11+8*r}], v2, s[12:15], s27 offen offset:1024")
        e("s_add_u32 s27, s27, s25")
    srd(e, 16, "s8", "s9", 1728 * 1280)
    srd(e, 28, "s10", "s11", 640 * 1280)
    e("s_lshl_b32 s27, s2, 2")
    e("s_add_u32 s27, s27, s20")
    e("s_lshl_b32 s27, s27, 10")
    e("buffer_load_dwordx4 v[44:47], v2, s[28:31], s27 offen")
    e("buffer_load_dwordx4 v[4:7], v2, s[16:19], s27 offen")
    e("s_add_u32 s27, s27, 0x100000")
    e("buffer_load_dwordx4 v[8:11], v2, s[16:19], s27 offen")
    e("s_add_u32 s27, s27, 0x100000")
    e("buffer_load_dwordx4 v[12:15], v2, s[16:19], s27 offen")
    e("s_waitcnt vmcnt(0)")
    e("s_endpgm")
    e("""
    ln_main:
    s_sub_u32 s2, s2, 256
    s_load_dwordx2 s[4:5], s[0:1], 0
    s_load_dwordx2 s[6:7], s[0:1], 80
    v_lshrrev_b32 v1, 6, v0
    v_and_b32 v0, 63, v0
    v_lshlrev_b32 v2, 4, v0
    v_readfirstlane_b32 s20, v1
    v_lshlrev_b32 v3, 2, v0
    s_lshl_b32 s21, s2, 2
    s_nop 1
    s_add_u32 s21, s21, s20
    s_mul_i32 s22, s21, 1280
    s_waitcnt lgkmcnt(0)
    """)
    srd(e, 8, "s4", "s5", 2048 * 1280)
    srd(e, 12, "s6", "s7", WS_BYTES)
    stamp_rt(e, 10)
    stamp(e, 0)
    e("""
    buffer_load_dwordx4 v[4:7], v2, s[8:11], s22 offen
    buffer_load_dword v8, v3, s[8:11], s22 offen offset:1024
    s_lshr_b32 s23, s21, 5
    s_and_b32 s24, s21, 31
    s_lshl_b32 s23, s23, 10
    s_lshl_b32 s24, s24, 4
    s_add_u32 s23, s23, s24
    """)
    e(f"s_add_u32 s25, s23, {Y_OFF}")
    e(f"s_add_u32 s23, s23, {XN_OFF}")
    e("""
    v_lshrrev_b32 v40, 1, v0
    v_lshlrev_b32 v40, 16, v40
    v_and_b32 v42, 1, v0
    v_lshlrev_b32 v42, 9, v42
    v_add_u32 v40, v40, v42
    v_lshrrev_b32 v41, 3, v0
    v_add_u32 v41, 32, v41
    v_lshlrev_b32 v41, 16, v41
    v_bfe_u32 v42, v0, 2, 1
    v_lshlrev_b32 v42, 9, v42
    v_add_u32 v41, v41, v42
    v_and_b32 v42, 3, v0
    v_lshlrev_b32 v42, 2, v42
    v_add_u32 v41, v41, v42
    """)
    e(f"v_mov_b32 v38, 0x{f32bits(1.0/640.0):08x}")
    e(f"v_mov_b32 v39, 0x{f32bits(1e-5):08x}")
    e("s_waitcnt vmcnt(0)")
    F = list(range(10, 20))
    E_ = list(range(20, 30))
    P = [4, 5, 6, 7, 8]

    def unpack():
        for i in range(5):
            e(f"v_lshlrev_b32 v{F[2*i]}, 16, v{P[i]}")
            e(f"v_and_b32 v{F[2*i+1]}, 0xffff0000, v{P[i]}")

    def ln(soff):
        e(f"v_add_f32 v30, v{F[0]}, v{F[1]}")
        e(f"v_add_f32 v31, v{F[2]}, v{F[3]}")
        e(f"v_add_f32 v32, v{F[4]}, v{F[5]}")
        e(f"v_add_f32 v33, v{F[6]}, v{F[7]}")
        e(f"v_add_f32 v34, v{F[8]}, v{F[9]}")
        e("v_add_f32 v30, v30, v31")
        e("v_add_f32 v32, v32, v33")
        e("v_add_f32 v30, v30, v34")
        e("v_add_f32 v30, v30, v32")
        wave_sum(e, 30, 26)
        e("v_mul_f32 v31, s26, v38")
        for i in range(10):
            e(f"v_sub_f32 v{E_[i]}, v{F[i]}, v31")
        e(f"v_mul_f32 v30, v{E_[0]}, v{E_[0]}")
        e(f"v_mul_f32 v32, v{E_[1]}, v{E_[1]}")
        for i in range(2, 10, 2):
            e(f"v_fmac_f32 v30, v{E_[i]}, v{E_[i]}")
            e(f"v_fmac_f32 v32, v{E_[i+1]}, v{E_[i+1]}")
        e("v_add_f32 v30, v30, v32")
        wave_sum(e, 30, 26)
        e("v_mul_f32 v32, s26, v38")
        bf16r(e, 31, 33)
        bf16r(e, 32, 33)
        e("v_add_f32 v32, v32, v39")
        bf16r(e, 32, 33)
        e("v_sqrt_f32 v32, v32")
        e("s_nop 0")
        bf16r(e, 32, 33)
        e("v_rcp_f32 v32, v32")
        for i in range(10):
            e(f"v_sub_f32 v{E_[i]}, v{F[i]}, v31")
        for i in range(5):
            e(f"v_cvt_pk_bf16_f32 v{P[i]}, v{E_[2*i]}, v{E_[2*i+1]}")
        unpack()
        for i in range(10):
            e(f"v_mul_f32 v{F[i]}, v{F[i]}, v32")
        for i in range(5):
            e(f"v_cvt_pk_bf16_f32 v{P[i]}, v{F[2*i]}, v{F[2*i+1]}")
        e(f"buffer_store_dwordx4 v[4:7], v40, s[12:15], {soff} offen")
        e(f"buffer_store_dword v8, v41, s[12:15], {soff} offen")

    unpack()
    ln("s23")
    unpack()
    e("s_nop 1")
    ln("s25")
    if STAMP:
        for i in range(1, 5):
            stamp(e, i)
        e("s_waitcnt vmcnt(0)")
        stamp(e, 5)
        stamp_rt(e, 11)
        stamp_store(e, 0, "s20", 12)
    e("ln_done:")
    e("s_endpgm")
    return kd("ln_kernel", 48, 96)


class Gemm:
    def __init__(self, pfx, NWM, NWN, TM, TN, KGS, NBUF, KG, korder, NL, vbase, sbase, lds_base=0):
        self.pfx = pfx
        self.NWM, self.NWN, self.TM, self.TN = NWM, NWN, TM, TN
        self.KGS, self.NBUF, self.KG, self.korder, self.NL = KGS, NBUF, KG, korder, NL
        self.NW = NWM * NWN
        self.BM = NWM * TM * 32
        self.BN = NWN * TN * 32
        self.NT = self.BM // 32
        self.pitch = self.BN * 2
        self.ASB = self.NT * KGS * 1024
        self.BSB = KGS * 16 * self.pitch
        self.SB = self.ASB + self.BSB
        self.lds_base = lds_base
        self.lds_bytes = self.SB * NBUF
        assert KG % KGS == 0
        self.NST = KG // KGS
        self.rpi = 1024 // self.pitch
        ops = []
        for kg in range(KGS):
            for tg in range(0, self.NT, 4):
                for i in range(min(4, self.NT - tg)):
                    ops.append(('A', kg * self.NT * 1024 + tg * 1024, kg * 65536 + tg * 1024, i * 1024))
        for i in range(self.BSB // 1024):
            ops.append(('B', self.ASB + i * 1024, i, 0))
        assert len(ops) % NL == 0, (len(ops), NL)
        self.D = len(ops) // NL
        self.lops = [ops[k * self.D:(k + 1) * self.D] for k in range(NL)]
        assert (NBUF - 1) * self.D <= 63
        v = vbase
        self.acc = v; v += TM * TN * 16
        self.fr = []
        for p in range(2):
            a = [v + 4 * j for j in range(TM)]; v += 4 * TM
            b = [v + 4 * j for j in range(TN)]; v += 4 * TN
            self.fr.append((a, b))
        self.vA0 = v; v += 1
        self.vB0 = [v + j for j in range(TN)]; v += TN
        self.vA = v; v += 1
        self.vB = [v + j for j in range(TN)]; v += TN
        self.vDA = v; v += 1
        self.vDB = v; v += 1
        self.vDB2 = v; v += 1
        self.vt = v; v += 4
        self.vend = (v + 3) // 4 * 4
        s = sbase
        self.sRd = s; s += 1
        self.sWr = s; s += 1
        self.sAo = s; s += 1
        self.sBo = s; s += 1
        self.sBinc = s; s += 1
        self.sBstep = s; s += 1
        self.sCnt = s; s += 1
        self.sIss = s; s += 1
        self.st = s; s += 4
        self.send = s

    def accr(self, tm, tn):
        return self.acc + (tm * self.TN + tn) * 16

    def loader_setup(self, e, sLdw, sA0):
        t = self.vt
        ppr = self.pitch // 16
        lgp = int(math.log2(ppr))
        e(f"v_lshlrev_b32 v{self.vDA}, 4, v0")
        e(f"v_lshrrev_b32 v{t}, {lgp}, v0")
        e(f"v_and_b32 v{t+1}, {ppr-1}, v0")
        e(f"v_lshrrev_b32 v{t+2}, 2, v{t+1}")
        if self.pitch == 256:
            e(f"v_and_b32 v{t+3}, 3, v{t}")
        else:
            e(f"v_bfe_u32 v{t+3}, v{t}, 1, 1")
        e(f"v_xor_b32 v{t+2}, v{t+2}, v{t+3}")
        e(f"v_and_b32 v{t+1}, 3, v{t+1}")
        e(f"v_lshlrev_b32 v{t+1}, 4, v{t+1}")
        e(f"v_lshl_add_u32 v{t+1}, v{t+2}, 6, v{t+1}")
        e(f"v_mul_lo_u32 v{t+2}, v{t}, {sLdw}")
        e(f"v_add_u32 v{self.vDB}, v{t+2}, v{t+1}")
        e(f"s_mul_i32 s{self.sBinc}, {sLdw}, {16*self.KGS}")
        e(f"s_mul_i32 s{self.sBstep}, {sLdw}, {self.rpi}")
        e(f"s_mov_b32 s{self.sAo}, {sA0}")
        e(f"s_mov_b32 s{self.sBo}, 0")
        e(f"s_mov_b32 s{self.sIss}, 0")
        e(f"s_mov_b32 s{self.sWr}, {self.lds_base}")

    def issue(self, e, k, SA, SBd):
        st = self.st
        rep = int(os.environ.get('REP', '1'))
        e(f"s_cmp_lt_u32 s{self.sIss}, {self.NST}")
        e(f"s_cselect_b32 s{st+1}, s{self.sAo}, 0x7ff00000")
        e(f"s_cselect_b32 s{st+2}, s{self.sBo}, 0x7ff00000")
        cur = None
        lastb = 0
        for kind, lo, gd, io in self.lops[k]:
            if kind == 'A':
                if cur != ('A', lo):
                    e(f"s_add_u32 m0, s{self.sWr}, {lo}")
                    e(f"s_add_u32 s{st}, s{st+1}, {gd}")
                    cur = ('A', lo)
                off = f" offset:{io}" if io else ""
                e(f"buffer_load_dwordx4 v{self.vDA}, s[{SA}:{SA+3}], s{st} offen{off} lds")
            else:
                e(f"s_add_u32 m0, s{self.sWr}, {lo}")
                if gd != lastb:
                    if gd - lastb == 1:
                        e(f"s_add_u32 s{st+2}, s{st+2}, s{self.sBstep}")
                    else:
                        e(f"s_mul_i32 s{st+3}, s{self.sBstep}, {gd-lastb}")
                        e(f"s_add_u32 s{st+2}, s{st+2}, s{st+3}")
                    lastb = gd
                else:
                    e("s_nop 0")
                e(f"buffer_load_dwordx4 v{self.vDB}, s[{SBd}:{SBd+3}], s{st+2} offen lds")
                cur = None
        e(f"s_add_u32 s{self.sAo}, s{self.sAo}, {self.KGS*65536}")
        e(f"s_add_u32 s{self.sBo}, s{self.sBo}, s{self.sBinc}")
        e(f"s_add_u32 s{self.sIss}, s{self.sIss}, 1")
        e(f"s_add_u32 s{self.sWr}, s{self.sWr}, {self.SB}")
        e(f"s_cmp_eq_u32 s{self.sWr}, {self.lds_base + self.SB*self.NBUF}")
        e(f"s_cselect_b32 s{self.sWr}, {self.lds_base}, s{self.sWr}")

    def loader(self, e, k, SA, SBd, endlabel):
        L = f"{self.pfx}_ld{k}_loop"
        self.issue(e, k, SA, SBd)
        self.issue(e, k, SA, SBd)
        e(f"s_waitcnt vmcnt({self.D})")
        e("s_barrier")
        for s_ in range(2, self.NBUF - 1):
            self.issue(e, k, SA, SBd)
        e(f"s_mov_b32 s{self.sCnt}, {self.NST}")
        e(f"{L}:")
        e(f"s_waitcnt vmcnt({(self.NBUF-3)*self.D})")
        e("s_barrier")
        if not os.environ.get("NODMA"):
            self.issue(e, k, SA, SBd)
        e(f"s_sub_u32 s{self.sCnt}, s{self.sCnt}, 1")
        e(f"s_cmp_lg_u32 s{self.sCnt}, 0")
        e(f"s_cbranch_scc1 {L}")
        e(f"s_branch {endlabel}")

    def setup(self, e, sWave):
        t = self.vt
        TM, TN, KGS = self.TM, self.TN, self.KGS
        st = self.st
        lg = int(math.log2(self.NWN))
        e(f"s_lshr_b32 s{st}, {sWave}, {lg}")
        e(f"s_and_b32 s{st+1}, {sWave}, {self.NWN-1}")
        e(f"v_lshlrev_b32 v{self.vDA}, 4, v0")
        e(f"s_mul_i32 s{st}, s{st}, {TM*1024}")
        e(f"s_add_u32 s{st}, s{st}, {self.lds_base}")
        e(f"v_add_u32 v{self.vA0}, s{st}, v{self.vDA}")
        e(f"v_bfe_u32 v{t}, v0, 2, 2")
        e(f"v_lshrrev_b32 v{t+1}, 5, v0")
        hmul = 8 if self.korder == 'nat' else 4
        e(f"v_mad_u32_u24 v{t+1}, v{t+1}, {hmul}, v{t}")
        e(f"v_mul_u32_u24 v{t+1}, {self.pitch}, v{t+1}")
        e(f"v_bfe_u32 v{t+2}, v0, 4, 1")
        e(f"v_lshl_add_u32 v{t+1}, v{t+2}, 5, v{t+1}")
        e(f"v_and_b32 v{t+2}, 3, v0")
        e(f"v_lshl_add_u32 v{t+1}, v{t+2}, 3, v{t+1}")
        e(f"v_add_u32 v{t+1}, {self.lds_base + self.ASB}, v{t+1}")
        if self.pitch == 128:
            e(f"v_lshrrev_b32 v{t}, 1, v{t}")
        for j in range(TN):
            e(f"s_mul_i32 s{st}, s{st+1}, {TN}")
            e(f"s_add_u32 s{st}, s{st}, {j}")
            e(f"v_xor_b32 v{t+2}, s{st}, v{t}")
            e(f"v_lshl_add_u32 v{self.vB0[j]}, v{t+2}, 6, v{t+1}")
        e(f"s_mov_b32 s{self.sRd}, 0")

    def reads(self, e, p, kg):
        a, b = self.fr[p]
        ra = [f"ds_read_b128 v[{a[j]}:{a[j]+3}], v{self.vA} offset:{kg*self.NT*1024 + j*1024}" for j in range(self.TM)]
        tmul = 4 if self.korder == 'nat' else 8
        rb = []
        for j in range(self.TN):
            for t in range(2):
                rb.append(f"ds_read_b64_tr_b16 v[{b[j]+2*t}:{b[j]+2*t+1}], v{self.vB[j]} offset:{(kg*16 + t*tmul)*self.pitch}")
        return ra[:1] + rb + ra[1:]

    def nreads(self):
        return self.TM + 2 * self.TN

    def mfmas(self, p, orient):
        a, b = self.fr[p]
        out = []
        for tm in range(self.TM):
            for tn in range(self.TN):
                d = self.accr(tm, tn)
                if orient == 'n':
                    s0, s1 = b[tn], a[tm]
                else:
                    s0, s1 = a[tm], b[tn]
                out.append(f"v_mfma_f32_32x32x16_bf16 v[{d}:{d+15}], v[{s0}:{s0+3}], v[{s1}:{s1+3}], v[{d}:{d+15}]")
        return out

    def set_bases(self, e):
        e(f"v_add_u32 v{self.vA}, s{self.sRd}, v{self.vA0}")
        for j in range(self.TN):
            e(f"v_add_u32 v{self.vB[j]}, s{self.sRd}, v{self.vB0[j]}")

    def adv_rd(self, e):
        e(f"s_add_u32 s{self.sRd}, s{self.sRd}, {self.SB}")
        e(f"s_cmp_eq_u32 s{self.sRd}, {self.SB*self.NBUF}")
        e(f"s_cselect_b32 s{self.sRd}, 0, s{self.sRd}")

    def main(self, e, orient, tag, after_first=None):
        L = f"{self.pfx}_{tag}_loop"
        self.set_bases(e)
        e(f"s_mov_b32 s{self.sCnt}, {self.NST}")
        stamp(e, 1)
        e("s_barrier")
        stamp(e, 2)
        for r in self.reads(e, 0, 0):
            e(r)
        if after_first:
            after_first()
        e(f"{L}:")
        e("s_barrier")
        nr = self.nreads()
        for kg in range(self.KGS):
            p = kg & 1
            last = kg == self.KGS - 1
            rd = self.reads(e, p ^ 1, 0 if last else kg + 1)
            mf = self.mfmas(p, orient)
            need = []
            for tm in range(self.TM):
                for tn in range(self.TN):
                    nb = 1 + 2 * (tn + 1)
                    na = 1 if tm == 0 else 1 + 2 * self.TN + tm
                    need.append(max(nb, na))
            nm = len(mf)
            gaps = max(1, nm - 2) if nm > 2 else 1
            per = (nr + gaps - 1) // gaps
            issued = 0
            have = 0
            for i in range(nm):
                if need[i] > have:
                    if not os.environ.get("NOLDS"):
                        e(f"s_waitcnt lgkmcnt({nr - need[i] + issued})")
                    have = need[i]
                if not os.environ.get("NOMFMA"):
                    e(mf[i])
                if i == 0 and last:
                    self.adv_rd(e)
                    self.set_bases(e)
                for r in rd[issued:issued + per]:
                    if not os.environ.get("NOLDS"):
                        e(r)
                issued = min(nr, issued + per)
            assert issued == nr
        e(f"s_sub_u32 s{self.sCnt}, s{self.sCnt}, 1")
        e(f"s_cmp_lg_u32 s{self.sCnt}, 0")
        e(f"s_cbranch_scc1 {L}")
        e("s_waitcnt lgkmcnt(0)")
        e("s_nop 15")
        stamp(e, 3)


def load_bias_init(e, g, srdB, sN0, tmp):
    e(f"v_lshrrev_b32 v{g.vt}, 5, v0")
    e(f"v_lshlrev_b32 v{g.vt}, 3, v{g.vt}")
    for tn in range(g.TN):
        for gg in range(4):
            r = tmp + (tn * 4 + gg) * 2
            e(f"buffer_load_dwordx2 v[{r}:{r+1}], v{g.vt}, s[{srdB}:{srdB+3}], {sN0} offen offset:{(tn*32+gg*8)*2}")


def finish_bias_init(e, g, tmp):
    for tn in range(g.TN):
        for gg in range(4):
            r = tmp + (tn * 4 + gg) * 2
            for tm in range(g.TM):
                d = g.accr(tm, tn) + gg * 4
                e(f"v_lshlrev_b32 v{d}, 16, v{r}")
                e(f"v_and_b32 v{d+1}, 0xffff0000, v{r}")
                e(f"v_lshlrev_b32 v{d+2}, 16, v{r+1}")
                e(f"v_and_b32 v{d+3}, 0xffff0000, v{r+1}")


K1_KGS = 2
K1_NBUF = 6


F_SB = 49152
F_ASB = 32768
F_NBUF = 3
F_NST = 10
F_MU = F_SB * F_NBUF
F_RS = F_MU + 1024
F_CS = F_RS + 1024
F_BI = F_CS + 512
F_LDS = F_BI + 256
F_PART = F_SB * 1


def gen_k1(e):
    kernel_head(e, "gemm1_kernel")
    e("""
    s_cmp_ge_u32 s2, 256
    s_cbranch_scc1 k1_done
    s_load_dwordx2 s[4:5], s[0:1], 80
    s_load_dwordx2 s[6:7], s[0:1], 8
    s_load_dwordx2 s[8:9], s[0:1], 32
    s_load_dwordx2 s[10:11], s[0:1], 40
    s_load_dwordx2 s[60:61], s[0:1], 0
    v_lshrrev_b32 v1, 6, v0
    v_and_b32 v0, 63, v0
    s_and_b32 s20, s2, 7
    v_readfirstlane_b32 s24, v1
    s_lshr_b32 s21, s2, 3
    s_and_b32 s22, s21, 3
    s_lshr_b32 s21, s21, 2
    s_lshr_b32 s26, s20, 2
    s_bfe_u32 s23, s20, 0x10001
    s_lshl_b32 s23, s23, 2
    s_add_u32 s23, s23, s22
    s_and_b32 s27, s20, 1
    """)
    e("""
    s_cmp_eq_u32 s26, 0
    s_cselect_b32 s25, 8, 7
    s_mul_i32 s25, s25, s27
    s_add_u32 s25, s25, s21
    s_cmp_eq_u32 s26, 0
    s_cselect_b32 s27, 15, 14
    s_cselect_b32 s28, 8, 7
    s_cmp_ge_u32 s25, s27
    s_cbranch_scc1 k1_done
    s_cmp_ge_u32 s21, s28
    s_cbranch_scc1 k1_done
    s_lshl_b32 s28, s25, 8
    s_waitcnt lgkmcnt(0)
    """)
    srd(e, 36, "s4", "s5", WS_BYTES)
    stamp_rt(e, 10)
    stamp(e, 0)
    e("s_cmp_lt_u32 s24, 8")
    e("s_cbranch_scc1 k1_compute")
    vDAe, vDAo, vDB = 2, 3, 4
    vSB, vRB = 6, 8
    vOne, vLo, vHi = 9, 10, 11
    aS, aQ = 12, 13
    aC = 16
    RB = 24
    T = 56
    AX = 64
    aS4, aQ4 = 72, 76
    e("s_sub_u32 s30, s24, 8")
    e("""
    s_cmp_eq_u32 s26, 0
    s_cselect_b32 s32, s6, s8
    s_cselect_b32 s33, s7, s9
    """)
    csel(e, "s29", 3840, 3456)
    csel(e, "s34", 640*3840, 640*3456)
    e("""
    s_add_u32 s16, s32, s28
    s_addc_u32 s17, s33, 0
    s_and_b32 s17, s17, 0xffff
    s_sub_u32 s18, s34, s28
    s_mov_b32 s19, 0x00020000
    """)
    srd(e, 12, "s60", "s61", 2048 * 1280)
    e(f"v_lshrrev_b32 v{T}, 3, v0")
    e(f"v_mul_u32_u24 v{T}, 1280, v{T}")
    e(f"v_and_b32 v{T+1}, 7, v0")
    e(f"v_lshrrev_b32 v{T+2}, 4, v0")
    e(f"v_xor_b32 v{T+3}, v{T+1}, v{T+2}")
    e(f"v_lshl_add_u32 v{vDAe}, v{T+3}, 4, v{T}")
    e(f"v_xor_b32 v{T+3}, 4, v{T+3}")
    e(f"v_lshl_add_u32 v{vDAo}, v{T+3}, 4, v{T}")
    e(f"v_lshrrev_b32 v{T}, 4, v0")
    e(f"v_bfe_u32 v{T+1}, v0, 2, 2")
    e(f"v_xor_b32 v{T+1}, v{T+1}, v{T}")
    e(f"v_and_b32 v{T+2}, 3, v0")
    e(f"v_lshlrev_b32 v{T+2}, 4, v{T+2}")
    e(f"v_lshl_add_u32 v{T+2}, v{T+1}, 6, v{T+2}")
    e(f"v_mul_lo_u32 v{T+3}, v{T}, s29")
    e(f"v_add_u32 v{vDB}, v{T+3}, v{T+2}")
    e("s_lshl_b32 s40, s23, 8")
    e("s_lshl_b32 s31, s30, 5")
    e("s_add_u32 s40, s40, s31")
    e("s_mul_i32 s40, s40, 1280")
    e("s_lshl_b32 s41, s30, 3")
    e("s_mul_i32 s41, s41, s29")
    e("s_lshl_b32 s44, s29, 6")
    e("s_lshl_b32 s45, s29, 2")
    e("s_lshl_b32 s46, s30, 12")
    e("s_lshl_b32 s47, s30, 11")
    e(f"s_add_u32 s47, s47, {F_ASB}")
    e("s_mov_b32 s42, 0")
    e("s_mov_b32 s43, 0")
    e("s_mov_b32 s48, 0")

    def issue_ops():
        pre = [f"s_cmp_lt_u32 s43, {F_NST}",
               "s_cselect_b32 s50, s40, 0x7ff00000",
               "s_cselect_b32 s51, s41, 0x7ff00000",
               "s_add_u32 s52, s42, s46",
               "s_add_u32 s53, s42, s47"]
        groups = []
        for i in range(4):
            groups.append([f"s_add_u32 m0, s52, {i*1024}",
                           f"s_add_u32 s50, s50, {8*1280}" if i else "s_nop 0",
                           f"buffer_load_dwordx4 v{vDAo if i & 1 else vDAe}, s[12:15], s50 offen lds"])
        for i in range(2):
            groups.append([f"s_add_u32 m0, s53, {i*1024}",
                           "s_add_u32 s51, s51, s45" if i else "s_nop 0",
                           f"buffer_load_dwordx4 v{vDB}, s[16:19], s51 offen lds"])
        tail = ["s_add_u32 s40, s40, 128",
                "s_add_u32 s41, s41, s44",
                "s_add_u32 s43, s43, 1",
                f"s_add_u32 s42, s42, {F_SB}",
                f"s_cmp_eq_u32 s42, {F_SB*F_NBUF}",
                "s_cselect_b32 s42, 0, s42"]
        return pre, groups, tail

    def issue():
        pre, groups, tail = issue_ops()
        for x in pre:
            e(x)
        for g_ in groups:
            for x in g_:
                e(x)
        for x in tail:
            e(x)
    D = 6
    e("s_cmp_lg_u32 s30, 7")
    e("s_cbranch_scc1 k1_nb")
    srd(e, 56, "s10", "s11", 1728 * 2)
    e(f"v_lshlrev_b32 v{T+3}, 4, v0")
    e(f"s_mov_b32 m0, {F_BI}")
    e("s_mov_b64 exec, 0xffff")
    e(f"buffer_load_dwordx4 v{T+3}, s[56:59], s28 offen lds")
    e("s_mov_b64 exec, -1")
    e("k1_nb:")
    issue()
    issue()
    e(f"s_lshl_b32 s31, s30, 2")
    e(f"v_add_u32 v{T+4}, s31, v{T}")
    e(f"v_lshlrev_b32 v{T+4}, 9, v{T+4}")
    e(f"v_lshl_add_u32 v{T+4}, v{T+2}, 1, v{T+4}")
    e(f"v_add_u32 v{T+4}, {F_PART}, v{T+4}")
    e(f"v_and_b32 v{T+5}, 31, v0")
    e(f"v_lshlrev_b32 v{T+5}, 7, v{T+5}")
    e(f"v_add_u32 v{T+5}, s46, v{T+5}")
    e(f"v_bfe_u32 v{T+6}, v0, 1, 3")
    e(f"v_lshrrev_b32 v{T+7}, 5, v0")
    for j in range(4):
        e(f"v_add_u32 v{AX+j}, {2*j}, v{T+7}")
        e(f"v_xor_b32 v{AX+j}, v{AX+j}, v{T+6}")
        e(f"v_lshl_add_u32 v{AX+j}, v{AX+j}, 4, v{T+5}")
    e(f"v_lshlrev_b32 v{vSB}, 4, v0")
    e(f"v_add_u32 v{vSB}, s47, v{vSB}")
    e(f"v_mov_b32 v{vOne}, 0x3f803f80")
    e(f"v_mov_b32 v{vLo}, 0x00003f80")
    e(f"v_mov_b32 v{vHi}, 0x3f800000")
    for i in range(8):
        e(f"v_mov_b32 v{aC+i}, 0")
        e(f"v_mov_b32 v{aS4+i}, 0")
    if os.environ.get("HPRIO"):
        e(f"s_setprio {os.environ['HPRIO']}")

    def issue_and_stats():
        pre, groups, tail = issue_ops()
        for j in range(4):
            e(f"v_add_u32 v{T+6}, s48, v{AX+j}")
            e(f"ds_read_b128 v[{RB+4*j}:{RB+4*j+3}], v{T+6}")
        e(f"v_add_u32 v{vRB}, s48, v{vSB}")
        for j in range(2):
            e(f"ds_read_b128 v[{RB+16+4*j}:{RB+16+4*j+3}], v{vRB} offset:{j*1024}")
        for x in pre:
            e(x)
        for j in range(4):
            for x in groups[j]:
                e(x)
            e(f"s_waitcnt lgkmcnt({5-j})")
            for i in range(4):
                r = RB + 4 * j + i
                e(f"v_dot2_f32_bf16 v{aS4+i}, v{r}, v{vOne}, v{aS4+i}")
                e(f"v_dot2_f32_bf16 v{aQ4+i}, v{r}, v{r}, v{aQ4+i}")
        for j in range(2):
            for x in groups[4 + j]:
                e(x)
            e(f"s_waitcnt lgkmcnt({1-j})")
            for i in range(4):
                r = RB + 16 + 4 * j + i
                e(f"v_dot2_f32_bf16 v{aC+2*i}, v{r}, v{vLo}, v{aC+2*i}")
                e(f"v_dot2_f32_bf16 v{aC+2*i+1}, v{r}, v{vHi}, v{aC+2*i+1}")
        for x in tail:
            e(x)
        e(f"s_add_u32 s48, s48, {F_SB}")
        e(f"s_cmp_eq_u32 s48, {F_SB*F_NBUF}")
        e("s_cselect_b32 s48, 0, s48")

    e(f"s_waitcnt vmcnt({D})")
    e("s_barrier")
    e(f"s_mov_b32 s49, {F_NST}")
    e("k1_hl:")
    issue_and_stats()
    e(f"s_waitcnt vmcnt({D})")
    e("s_barrier")
    e("s_sub_u32 s49, s49, 1")
    e("s_cmp_lg_u32 s49, 0")
    e("s_cbranch_scc1 k1_hl")
    e("s_nop 2")
    e(f"v_add_f32 v{aS4}, v{aS4}, v{aS4+1}")
    e(f"v_add_f32 v{aS4+2}, v{aS4+2}, v{aS4+3}")
    e(f"v_add_f32 v{aQ4}, v{aQ4}, v{aQ4+1}")
    e(f"v_add_f32 v{aQ4+2}, v{aQ4+2}, v{aQ4+3}")
    e(f"v_add_f32 v{aS}, v{aS4}, v{aS4+2}")
    e(f"v_add_f32 v{aQ}, v{aQ4}, v{aQ4+2}")
    e(f"v_mov_b32 v{aS4}, v{aS}")
    e(f"v_mov_b32 v{aQ4}, v{aQ}")
    e("s_nop 1")
    e(f"v_permlane32_swap_b32 v{aS}, v{aS4}")
    e(f"v_permlane32_swap_b32 v{aQ}, v{aQ4}")
    e("s_nop 1")
    e(f"v_add_f32 v{aS}, v{aS}, v{aS4}")
    e(f"v_add_f32 v{aQ}, v{aQ}, v{aQ4}")
    m, v, t1, t2, den1, mb = T, T + 1, T + 2, T + 3, T + 6, T + 7
    e(f"v_mul_f32 v{m}, 0x{f32bits(1.0/640.0):08x}, v{aS}")
    e(f"v_mul_f32 v{v}, 0x{f32bits(1.0/640.0):08x}, v{aQ}")
    e(f"v_fma_f32 v{v}, -v{m}, v{m}, v{v}")
    e(f"v_max_f32 v{v}, 0, v{v}")
    e(f"v_mov_b32 v{mb}, v{m}")
    bf16r(e, mb, t1)
    e(f"v_mov_b32 v{den1}, v{v}")
    bf16r(e, den1, t1)
    e(f"v_add_f32 v{den1}, 0x{f32bits(1e-5):08x}, v{den1}")
    bf16r(e, den1, t1)
    e(f"v_sqrt_f32 v{den1}, v{den1}")
    e("s_nop 0")
    bf16r(e, den1, t1)
    r1 = RB
    e(f"v_rcp_f32 v{r1}, v{den1}")
    e("s_cmp_eq_u32 s26, 0")
    e("s_cbranch_scc1 k1_hq")
    m2, d2 = RB + 1, RB + 2
    e(f"v_sub_f32 v{m2}, v{m}, v{mb}")
    e(f"v_mul_f32 v{m2}, v{m2}, v{r1}")
    bf16r(e, m2, t1)
    e(f"v_mul_f32 v{d2}, v{v}, v{r1}")
    e(f"v_mul_f32 v{d2}, v{d2}, v{r1}")
    bf16r(e, d2, t1)
    e(f"v_add_f32 v{d2}, 0x{f32bits(1e-5):08x}, v{d2}")
    bf16r(e, d2, t1)
    e(f"v_sqrt_f32 v{d2}, v{d2}")
    e("s_nop 0")
    bf16r(e, d2, t1)
    e(f"v_rcp_f32 v{d2}, v{d2}")
    e(f"v_fma_f32 v{mb}, v{m2}, v{den1}, v{mb}")
    e(f"v_mul_f32 v{r1}, v{r1}, v{d2}")
    e("k1_hq:")
    e(f"s_lshl_b32 s31, s30, 7")
    e(f"v_and_b32 v{t1}, 31, v0")
    e(f"v_lshlrev_b32 v{t1}, 2, v{t1}")
    e(f"v_add_u32 v{t1}, s31, v{t1}")
    e(f"v_add_u32 v{t1}, {F_MU}, v{t1}")
    e(f"ds_write_b32 v{t1}, v{mb}")
    e(f"ds_write_b32 v{t1}, v{r1} offset:1024")
    e("s_waitcnt vmcnt(0)")
    e(f"ds_write_b128 v{T+4}, v[{aC}:{aC+3}]")
    e(f"ds_write_b128 v{T+4}, v[{aC+4}:{aC+7}] offset:16")
    e("s_waitcnt lgkmcnt(0)")
    e("s_barrier")
    e(f"v_and_b32 v{t1}, 15, v0")
    e(f"s_lshl_b32 s31, s30, 4")
    e(f"v_add_u32 v{t1}, s31, v{t1}")
    e(f"v_lshlrev_b32 v{t1}, 2, v{t1}")
    e(f"v_lshrrev_b32 v{t2}, 4, v0")
    e(f"v_lshlrev_b32 v{t2}, 12, v{t2}")
    e(f"v_add_u32 v{t2}, v{t2}, v{t1}")
    e(f"v_add_u32 v{t2}, {F_PART}, v{t2}")
    for j in range(8):
        e(f"ds_read_b32 v{RB+j}, v{t2} offset:{j*512}")
    e("s_waitcnt lgkmcnt(0)")
    for j in range(1, 8):
        e(f"v_add_f32 v{RB}, v{RB}, v{RB+j}")
    e(f"v_mov_b32 v{RB+1}, v{RB}")
    e("s_nop 1")
    e(f"v_permlane32_swap_b32 v{RB}, v{RB+1}")
    e("s_nop 1")
    e(f"v_add_f32 v{RB}, v{RB}, v{RB+1}")
    e(f"v_mov_b32 v{RB+1}, v{RB}")
    e("s_nop 1")
    e(f"v_permlane16_swap_b32 v{RB}, v{RB+1}")
    e("s_nop 1")
    e(f"v_add_f32 v{RB}, v{RB}, v{RB+1}")
    e(f"v_add_u32 v{t1}, {F_CS}, v{t1}")
    e(f"ds_write_b32 v{t1}, v{RB}")
    e("s_waitcnt lgkmcnt(0)")
    e("s_barrier")
    e("s_branch k1_end")

    e("k1_compute:")
    ACC = 8
    FR_ = [([72, 76], [80, 84]), ([88, 92], [96, 100])]
    vA0 = [104, 105, 106, 107]
    vB0 = [108, 109]
    vA = [110, 111, 112, 113]
    vB = [114, 115]
    vL = 116
    T = 72
    T0 = 117
    sRd, sCnt, sWM, sWN = 40, 41, 42, 43
    sT = 46

    def accr(tm, tn):
        return ACC + (tm * 2 + tn) * 16
    e(f"s_lshr_b32 s{sWM}, s24, 1")
    e(f"s_and_b32 s{sWN}, s24, 1")
    e(f"v_lshlrev_b32 v{vL}, 4, v0")
    e(f"v_lshrrev_b32 v{T}, 5, v0")
    e(f"v_and_b32 v{T+1}, 31, v0")
    e(f"v_bfe_u32 v{T+2}, v0, 1, 3")
    e(f"s_lshl_b32 s{sT}, s{sWM}, 13")
    e(f"v_lshlrev_b32 v{T+3}, 7, v{T+1}")
    e(f"v_add_u32 v{T+3}, s{sT}, v{T+3}")
    for kg in range(4):
        e(f"v_add_u32 v{T+4}, {2*kg}, v{T}")
        e(f"v_xor_b32 v{T+4}, v{T+4}, v{T+2}")
        e(f"v_lshl_add_u32 v{vA0[kg]}, v{T+4}, 4, v{T+3}")
    e(f"v_bfe_u32 v{T+1}, v0, 2, 2")
    e(f"v_mad_u32_u24 v{T+2}, v{T}, 8, v{T+1}")
    e(f"v_lshlrev_b32 v{T+2}, 8, v{T+2}")
    e(f"v_bfe_u32 v{T+3}, v0, 4, 1")
    e(f"v_lshl_add_u32 v{T+2}, v{T+3}, 5, v{T+2}")
    e(f"v_and_b32 v{T+3}, 3, v0")
    e(f"v_lshl_add_u32 v{T+2}, v{T+3}, 3, v{T+2}")
    e(f"v_add_u32 v{T+2}, {F_ASB}, v{T+2}")
    for j in range(2):
        e(f"s_lshl_b32 s{sT}, s{sWN}, 1")
        e(f"s_add_u32 s{sT}, s{sT}, {j}")
        e(f"v_xor_b32 v{T+3}, s{sT}, v{T+1}")
        e(f"v_lshl_add_u32 v{vB0[j]}, v{T+3}, 6, v{T+2}")
    for i in range(64):
        e(f"v_mov_b32 v{ACC+i}, 0")
    e(f"s_mov_b32 s{sRd}, 0")

    def set_bases():
        for kg in range(4):
            e(f"v_add_u32 v{vA[kg]}, s{sRd}, v{vA0[kg]}")
        for j in range(2):
            e(f"v_add_u32 v{vB[j]}, s{sRd}, v{vB0[j]}")

    def reads(p, kg):
        a, b = FR_[p]
        ra = [f"ds_read_b128 v[{a[j]}:{a[j]+3}], v{vA[kg]} offset:{j*4096}" for j in range(2)]
        rb = []
        for j in range(2):
            for t in range(2):
                rb.append(f"ds_read_b64_tr_b16 v[{b[j]+2*t}:{b[j]+2*t+1}], v{vB[j]} offset:{(kg*16 + t*4)*256}")
        return ra[:1] + rb + ra[1:]

    def mfmas(p, orient):
        a, b = FR_[p]
        out = []
        for tm in range(2):
            for tn in range(2):
                d = accr(tm, tn)
                s0, s1 = (b[tn], a[tm]) if orient == 'n' else (a[tm], b[tn])
                out.append(f"v_mfma_f32_32x32x16_bf16 v[{d}:{d+15}], v[{s0}:{s0+3}], v[{s1}:{s1+3}], v[{d}:{d+15}]")
        return out

    def main(orient, tag):
        L = f"k1_{tag}_loop"
        set_bases()
        e(f"s_mov_b32 s{sCnt}, {F_NST}")
        stamp(e, 1)
        e("s_barrier")
        stamp(e, 2)
        for r in reads(0, 0):
            e(r)
        e(f"{L}:")
        for kg in range(4):
            p = kg & 1
            mf = mfmas(p, orient)
            if kg < 3:
                rd = reads(p ^ 1, kg + 1)
                e("s_waitcnt lgkmcnt(3)")
                e(mf[0])
                for r in rd[:3]:
                    e(r)
                e("s_waitcnt lgkmcnt(4)")
                e(mf[1])
                for r in rd[3:]:
                    e(r)
                e("s_waitcnt lgkmcnt(6)")
                e(mf[2])
                e(mf[3])
            else:
                e(f"s_add_u32 s{sRd}, s{sRd}, {F_SB}")
                e(f"s_cmp_eq_u32 s{sRd}, {F_SB*F_NBUF}")
                e(f"s_cselect_b32 s{sRd}, 0, s{sRd}")
                e("s_waitcnt lgkmcnt(0)")
                e("s_barrier")
                e(mf[0])
                set_bases()
                rd = reads(p ^ 1, 0)
                for r in rd[:3]:
                    e(r)
                e(mf[1])
                for r in rd[3:]:
                    e(r)
                e(mf[2])
                e(mf[3])
        e(f"s_sub_u32 s{sCnt}, s{sCnt}, 1")
        e(f"s_cmp_lg_u32 s{sCnt}, 0")
        e(f"s_cbranch_scc1 {L}")
        e("s_waitcnt lgkmcnt(0)")
        stamp(e, 3)
        e("s_barrier")
        e("s_barrier")

    MU, CSr, AD = 104, 72, 108

    def ln_fix_n(scale_sgpr):
        e(f"v_and_b32 v{AD}, 31, v0")
        e(f"s_lshl_b32 s{sT}, s{sWM}, 8")
        e(f"v_lshlrev_b32 v{AD}, 2, v{AD}")
        e(f"v_add_u32 v{AD}, s{sT}, v{AD}")
        e(f"v_add_u32 v{AD}, {F_MU}, v{AD}")
        e(f"ds_read_b32 v{MU}, v{AD}")
        e(f"ds_read_b32 v{MU+1}, v{AD} offset:128")
        e(f"ds_read_b32 v{MU+2}, v{AD} offset:1024")
        e(f"ds_read_b32 v{MU+3}, v{AD} offset:1152")
        e(f"v_lshrrev_b32 v{AD+1}, 5, v0")
        e(f"v_lshlrev_b32 v{AD+1}, 4, v{AD+1}")
        e(f"s_lshl_b32 s{sT}, s{sWN}, 8")
        e(f"v_add_u32 v{AD+1}, s{sT}, v{AD+1}")
        e(f"v_add_u32 v{AD+1}, {F_CS}, v{AD+1}")
        for tn in range(2):
            for gg in range(4):
                e(f"ds_read_b128 v[{CSr+16*tn+4*gg}:{CSr+16*tn+4*gg+3}], v{AD+1} offset:{(tn*32+gg*8)*4}")
        for tn in range(2):
            e(f"s_waitcnt lgkmcnt({4 if tn == 0 else 0})")
            if tn == 0 and scale_sgpr:
                e(f"v_mul_f32 v{MU+2}, {scale_sgpr}, v{MU+2}")
                e(f"v_mul_f32 v{MU+3}, {scale_sgpr}, v{MU+3}")
            for tm in range(2):
                a = accr(tm, tn)
                for i in range(16):
                    e(f"v_fma_f32 v{a+i}, -v{MU+tm}, v{CSr+16*tn+i}, v{a+i}")

    e("s_cmp_eq_u32 s26, 0")
    e("s_cbranch_scc1 k1_qkv")
    main('n', 'mlp')
    e(f"s_lshl_b32 s{sT}, s{sWN}, 6")
    e(f"s_lshr_b32 s{sT+1}, s28, 1")
    e(f"s_add_u32 s{sT+6}, s{sT}, s{sT+1}")
    e(f"s_cmp_ge_u32 s{sT+6}, 1728")
    e("s_cbranch_scc1 k1_end")
    ln_fix_n(None)
    BI = 88
    e(f"v_lshrrev_b32 v{AD}, 5, v0")
    e(f"v_lshlrev_b32 v{AD}, 3, v{AD}")
    e(f"s_lshl_b32 s{sT}, s{sWN}, 7")
    e(f"v_add_u32 v{AD}, s{sT}, v{AD}")
    e(f"v_add_u32 v{AD}, {F_BI}, v{AD}")
    for tn in range(2):
        for gg in range(4):
            r = BI + (tn * 4 + gg) * 2
            e(f"ds_read_b64 v[{r}:{r+1}], v{AD} offset:{(tn*32+gg*8)*2}")
    e("s_waitcnt lgkmcnt(0)")
    for tn in range(2):
        for gg in range(4):
            r = BI + (tn * 4 + gg) * 2
            e(f"v_lshlrev_b32 v{T}, 16, v{r}")
            e(f"v_and_b32 v{T+1}, 0xffff0000, v{r}")
            e(f"v_lshlrev_b32 v{T+2}, 16, v{r+1}")
            e(f"v_and_b32 v{T+3}, 0xffff0000, v{r+1}")
            for tm in range(2):
                a = accr(tm, tn) + gg * 4
                for i in range(4):
                    e(f"v_fma_f32 v{a+i}, v{a+i}, v{MU+2+tm}, v{T+i}")
    e(f"s_lshl_b32 s{sT+1}, s23, 3")
    e(f"s_lshl_b32 s{sT+7}, s{sWM}, 1")
    e(f"s_add_u32 s{sT+1}, s{sT+1}, s{sT+7}")
    e(f"s_lshr_b32 s{sT}, s{sT+6}, 4")
    e(f"s_lshl_b32 s{sT}, s{sT}, 6")
    e(f"s_add_u32 s{sT}, s{sT}, s{sT+1}")
    e(f"s_lshl_b32 s{sT}, s{sT}, 10")
    e(f"s_add_u32 s{sT}, s{sT}, {H_OFF}")
    for i in range(1, 4):
        e(f"s_add_u32 s{sT+i}, s{sT}, {65536*i}")
    c0 = -2.0 * math.sqrt(2.0 / math.pi) * 1.4426950408889634
    c1 = c0 * 0.044715
    tmpv = 110
    e(f"v_mov_b32 v{tmpv}, 0x{f32bits(c0):08x}")
    e(f"v_mov_b32 v{tmpv+1}, 0x{f32bits(c1):08x}")
    for tm in range(2):
        for tn in range(2):
            a = accr(tm, tn)
            for half in range(2):
                t = 72 + 8 * ((tm * 4 + tn * 2 + half) & 1)
                pk = 88 + 4 * ((tm * 4 + tn * 2 + half) & 1)
                r0 = a + half * 8
                for i in range(8):
                    e(f"v_mul_f32 v{t+i}, v{r0+i}, v{r0+i}")
                for i in range(8):
                    e(f"v_fma_f32 v{t+i}, v{t+i}, v{tmpv+1}, v{tmpv}")
                for i in range(8):
                    e(f"v_mul_f32 v{t+i}, v{t+i}, v{r0+i}")
                for i in range(8):
                    e(f"v_exp_f32 v{t+i}, v{t+i}")
                for i in range(8):
                    e(f"v_add_f32 v{t+i}, 1.0, v{t+i}")
                for i in range(8):
                    e(f"v_rcp_f32 v{t+i}, v{t+i}")
                for i in range(8):
                    e(f"v_mul_f32 v{t+i}, v{t+i}, v{r0+i}")
                for i in range(4):
                    e(f"v_cvt_pk_bf16_f32 v{pk+i}, v{t+2*i}, v{t+2*i+1}")
                so = sT + tn * 2 + half
                e(f"buffer_store_dwordx4 v[{pk}:{pk+3}], v{vL}, s[36:39], s{so} offen offset:{tm*1024}")
    e("s_branch k1_end")
    e("k1_qkv:")
    e("s_cmp_ge_u32 s25, 10")
    e("s_cbranch_scc1 k1_v")
    main('n', 'qk')
    qs = (20 ** -0.5) * 1.4426950408889634
    e("s_cmp_lt_u32 s25, 5")
    e(f"s_cselect_b32 s{sT+5}, 0x{f32bits(qs):08x}, 1.0")
    ln_fix_n(f"s{sT+5}")
    e("s_cmp_lt_u32 s25, 5")
    csel(e, f"s{sT+1}", 1280, 2560)
    csel(e, f"s{sT+6}", QF_OFF, KV_OFF)
    e(f"s_cselect_b32 s{sT+7}, 0, 5")
    e(f"s_sub_u32 s{sT+7}, s25, s{sT+7}")
    e(f"s_lshl_b32 s{sT+7}, s{sT+7}, 5")
    e(f"s_lshl_b32 s{sT+2}, s{sWN}, 4")
    e(f"s_add_u32 s{sT+7}, s{sT+7}, s{sT+2}")
    e(f"s_lshl_b32 s{sT+2}, s23, 3")
    e(f"s_lshl_b32 s{sT+3}, s{sWM}, 1")
    e(f"s_add_u32 s{sT+2}, s{sT+2}, s{sT+3}")
    e(f"s_mul_i32 s{sT+2}, s{sT+2}, s{sT+1}")
    e(f"s_add_u32 s{sT+2}, s{sT+2}, s{sT+6}")
    e(f"s_add_u32 s{sT+3}, s{sT+2}, s{sT+1}")
    e(f"s_lshl_b32 s{sT+4}, s{sT+1}, 6")
    t = T
    e(f"v_lshrrev_b32 v{t}, 5, v0")
    e(f"v_add_u32 v{t}, s{sT+7}, v{t}")
    e(f"v_and_b32 v{t+1}, 31, v0")
    e(f"v_lshlrev_b32 v{t+2}, 4, v{t+1}")
    e(f"v_lshlrev_b32 v{t+3}, 3, v{t+1}")
    for tn in range(2):
        for gg in range(4):
            c, hd, j, ad = t + 4, t + 5, t + 6, t + 7
            e(f"v_add_u32 v{c}, {8*tn+2*gg}, v{t}")
            e(f"v_mul_u32_u24 v{hd}, 205, v{c}")
            e(f"v_lshrrev_b32 v{hd}, 10, v{hd}")
            e(f"v_mul_u32_u24 v{j}, 5, v{hd}")
            e(f"v_sub_u32 v{j}, v{c}, v{j}")
            e(f"v_cmp_eq_u32 vcc, 4, v{j}")
            e(f"v_mul_lo_u32 v{ad}, v{hd}, s{sT+4}")
            e(f"v_lshrrev_b32 v{c}, 1, v{j}")
            e(f"v_lshl_add_u32 v{ad}, v{c}, 9, v{ad}")
            e(f"v_and_b32 v{c}, 1, v{j}")
            e(f"v_lshl_add_u32 v{ad}, v{c}, 3, v{ad}")
            e(f"v_cndmask_b32 v{c}, v{t+2}, v{t+3}, vcc")
            e(f"v_add_u32 v{ad}, v{ad}, v{c}")
            for tm in range(2):
                a = accr(tm, tn) + gg * 4
                pk = t + 8 + 2 * tm
                for i in range(4):
                    e(f"v_mul_f32 v{a+i}, v{a+i}, v{MU+2+tm}")
                e(f"v_cvt_pk_bf16_f32 v{pk}, v{a}, v{a+1}")
                e(f"v_cvt_pk_bf16_f32 v{pk+1}, v{a+2}, v{a+3}")
                e(f"buffer_store_dwordx2 v[{pk}:{pk+1}], v{ad}, s[36:39], s{sT+2+tm} offen")
    e("s_branch k1_end")
    e("k1_v:")
    main('t', 'v')
    e("s_waitcnt vmcnt(0)")
    e(f"v_and_b32 v{AD}, 31, v0")
    e(f"v_lshlrev_b32 v{AD}, 2, v{AD}")
    e(f"s_lshl_b32 s{sT}, s{sWN}, 8")
    e(f"v_add_u32 v{AD}, s{sT}, v{AD}")
    e(f"v_add_u32 v{AD}, {F_CS}, v{AD}")
    e(f"ds_read_b32 v104, v{AD}")
    e(f"ds_read_b32 v105, v{AD} offset:128")
    e(f"v_lshrrev_b32 v{AD+1}, 5, v0")
    e(f"v_lshlrev_b32 v{AD+1}, 4, v{AD+1}")
    e(f"s_lshl_b32 s{sT}, s{sWM}, 8")
    e(f"v_add_u32 v{AD+1}, s{sT}, v{AD+1}")
    e(f"v_add_u32 v{AD+1}, {F_MU}, v{AD+1}")
    for tm in range(2):
        MUr, RSr = 72, 88
        for gg in range(4):
            e(f"ds_read_b128 v[{MUr+4*gg}:{MUr+4*gg+3}], v{AD+1} offset:{(tm*32+gg*8)*4}")
            e(f"ds_read_b128 v[{RSr+4*gg}:{RSr+4*gg+3}], v{AD+1} offset:{1024+(tm*32+gg*8)*4}")
        e("s_waitcnt lgkmcnt(0)")
        for tn in range(2):
            a = accr(tm, tn)
            for i in range(16):
                e(f"v_fma_f32 v{a+i}, -v{MUr+i}, v{104+tn}, v{a+i}")
            for i in range(16):
                e(f"v_mul_f32 v{a+i}, v{a+i}, v{RSr+i}")
    e(f"s_sub_u32 s{sT}, s25, 10")
    e(f"s_lshl_b32 s{sT}, s{sT}, 7")
    e(f"s_lshl_b32 s{sT+1}, s{sWN}, 6")
    e(f"s_add_u32 s{sT}, s{sT}, s{sT+1}")
    e(f"s_lshl_b32 s{sT+2}, s23, 3")
    e(f"s_lshl_b32 s{sT+3}, s{sWM}, 1")
    e(f"s_add_u32 s{sT+2}, s{sT+2}, s{sT+3}")
    e(f"s_mul_i32 s{sT+2}, s{sT+2}, 2560")
    e(f"s_add_u32 s{sT+2}, s{sT+2}, {KV_OFF + 1280}")
    e(f"s_mov_b32 s{sT+4}, {64*2560}")
    t = T
    e(f"v_and_b32 v{t}, 31, v0")
    e(f"v_add_u32 v{t}, s{sT}, v{t}")
    e(f"v_lshrrev_b32 v{t+1}, 5, v0")
    e(f"v_mul_u32_u24 v{t+1}, 320, v{t+1}")
    for tn in range(2):
        c, hd, d, ad = t + 4, t + 5, t + 6, t + 7
        e(f"v_add_u32 v{c}, {32*tn}, v{t}")
        e(f"v_mul_u32_u24 v{hd}, 3277, v{c}")
        e(f"v_lshrrev_b32 v{hd}, 16, v{hd}")
        e(f"v_mul_u32_u24 v{d}, 20, v{hd}")
        e(f"v_sub_u32 v{d}, v{c}, v{d}")
        e(f"v_mul_lo_u32 v{ad}, v{hd}, s{sT+4}")
        e(f"v_lshl_add_u32 v{ad}, v{d}, 4, v{ad}")
        e(f"v_add_u32 v{ad}, v{ad}, v{t+1}")
        for tm in range(2):
            a = accr(tm, tn)
            for half in range(2):
                pk = t + 8 + 4 * ((tm * 2 + half) & 1)
                for i in range(4):
                    e(f"v_cvt_pk_bf16_f32 v{pk+i}, v{a+half*8+2*i}, v{a+half*8+2*i+1}")
                e(f"buffer_store_dwordx4 v[{pk}:{pk+3}], v{ad}, s[36:39], s{sT+2} offen offset:{tm*2560+half*640}")
    e("k1_end:")
    stamp(e, 4)
    e("s_waitcnt vmcnt(0)")
    stamp(e, 5)
    stamp_rt(e, 11)
    stamp_store(e, 1, "s24", 36)
    e("k1_done:")
    e("s_endpgm")
    return kd("gemm1_kernel", 120, 96), F_LDS


AT_STAGE = 8 * 2560
K2_KGS = 2
K2_NBUF = 5


def gen_k2(e):
    kernel_head(e, "attn_kernel")
    e("""
    s_cmp_ge_u32 s2, 416
    s_cbranch_scc1 k2_done
    s_load_dwordx2 s[4:5], s[0:1], 80
    s_load_dwordx2 s[6:7], s[0:1], 48
    s_load_dwordx2 s[8:9], s[0:1], 56
    v_lshrrev_b32 v1, 6, v0
    v_and_b32 v0, 63, v0
    s_and_b32 s20, s2, 7
    v_readfirstlane_b32 s24, v1
    s_cmp_ge_u32 s2, 256
    s_cbranch_scc1 k2_mlp
    """)
    Q1, Q2 = 4, 8
    KF = [(12, 16), (20, 24)]
    VF = [(28, 32), (36, 40)]
    SS = [44, 60]
    PP = [76, 84]
    O = 92
    vK, vKh, vV, vKn, vKhn = 108, 109, 110, 111, 112
    vK0, vKh0, vV0 = 113, 114, 115
    vInc, vIncW, vMask, vD2 = 116, 117, 118, 119
    T = 120
    CA = 3 * AT_STAGE
    e("""
    s_lshr_b32 s21, s2, 3
    s_lshr_b32 s22, s21, 3
    s_lshl_b32 s23, s20, 2
    s_add_u32 s22, s22, s23
    s_and_b32 s23, s21, 7
    """)
    e("s_waitcnt lgkmcnt(0)")
    srd(e, 36, "s4", "s5", WS_BYTES)
    stamp_rt(e, 10)
    stamp(e, 0)
    e(f"s_mul_i32 s25, s22, {64*2560}")
    e(f"s_add_u32 s25, s25, {KV_OFF}")
    e("s_add_u32 s12, s4, s25")
    e("s_addc_u32 s13, s5, 0")
    e("s_and_b32 s13, s13, 0xffff")
    e(f"s_mov_b32 s14, {64*2560}")
    e("s_mov_b32 s15, 0x00020000")
    e(f"v_lshlrev_b32 v{vK0}, 4, v0")
    e("s_cmp_lt_u32 s24, 4")
    e("s_mul_i32 s26, s24, 3072")
    e("s_lshl_b32 s27, s24, 11")
    e("s_add_u32 s27, s27, 4096")
    e("s_cmp_lt_u32 s24, 4")
    e("s_cselect_b32 s26, s26, s27")
    e("s_mov_b32 s30, s26")
    e("s_mov_b32 s31, s26")

    def dma(tag):
        e("s_mov_b32 m0, s31")
        e("s_cmp_lt_u32 s24, 4")
        e(f"buffer_load_dwordx4 v{vK0}, s[12:15], s30 offen lds")
        e(f"buffer_load_dwordx4 v{vK0}, s[12:15], s30 offen offset:1024 lds")
        e(f"s_cbranch_scc0 k2_dm{tag}")
        e(f"buffer_load_dwordx4 v{vK0}, s[12:15], s30 offen offset:2048 lds")
        e(f"k2_dm{tag}:")
        e(f"s_add_u32 s31, s31, {AT_STAGE}")
        e(f"s_add_u32 s30, s30, {AT_STAGE}")
        e(f"s_cmp_ge_u32 s31, {3*AT_STAGE}")
        e("s_cselect_b32 s31, s26, s31")
    e(f"v_and_b32 v{T}, 31, v0")
    e(f"v_lshlrev_b32 v{vKh0}, 3, v{T}")
    e(f"v_add_u32 v{vKh0}, 1024, v{vKh0}")
    e("s_lshl_b32 s32, s23, 3")
    e("s_add_u32 s32, s32, s24")
    e("s_lshl_b32 s33, s22, 6")
    e("s_add_u32 s33, s33, s32")
    e("s_mul_i32 s33, s33, 1280")
    e(f"s_add_u32 s33, s33, {QF_OFF}")
    for i in range(4):
        e(f"v_mov_b32 v{Q2+i}, 0")
    dma("p0")
    e(f"buffer_load_dwordx4 v[{Q1}:{Q1+3}], v{vK0}, s[36:39], s33 offen")
    e("s_mov_b32 exec_hi, 0")
    e(f"buffer_load_dwordx2 v[{Q2}:{Q2+1}], v{vKh0}, s[36:39], s33 offen")
    e("s_mov_b64 exec, -1")
    e(f"v_lshrrev_b32 v{T+1}, 5, v0")
    e(f"v_mad_u32_u24 v{vV0}, v{T+1}, 20, v{T}")
    e(f"v_lshlrev_b32 v{vV0}, 4, v{vV0}")
    e(f"v_add_u32 v{vV0}, 1280, v{vV0}")
    e("s_mov_b32 s28, 0x000fffff")
    e("s_mov_b32 s29, 0x000fffff")
    X = SS[0]
    e(f"v_and_b32 v{T+2}, 1, v0")
    e(f"v_cmp_eq_u32 vcc, 0, v{T+2}")
    e(f"v_mov_b32 v{T+3}, 0x3f803f80")
    e(f"v_bfe_u32 v{T+4}, v0, 1, 1")
    e(f"v_mul_u32_u24 v{T+4}, 640, v{T+4}")
    e(f"v_lshl_add_u32 v{T+4}, v{T+2}, 4, v{T+4}")
    for i in range(4):
        e(f"v_cndmask_b32 v{X+i}, 0, v{T+3}, vcc")
    e(f"ds_write_b128 v{T+4}, v[{X}:{X+3}] offset:{CA}")
    e(f"v_cmp_gt_u32 vcc, 20, v{T}")
    e(f"v_cmp_eq_u32 s[40:41], 20, v{T}")
    e(f"v_mov_b32 v{T+5}, {CA+16}")
    e(f"v_mov_b32 v{T+6}, {CA}")
    e(f"v_cndmask_b32 v{T+5}, v{T+5}, v{T+6}, s[40:41]")
    e(f"v_cndmask_b32 v{vV}, v{T+5}, v{vV0}, vcc")
    e(f"v_cndmask_b32 v{vMask}, 0, 1, vcc")
    e(f"v_mul_u32_u24 v{vInc}, 2560, v{vMask}")
    for lo, hi in KF:
        for i in range(4):
            e(f"v_mov_b32 v{hi+i}, 0")
    for a, b in VF:
        for r in (a, b):
            for i in range(4):
                e(f"v_mov_b32 v{r+i}, 0")
    for i in range(8):
        e(f"v_mov_b32 v{PP[1]+i}, 0")
    for i in range(16):
        e(f"v_mov_b32 v{O+i}, 0")
    e(f"v_mov_b32 v{vKn}, v{vK0}")
    e(f"v_mov_b32 v{vKhn}, v{vKh0}")
    e(f"s_mov_b32 s34, {AT_STAGE}")
    e("s_mov_b32 s35, 8")

    def rdK(t, p):
        lo, hi = KF[p]
        a, b = (vK, vKh) if t < 8 else (vKn, vKhn)
        o = (t % 8) * 2560
        return [f"ds_read_b128 v[{lo}:{lo+3}], v{a} offset:{o}",
                f"ds_read_b64 v[{hi}:{hi+1}], v{b} offset:{o}"]

    def rdV(p):
        v0_, v1_ = VF[p]
        return [f"ds_read_b128 v[{v0_}:{v0_+3}], v{vV}",
                f"ds_read_b128 v[{v1_}:{v1_+3}], v{vV} offset:640"]

    def mS(S, p):
        lo, hi = KF[p]
        return [f"v_mfma_f32_32x32x16_bf16 v[{S}:{S+15}], v[{lo}:{lo+3}], v[{Q1}:{Q1+3}], 0",
                f"v_mfma_f32_32x32x16_bf16 v[{S}:{S+15}], v[{hi}:{hi+3}], v[{Q2}:{Q2+3}], v[{S}:{S+15}]"]

    def mPV(p, P):
        v0_, v1_ = VF[p]
        return [f"v_mfma_f32_32x32x16_bf16 v[{O}:{O+15}], v[{v0_}:{v0_+3}], v[{P}:{P+3}], v[{O}:{O+15}]",
                f"v_mfma_f32_32x32x16_bf16 v[{O}:{O+15}], v[{v1_}:{v1_+3}], v[{P+4}:{P+7}], v[{O}:{O+15}]"]

    stamp(e, 1)
    e("s_waitcnt vmcnt(0) lgkmcnt(0)")
    e("s_barrier")
    stamp(e, 2)
    dma("p1")
    for r in rdK(8, 0) + rdK(9, 1):
        e(r)
    e("s_waitcnt lgkmcnt(0)")
    for m in mS(SS[0], 0):
        e(m)
    e("s_nop 7")
    e("k2_stage:")
    e("s_waitcnt vmcnt(0)")
    e("s_barrier")
    dma("l")
    e(f"v_mov_b32 v{vK}, v{vKn}")
    e(f"v_mov_b32 v{vKh}, v{vKhn}")
    e(f"v_add_u32 v{vKn}, s34, v{vK0}")
    e(f"v_add_u32 v{vKhn}, s34, v{vKh0}")
    e("s_cmp_eq_u32 s34, 0")
    csel(e, "s27", 2560 - 3 * AT_STAGE, 2560)
    e(f"v_mul_lo_u32 v{vIncW}, v{vMask}, s27")
    e(f"s_add_u32 s34, s34, {AT_STAGE}")
    e(f"s_cmp_eq_u32 s34, {3*AT_STAGE}")
    e("s_cselect_b32 s34, 0, s34")

    def phase(S, P, mf, extra):
        ex = list(extra)
        for q in range(4):
            e(mf[q])
            for i in range(4):
                e(f"v_exp_f32 v{S+4*q+i}, v{S+4*q+i}")
                if ex and i in (0, 2):
                    x = ex.pop(0)
                    if x:
                        e(x)
            e(f"v_cvt_pk_bf16_f32 v{P+2*q}, v{S+4*q}, v{S+4*q+1}")
            e(f"v_cvt_pk_bf16_f32 v{P+2*q+1}, v{S+4*q+2}, v{S+4*q+3}")
        assert not ex

    for t in range(8):
        p = t & 1
        inc = vIncW if t == 7 else vInc
        X_ = os.environ.get("ATX", "")
        ex = rdV(p) + rdK(t + 2, p) + [f"v_add_u32 v{vV}, v{vV}, v{inc}", None, None, "s_waitcnt lgkmcnt(0)"]
        if "nolds" in X_:
            ex = []
        if "nowait" in X_:
            ex = ex[:-1]
        if "nopsonly" in X_:
            ex = ["s_nop 0"] * 4 + ex[4:]
        if "onlyk" in X_:
            ex = ["s_nop 0"] * 2 + ex[2:]
        if "onlyv" in X_:
            ex = ex[:2] + ["s_nop 0"] * 2 + ex[4:]
        if "late" in X_:
            pass
        PR = os.environ.get("PRIO", "none")
        if PR != "none" and (t == 0 or PR[t] != PR[t-1]):
            e(f"s_setprio {PR[t]}")
        mf = mS(SS[p ^ 1], p ^ 1) + mPV(p ^ 1, PP[p ^ 1])
        if "nopv" in X_:
            mf = mf[:2] + ["s_nop 0", "s_nop 0"]
        if "nos" in X_:
            mf = ["s_nop 0", "s_nop 0"] + mf[2:]
        if "pvq" in X_:
            mf = mf[:2] + [f"v_mfma_f32_32x32x16_bf16 v[{O}:{O+15}], v[{VF[0][0]}:{VF[0][0]+3}], v[{Q1}:{Q1+3}], v[{O}:{O+15}]"] * 2
        if "sacc" in X_:
            mf = [f"v_mfma_f32_32x32x16_bf16 v[{O}:{O+15}], v[{KF[0][0]}:{KF[0][0]+3}], v[{Q1}:{Q1+3}], v[{O}:{O+15}]"] * 2 + mf[2:]
        phase(SS[p], PP[p], mf, ex)
    e("s_sub_u32 s35, s35, 1")
    e("s_cmp_lg_u32 s35, 0")
    e("s_cbranch_scc1 k2_stage")
    for m in mPV(1, PP[1]):
        e(m)
    e("s_waitcnt lgkmcnt(0) vmcnt(0)")
    e("s_nop 15")
    stamp(e, 3)
    L = T
    lo_lim = f32bits(2.0 ** -80)
    hi_lim = f32bits(2.0 ** 100)

    def bcast_l(dst, tmp):
        e(f"v_mov_b32 v{tmp}, v{O+8}")
        e(f"v_mov_b32 v{dst}, v{O+8}")
        e("s_nop 1")
        e(f"v_permlane32_swap_b32 v{tmp}, v{dst}")

    e(f"v_mov_b32 v{T+4}, 0")
    bcast_l(L, T + 2)
    for i in range(12):
        e(f"v_fma_f32 v{T+4}, v{O+i}, 0, v{T+4}")
    e(f"s_mov_b32 s40, 0x{lo_lim:08x}")
    e(f"s_mov_b32 s41, 0x{hi_lim:08x}")
    e(f"v_cmp_u_f32 s[42:43], v{T+4}, v{T+4}")
    e(f"v_cmp_nle_f32 s[44:45], s40, v{L}")
    e(f"v_cmp_nge_f32 s[46:47], s41, v{L}")
    e("s_nop 3")
    e("s_or_b64 s[42:43], s[42:43], s[44:45]")
    e("s_or_b64 s[42:43], s[42:43], s[46:47]")
    e("s_cmp_eq_u64 s[42:43], 0")
    e("s_cbranch_scc1 k2_epi")
    v0_, v1_ = VF[0]
    Sa, Pa = SS[0], PP[0]
    e(f"v_and_b32 v{T+2}, 31, v0")
    e(f"v_cmp_eq_u32 vcc, 20, v{T+2}")
    e(f"v_mov_b32 v{T+3}, 0x3f803f80")
    e("s_nop 0")
    for r in (v0_, v1_):
        for i in range(4):
            e(f"v_cndmask_b32 v{r+i}, 0, v{T+3}, vcc")
    lo, hi = KF[0]
    M = T + 6
    e(f"v_mov_b32 v{M}, 0xff800000")
    e("s_mov_b32 s40, 0")
    e(f"k2_fb1:")
    e(f"buffer_load_dwordx4 v[{lo}:{lo+3}], v{vK0}, s[12:15], s40 offen")
    e(f"buffer_load_dwordx2 v[{hi}:{hi+1}], v{vKh0}, s[12:15], s40 offen")
    e("s_waitcnt vmcnt(0)")
    for m in mS(Sa, 0):
        e(m)
    e("s_nop 15")
    e("s_nop 3")
    for i in range(8):
        e(f"v_max3_f32 v{M}, v{Sa+2*i}, v{Sa+2*i+1}, v{M}")
    e("s_add_u32 s40, s40, 2560")
    e(f"s_cmp_lt_u32 s40, {64*2560}")
    e(f"s_cbranch_scc1 k2_fb1")
    e(f"v_mov_b32 v{M+1}, v{M}")
    e("s_nop 1")
    e(f"v_permlane32_swap_b32 v{M}, v{M+1}")
    e("s_nop 1")
    e(f"v_max_f32 v{M}, v{M}, v{M+1}")
    for i in range(16):
        e(f"v_mov_b32 v{O+i}, 0")
    e("s_mov_b32 s40, 0")
    e(f"k2_fb2:")
    e(f"buffer_load_dwordx4 v[{lo}:{lo+3}], v{vK0}, s[12:15], s40 offen")
    e(f"buffer_load_dwordx2 v[{hi}:{hi+1}], v{vKh0}, s[12:15], s40 offen")
    e("s_mov_b64 exec, s[28:29]")
    e(f"buffer_load_dwordx4 v[{v0_}:{v0_+3}], v{vV0}, s[12:15], s40 offen")
    e(f"buffer_load_dwordx4 v[{v1_}:{v1_+3}], v{vV0}, s[12:15], s40 offen offset:640")
    e("s_mov_b64 exec, -1")
    e("s_waitcnt vmcnt(0)")
    for m in mS(Sa, 0):
        e(m)
    e("s_nop 15")
    e("s_nop 3")
    for i in range(16):
        e(f"v_sub_f32 v{Sa+i}, v{Sa+i}, v{M}")
    for i in range(16):
        e(f"v_exp_f32 v{Sa+i}, v{Sa+i}")
    e("s_nop 0")
    for i in range(8):
        e(f"v_cvt_pk_bf16_f32 v{Pa+i}, v{Sa+2*i}, v{Sa+2*i+1}")
    e("s_nop 1")
    for m in mPV(0, Pa):
        e(m)
    e("s_add_u32 s40, s40, 2560")
    e(f"s_cmp_lt_u32 s40, {64*2560}")
    e("s_nop 7")
    e(f"s_cbranch_scc1 k2_fb2")
    e("s_nop 15")
    bcast_l(L, T + 2)
    e("k2_epi:")
    e("s_lshl_b32 s41, s22, 6")
    e("s_add_u32 s41, s41, s32")
    e("s_lshl_b32 s41, s41, 10")
    e(f"s_add_u32 s41, s41, {O_OFF}")
    e("s_lshr_b32 s43, s22, 2")
    e("s_add_u32 s43, s43, 32")
    e("s_lshl_b32 s43, s43, 6")
    e("s_add_u32 s43, s43, s32")
    e("s_lshl_b32 s43, s43, 10")
    e("s_bfe_u32 s44, s22, 0x10001")
    e("s_lshl_b32 s44, s44, 9")
    e("s_add_u32 s43, s43, s44")
    e("s_and_b32 s44, s22, 1")
    e("s_lshl_b32 s44, s44, 3")
    e("s_add_u32 s43, s43, s44")
    e(f"s_add_u32 s43, s43, {O_OFF}")
    e(f"v_rcp_f32 v{L}, v{L}")
    e("s_nop 0")
    pk = PP[0]
    for i in range(12):
        e(f"v_mul_f32 v{O+i}, v{O+i}, v{L}")
    for i in range(6):
        e(f"v_cvt_pk_bf16_f32 v{pk+i}, v{O+2*i}, v{O+2*i+1}")
    e(f"buffer_store_dwordx4 v[{pk}:{pk+3}], v{vK0}, s[36:39], s41 offen")
    e("s_mov_b32 exec_hi, 0")
    e(f"buffer_store_dwordx2 v[{pk+4}:{pk+5}], v{vK0}, s[36:39], s43 offen")
    e("s_mov_b64 exec, -1")
    e("s_branch k2_end")

    e("k2_mlp:")
    if os.environ.get("PRIO", "none") != "none":
        e("s_setprio 3")
    g = Gemm("k2", NWM=2, NWN=2, TM=2, TN=1, KGS=K2_KGS, NBUF=K2_NBUF, KG=108, korder='d', NL=1, vbase=8, sbase=40)
    e("""
    s_sub_u32 s21, s2, 256
    s_lshr_b32 s21, s21, 3
    s_cmp_ge_u32 s21, 10
    s_cselect_b32 s22, 1, 0
    s_cselect_b32 s23, 10, 0
    s_sub_u32 s25, s21, s23
    s_lshl_b32 s23, s20, 1
    s_add_u32 s23, s23, s22
    s_lshl_b32 s28, s25, 7
    s_mov_b32 s29, 1280
    s_waitcnt lgkmcnt(0)
    """)
    srd(e, 36, "s4", "s5", WS_BYTES)
    stamp_rt(e, 10)
    stamp(e, 0)
    e("s_cmp_lt_u32 s24, 4")
    e("s_cbranch_scc1 k2_mc")
    e("s_cmp_gt_u32 s24, 4")
    e("s_cbranch_scc1 k2_done")
    e("""
    s_add_u32 s16, s6, s28
    s_addc_u32 s17, s7, 0
    s_and_b32 s17, s17, 0xffff
    """)
    e(f"s_sub_u32 s18, {1728*1280}, s28")
    e("s_mov_b32 s19, 0x00020000")
    e(f"s_add_u32 s12, s4, {H_OFF}")
    e("s_addc_u32 s13, s5, 0")
    e("s_and_b32 s13, s13, 0xffff")
    e(f"s_mov_b32 s14, {108*65536}")
    e("s_mov_b32 s15, 0x00020000")
    e("s_lshl_b32 s34, s23, 12")
    g.loader_setup(e, "s29", "s34")
    g.loader(e, 0, 12, 16, "k2_end")
    e("k2_mc:")
    g.setup(e, "s24")
    sWM, sWN = g.send, g.send + 1
    e(f"s_lshr_b32 s{sWM}, s24, 1")
    e(f"s_and_b32 s{sWN}, s24, 1")
    sT = (g.send + 2 + 3) // 4 * 4 + 2
    tmpv = g.vend
    srd(e, sT + 2, "s8", "s9", 640 * 2)
    e(f"s_lshl_b32 s{sT}, s{sWN}, 6")
    e(f"s_add_u32 s{sT}, s{sT}, s28")
    load_bias_init(e, g, sT + 2, f"s{sT}", tmpv)
    e(f"s_waitcnt vmcnt(0)")
    finish_bias_init(e, g, tmpv)
    g.main(e, 'n', 'm')
    e(f"s_lshl_b32 s{sT}, s23, 2")
    e(f"s_lshl_b32 s{sT+1}, s{sWM}, 1")
    e(f"s_add_u32 s{sT}, s{sT}, s{sT+1}")
    e(f"s_mul_i32 s{sT}, s{sT}, 20")
    e(f"s_lshl_b32 s{sT+1}, s25, 1")
    e(f"s_add_u32 s{sT}, s{sT}, s{sT+1}")
    e(f"s_add_u32 s{sT}, s{sT}, s{sWN}")
    e(f"s_lshl_b32 s{sT}, s{sT}, 11")
    e(f"s_add_u32 s{sT}, s{sT}, {G_OFF}")
    e(f"s_add_u32 s{sT+1}, s{sT}, {20*2048}")
    e(f"v_mov_b32 v{tmpv}, 0x{f32bits(-1.4426950408889634):08x}")
    for tm in range(2):
        a = g.accr(tm, 0)
        for half in range(2):
            t = tmpv + 4 + 8 * half
            pk = tmpv + 20 + 4 * half
            r0 = a + half * 8
            for i in range(8):
                e(f"v_mul_f32 v{t+i}, v{r0+i}, v{tmpv}")
            for i in range(8):
                e(f"v_exp_f32 v{t+i}, v{t+i}")
            for i in range(8):
                e(f"v_add_f32 v{t+i}, 1.0, v{t+i}")
            for i in range(8):
                e(f"v_rcp_f32 v{t+i}, v{t+i}")
            for i in range(8):
                e(f"v_mul_f32 v{t+i}, v{t+i}, v{r0+i}")
            for i in range(4):
                e(f"v_cvt_pk_bf16_f32 v{pk+i}, v{t+2*i}, v{t+2*i+1}")
            e(f"buffer_store_dwordx4 v[{pk}:{pk+3}], v{g.vDA}, s[36:39], s{sT+tm} offen offset:{half*1024}")
    e("k2_end:")
    stamp(e, 4)
    e("s_waitcnt vmcnt(0)")
    stamp(e, 5)
    stamp_rt(e, 11)
    stamp_store(e, 2, "s24", 36)
    e("k2_done:")
    e("s_endpgm")
    nv = max(T + 8, tmpv + 28)
    assert nv <= 128, nv
    return kd("attn_kernel", nv, 96), max(CA + 640 + 32, g.lds_bytes)


K3_NBUF = 11


def gen_k3(e):
    kernel_head(e, "out_kernel")
    g = Gemm("k3", NWM=2, NWN=2, TM=2, TN=1, KGS=2, NBUF=K3_NBUF, KG=40, korder='d', NL=2, vbase=8, sbase=48)
    e("""
    s_cmp_ge_u32 s2, 160
    s_cbranch_scc1 k3_done
    s_load_dwordx2 s[4:5], s[0:1], 80
    s_load_dwordx2 s[6:7], s[0:1], 16
    s_load_dwordx2 s[8:9], s[0:1], 0
    s_load_dwordx2 s[10:11], s[0:1], 64
    v_lshrrev_b32 v1, 6, v0
    v_and_b32 v0, 63, v0
    s_and_b32 s20, s2, 7
    v_readfirstlane_b32 s24, v1
    s_lshr_b32 s21, s2, 3
    s_cmp_ge_u32 s21, 10
    s_cselect_b32 s22, 1, 0
    s_cselect_b32 s23, 10, 0
    s_sub_u32 s25, s21, s23
    s_lshl_b32 s23, s20, 1
    s_add_u32 s23, s23, s22
    s_lshl_b32 s28, s25, 7
    s_mov_b32 s29, 1280
    s_waitcnt lgkmcnt(0)
    """)
    srd(e, 36, "s4", "s5", WS_BYTES)
    stamp_rt(e, 10)
    stamp(e, 0)
    e("s_cmp_lt_u32 s24, 4")
    e("s_cbranch_scc1 k3_c")
    e("""
    s_add_u32 s16, s6, s28
    s_addc_u32 s17, s7, 0
    s_and_b32 s17, s17, 0xffff
    """)
    e(f"s_sub_u32 s18, {640*1280}, s28")
    e("s_mov_b32 s19, 0x00020000")
    e(f"s_add_u32 s12, s4, {O_OFF}")
    e("s_addc_u32 s13, s5, 0")
    e("s_and_b32 s13, s13, 0xffff")
    e(f"s_mov_b32 s14, {FR}")
    e("s_mov_b32 s15, 0x00020000")
    e("s_lshl_b32 s34, s23, 12")
    g.loader_setup(e, "s29", "s34")
    t = g.vt
    e(f"v_lshrrev_b32 v{t+2}, 2, v{t}")
    e(f"v_mul_u32_u24 v{t+2}, 40, v{t+2}")
    e(f"v_and_b32 v{t+3}, 3, v{t}")
    e(f"v_add_u32 v{t+2}, v{t+2}, v{t+3}")
    e(f"v_mul_u32_u24 v{t+2}, 1280, v{t+2}")
    e(f"v_add_u32 v{g.vDB2}, v{t+2}, v{t+1}")
    e("s_cmp_eq_u32 s24, 5")
    e("s_cbranch_scc1 k3_ld1")
    D = 6
    for kgl in range(2):
        if kgl == 1:
            e("k3_ld1:")

        def issue(st_):
            buf = (st_ % g.NBUF) * g.SB
            kg = st_ * 2 + kgl
            e(f"s_mov_b32 m0, {buf + kgl*4096}")
            e(f"s_add_u32 s{g.st}, s34, {kg*65536}")
            for i in range(4):
                off = f" offset:{i*1024}" if i else ""
                e(f"buffer_load_dwordx4 v{g.vDA}, s[12:15], s{g.st} offen{off} lds")
            for tt in range(2):
                e(f"s_mov_b32 m0, {buf + g.ASB + (kgl*2+tt)*1024}")
                if kg < 32:
                    e(f"s_mov_b32 s{g.st}, {(20*kg + 8*tt)*1280}")
                    e(f"buffer_load_dwordx4 v{g.vDB}, s[16:19], s{g.st} offen lds")
                else:
                    G = kg - 32
                    e(f"s_mov_b32 s{g.st}, {((4*G + tt)*20 + 16)*1280}")
                    e(f"buffer_load_dwordx4 v{g.vDB2}, s[16:19], s{g.st} offen lds")
        npre = 4
        for s_ in range(npre):
            issue(s_)
        e(f"s_waitcnt vmcnt({(npre-1)*D})")
        e("s_barrier")
        for s_ in range(npre, g.NBUF - 1):
            issue(s_)
        for s_ in range(g.NST):
            outst = max(0, min(s_ + g.NBUF - 2, g.NST - 1) - (s_ + 1) + 1)
            e(f"s_waitcnt vmcnt({max(0, outst-1)*D})")
            e("s_barrier")
            if s_ + g.NBUF - 1 < g.NST:
                issue(s_ + g.NBUF - 1)
        e("s_branch k3_end")
    e("k3_c:")
    srd(e, 12, "s8", "s9", 2048 * 1280)
    srd(e, 32, "s10", "s11", 2048 * 1280)
    g.setup(e, "s24")
    sWM, sWN = g.send, g.send + 1
    e(f"s_lshr_b32 s{sWM}, s24, 1")
    e(f"s_and_b32 s{sWN}, s24, 1")
    sT = g.send + 2
    GV = g.vend
    XV = GV + 16
    vX = XV + 16
    T = vX + 4
    e(f"s_lshl_b32 s{sT}, s23, 2")
    e(f"s_lshl_b32 s{sT+1}, s{sWM}, 1")
    e(f"s_add_u32 s{sT}, s{sT}, s{sT+1}")
    e(f"s_mul_i32 s{sT+1}, s{sT}, 20")
    e(f"s_lshl_b32 s{sT+2}, s25, 1")
    e(f"s_add_u32 s{sT+1}, s{sT+1}, s{sT+2}")
    e(f"s_add_u32 s{sT+1}, s{sT+1}, s{sWN}")
    e(f"s_lshl_b32 s{sT+1}, s{sT+1}, 11")
    e(f"s_add_u32 s{sT+1}, s{sT+1}, {G_OFF}")
    e(f"s_add_u32 s{sT+2}, s{sT+1}, {20*2048}")
    e(f"v_and_b32 v{T}, 31, v0")
    e(f"v_mul_u32_u24 v{vX}, 1280, v{T}")
    e(f"v_lshrrev_b32 v{T+1}, 5, v0")
    e(f"v_lshl_add_u32 v{vX}, v{T+1}, 4, v{vX}")
    e(f"s_mul_i32 s{sT+3}, s{sT}, {32*1280}")
    e(f"s_add_u32 s{sT+3}, s{sT+3}, s28")
    e(f"s_lshl_b32 s{sT+4}, s{sWN}, 6")
    e(f"s_add_u32 s{sT+3}, s{sT+3}, s{sT+4}")
    e(f"s_add_u32 s{sT+4}, s{sT+3}, {32*1280}")
    for i in range(32):
        e(f"v_mov_b32 v{g.acc+i}, 0")

    def late_loads():
        for tm in range(2):
            for half in range(2):
                r = GV + tm * 8 + half * 4
                e(f"buffer_load_dwordx4 v[{r}:{r+3}], v{g.vDA}, s[36:39], s{sT+1+tm} offen offset:{half*1024}")
        for tm in range(2):
            for pp in range(2):
                r = XV + (tm * 2 + pp) * 4
                e(f"buffer_load_dwordx4 v[{r}:{r+3}], v{vX}, s[12:15], s{sT+3+tm} offen offset:{pp*32}")
    g.main(e, 'n', 'm', late_loads)
    e("s_waitcnt vmcnt(0)")
    for tm in range(2):
        for pp in range(2):
            r = XV + (tm * 2 + pp) * 4
            e(f"v_permlane32_swap_b32 v{r}, v{r+2}")
            e(f"v_permlane32_swap_b32 v{r+1}, v{r+3}")
    for tm in range(2):
        for pp in range(2):
            ob = T + ((tm * 2 + pp) & 1) * 4
            for q in range(2):
                gg = pp * 2 + q
                a = g.accr(tm, 0) + 4 * gg
                gr = GV + tm * 8 + gg * 2
                xr = XV + (tm * 2 + pp) * 4 + q * 2
                t = T + 8
                e(f"v_cvt_pk_bf16_f32 v{t}, v{a}, v{a+1}")
                e(f"v_cvt_pk_bf16_f32 v{t+1}, v{a+2}, v{a+3}")
                for i in range(2):
                    e(f"v_lshlrev_b32 v{t+2+2*i}, 16, v{t+i}")
                    e(f"v_and_b32 v{t+3+2*i}, 0xffff0000, v{t+i}")
                    e(f"v_lshlrev_b32 v{t+6+2*i}, 16, v{gr+i}")
                    e(f"v_and_b32 v{t+7+2*i}, 0xffff0000, v{gr+i}")
                for i in range(4):
                    e(f"v_mul_f32 v{t+2+i}, v{t+2+i}, v{t+6+i}")
                e(f"v_cvt_pk_bf16_f32 v{t}, v{t+2}, v{t+3}")
                e(f"v_cvt_pk_bf16_f32 v{t+1}, v{t+4}, v{t+5}")
                for i in range(2):
                    e(f"v_lshlrev_b32 v{t+2+2*i}, 16, v{t+i}")
                    e(f"v_and_b32 v{t+3+2*i}, 0xffff0000, v{t+i}")
                    e(f"v_lshlrev_b32 v{t+6+2*i}, 16, v{xr+i}")
                    e(f"v_and_b32 v{t+7+2*i}, 0xffff0000, v{xr+i}")
                for i in range(4):
                    e(f"v_add_f32 v{t+2+i}, v{t+2+i}, v{t+6+i}")
                e(f"v_cvt_pk_bf16_f32 v{ob+2*q}, v{t+2}, v{t+3}")
                e(f"v_cvt_pk_bf16_f32 v{ob+2*q+1}, v{t+4}, v{t+5}")
            e("s_nop 1")
            e(f"v_permlane32_swap_b32 v{ob}, v{ob+2}")
            e(f"v_permlane32_swap_b32 v{ob+1}, v{ob+3}")
            e(f"buffer_store_dwordx4 v[{ob}:{ob+3}], v{vX}, s[32:35], s{sT+3+tm} offen offset:{pp*32}")
    e("k3_end:")
    stamp(e, 4)
    e("s_waitcnt vmcnt(0)")
    stamp(e, 5)
    stamp_rt(e, 11)
    stamp_store(e, 3, "s24", 36)
    e("k3_done:")
    e("s_endpgm")
    return kd("out_kernel", T + 20, 96), g.lds_bytes


def main():
    e = Em()
    kds = []
    k1kd, k1lds = gen_k1(e)
    kds.append(k1kd)
    k2kd, k2lds = gen_k2(e)
    kds.append(k2kd)
    k3kd, k3lds = gen_k3(e)
    kds.append(k3kd)
    launches = [
        f"; @launch kernel=gemm1_kernel grid=(256,1,1) block=(1024,1,1) lds={k1lds}",
        f"; @launch kernel=attn_kernel grid=(416,1,1) block=(512,1,1) lds={k2lds}",
        f"; @launch kernel=out_kernel grid=(160,1,1) block=(384,1,1) lds={k3lds}",
    ]
    head = "\n".join(launches) + "\n" + '.amdgcn_target "amdgcn-amd-amdhsa--gfx950"\n.text\n'
    tail = '.section .rodata,"a"\n.p2align 6\n' + ".p2align 6\n".join(kds)
    out = head + e.text() + tail
    path = sys.argv[1] if len(sys.argv) > 1 else f"cdna_kernels/{NAME}.s"
    open(path, "w").write(out)
    print("wrote", path, len(out))


if __name__ == "__main__":
    main()
```

```python
import sys, math, struct
from layout import *

NAME = "recurrent_scan__softmax_full_mha__mixer_channel_mlp__prompt"
WS_BYTES = 268435456


def f32bits(x):
    return struct.unpack("<I", struct.pack("<f", x))[0]


class Em:
    def __init__(self):
        self.l = []

    def __call__(self, s):
        for line in s.split("\n"):
            line = line.strip()
            if not line:
                continue
            if line.endswith(":") or line.startswith("."):
                self.l.append(line)
            else:
                self.l.append("    " + line)

    def text(self):
        return "\n".join(self.l) + "\n"


def srd(e, s, lo, hi, nbytes):
    e(f"s_mov_b32 s{s}, {lo}")
    e(f"s_and_b32 s{s+1}, {hi}, 0xffff")
    e(f"s_mov_b32 s{s+2}, {nbytes}")
    e(f"s_mov_b32 s{s+3}, 0x00020000")


def csel(e, dst, a, b):
    e(f"s_mov_b32 {dst}, {b}")
    e(f"s_cselect_b32 {dst}, {a}, {dst}")


import os
STAMP = int(os.environ.get("STAMP", "0"))
STAMP_OFF = 64 << 20


def stamp(e, i):
    if STAMP != 1:
        return
    e(f"s_memtime s[86:87]")
    e("s_waitcnt lgkmcnt(0)")
    e(f"s_mov_b32 s{70+i}, s86")


def stamp_rt(e, i):
    if not STAMP:
        return
    e(f"s_memrealtime s[86:87]")
    e("s_waitcnt lgkmcnt(0)")
    e(f"s_mov_b32 s{70+i}, s86")


def stamp_store(e, kidx, sWave, srdws, n=12):
    if not STAMP:
        return
    if STAMP == 2:
        e(f"s_cmp_lg_u32 {sWave}, 0")
        e(f"s_cbranch_scc1 dbg_skip{kidx}")
        e("s_and_b32 s88, s2, 15")
        e(f"s_cmp_lg_u32 s88, 5")
        e(f"s_cbranch_scc1 dbg_skip{kidx}")
        e("s_load_dwordx2 s[88:89], s[0:1], 72")
        e("s_waitcnt lgkmcnt(0)")
        e(f"s_add_u32 s88, s88, {512*(3-kidx)}")
        e("s_addc_u32 s89, s89, 0")
        e("s_and_b32 s89, s89, 0xffff")
        e("s_mov_b32 s90, 256")
        e("s_mov_b32 s91, 0x00020000")
        e("v_mov_b32 v1, 0")
        e("s_not_b32 s80, s80")
        e("v_mov_b32 v2, s80")
        e("v_mov_b32 v3, s81")
        e("s_mov_b64 exec, 1")
        e(f"buffer_atomic_umax v2, v1, s[88:91], 0 offen offset:{8*kidx}")
        e(f"buffer_atomic_umax v3, v1, s[88:91], 0 offen offset:{8*kidx+4}")
        e("s_waitcnt vmcnt(0)")
        e(f"dbg_skip{kidx}:")
        return
    e("s_getreg_b32 s78, hwreg(HW_REG_XCC_ID)")
    e("s_getreg_b32 s79, hwreg(HW_REG_HW_ID)")
    e(f"s_lshl_b32 s86, s2, 4")
    e(f"s_add_u32 s86, s86, {sWave}")
    e(f"s_lshl_b32 s86, s86, 6")
    e(f"s_add_u32 s86, s86, {STAMP_OFF + kidx * 0x100000}")
    e("v_mov_b32 v1, 0")
    for i in range(n):
        e(f"v_mov_b32 v2, s{70+i}")
        e(f"buffer_store_dword v2, v1, s[{srdws}:{srdws+3}], s86 offen offset:{4*i}")


def kernel_head(e, name):
    e(f".p2align 8")
    e(f".globl {name}")
    e(f".type {name},@function")
    e(f"{name}:")


def kd(name, vgpr, sgpr=96):
    acc = (vgpr + 3) // 4 * 4
    return f""".amdhsa_kernel {name}
  .amdhsa_next_free_vgpr {vgpr}
  .amdhsa_next_free_sgpr {sgpr}
  .amdhsa_accum_offset {acc}
  .amdhsa_group_segment_fixed_size 0
  .amdhsa_kernarg_size 88
  .amdhsa_user_sgpr_count 2
  .amdhsa_user_sgpr_kernarg_segment_ptr 1
  .amdhsa_system_sgpr_workgroup_id_x 1
.end_amdhsa_kernel
"""


def wave_sum(e, v, sdst):
    for sh in (1, 2, 4, 8):
        e("s_nop 1")
        e(f"v_add_f32_dpp v{v}, v{v}, v{v} row_shr:{sh} row_mask:0xf bank_mask:0xf bound_ctrl:0")
    e("s_nop 1")
    e(f"v_add_f32_dpp v{v}, v{v}, v{v} row_bcast:15 row_mask:0xa bank_mask:0xf")
    e("s_nop 1")
    e(f"v_add_f32_dpp v{v}, v{v}, v{v} row_bcast:31 row_mask:0xc bank_mask:0xf")
    e("s_nop 1")
    e(f"v_readlane_b32 s{sdst}, v{v}, 63")
    e("s_nop 1")


def bf16r(e, v, t):
    e(f"v_cvt_pk_bf16_f32 v{t}, v{v}, v{v}")
    e(f"v_lshlrev_b32 v{v}, 16, v{t}")


def gen_ln(e):
    kernel_head(e, "ln_kernel")
    e("""
    s_cmp_ge_u32 s2, 768
    s_cbranch_scc1 ln_done
    s_cmp_ge_u32 s2, 256
    s_cbranch_scc1 ln_main
    """)
    e("""
    s_load_dwordx2 s[4:5], s[0:1], 8
    s_load_dwordx2 s[6:7], s[0:1], 32
    s_load_dwordx2 s[8:9], s[0:1], 48
    s_load_dwordx2 s[10:11], s[0:1], 16
    v_lshrrev_b32 v1, 6, v0
    v_and_b32 v0, 63, v0
    v_lshlrev_b32 v2, 4, v0
    v_readfirstlane_b32 s20, v1
    s_and_b32 s21, s2, 7
    s_lshr_b32 s22, s2, 3
    s_lshr_b32 s23, s21, 2
    s_and_b32 s24, s21, 1
    s_waitcnt lgkmcnt(0)
    s_cmp_eq_u32 s23, 0
    s_cselect_b32 s12, s4, s6
    s_cselect_b32 s13, s5, s7
    """)
    csel(e, "s25", 3840, 3456)
    csel(e, "s14", 640*3840, 640*3456)
    csel(e, "s26", 2048, 1792)
    e("s_and_b32 s13, s13, 0xffff")
    e("s_mov_b32 s15, 0x00020000")
    e("s_mul_i32 s27, s22, 20")
    e("s_mul_i32 s28, s20, 5")
    e("s_add_u32 s27, s27, s28")
    e("s_mul_i32 s27, s27, s25")
    e("s_mul_i32 s28, s24, s26")
    e("s_add_u32 s27, s27, s28")
    for r in range(5):
        e(f"buffer_load_dwordx4 v[{4+8*r}:{7+8*r}], v2, s[12:15], s27 offen")
        e(f"buffer_load_dwordx4 v[{8+8*r}:{11+8*r}], v2, s[12:15], s27 offen offset:1024")
        e("s_add_u32 s27, s27, s25")
    srd(e, 16, "s8", "s9", 1728 * 1280)
    srd(e, 28, "s10", "s11", 640 * 1280)
    e("s_lshl_b32 s27, s2, 2")
    e("s_add_u32 s27, s27, s20")
    e("s_lshl_b32 s27, s27, 10")
    e("buffer_load_dwordx4 v[44:47], v2, s[28:31], s27 offen")
    e("buffer_load_dwordx4 v[4:7], v2, s[16:19], s27 offen")
    e("s_add_u32 s27, s27, 0x100000")
    e("buffer_load_dwordx4 v[8:11], v2, s[16:19], s27 offen")
    e("s_add_u32 s27, s27, 0x100000")
    e("buffer_load_dwordx4 v[12:15], v2, s[16:19], s27 offen")
    e("s_waitcnt vmcnt(0)")
    e("s_endpgm")
    e("""
    ln_main:
    s_sub_u32 s2, s2, 256
    s_load_dwordx2 s[4:5], s[0:1], 0
    s_load_dwordx2 s[6:7], s[0:1], 80
    v_lshrrev_b32 v1, 6, v0
    v_and_b32 v0, 63, v0
    v_lshlrev_b32 v2, 4, v0
    v_readfirstlane_b32 s20, v1
    v_lshlrev_b32 v3, 2, v0
    s_lshl_b32 s21, s2, 2
    s_nop 1
    s_add_u32 s21, s21, s20
    s_mul_i32 s22, s21, 1280
    s_waitcnt lgkmcnt(0)
    """)
    srd(e, 8, "s4", "s5", 2048 * 1280)
    srd(e, 12, "s6", "s7", WS_BYTES)
    stamp_rt(e, 10)
    stamp(e, 0)
    e("""
    buffer_load_dwordx4 v[4:7], v2, s[8:11], s22 offen
    buffer_load_dword v8, v3, s[8:11], s22 offen offset:1024
    s_lshr_b32 s23, s21, 5
    s_and_b32 s24, s21, 31
    s_lshl_b32 s23, s23, 10
    s_lshl_b32 s24, s24, 4
    s_add_u32 s23, s23, s24
    """)
    e(f"s_add_u32 s25, s23, {Y_OFF}")
    e(f"s_add_u32 s23, s23, {XN_OFF}")
    e("""
    v_lshrrev_b32 v40, 1, v0
    v_lshlrev_b32 v40, 16, v40
    v_and_b32 v42, 1, v0
    v_lshlrev_b32 v42, 9, v42
    v_add_u32 v40, v40, v42
    v_lshrrev_b32 v41, 3, v0
    v_add_u32 v41, 32, v41
    v_lshlrev_b32 v41, 16, v41
    v_bfe_u32 v42, v0, 2, 1
    v_lshlrev_b32 v42, 9, v42
    v_add_u32 v41, v41, v42
    v_and_b32 v42, 3, v0
    v_lshlrev_b32 v42, 2, v42
    v_add_u32 v41, v41, v42
    """)
    e(f"v_mov_b32 v38, 0x{f32bits(1.0/640.0):08x}")
    e(f"v_mov_b32 v39, 0x{f32bits(1e-5):08x}")
    e("s_waitcnt vmcnt(0)")
    F = list(range(10, 20))
    E_ = list(range(20, 30))
    P = [4, 5, 6, 7, 8]

    def unpack():
        for i in range(5):
            e(f"v_lshlrev_b32 v{F[2*i]}, 16, v{P[i]}")
            e(f"v_and_b32 v{F[2*i+1]}, 0xffff0000, v{P[i]}")

    def ln(soff):
        e(f"v_add_f32 v30, v{F[0]}, v{F[1]}")
        e(f"v_add_f32 v31, v{F[2]}, v{F[3]}")
        e(f"v_add_f32 v32, v{F[4]}, v{F[5]}")
        e(f"v_add_f32 v33, v{F[6]}, v{F[7]}")
        e(f"v_add_f32 v34, v{F[8]}, v{F[9]}")
        e("v_add_f32 v30, v30, v31")
        e("v_add_f32 v32, v32, v33")
        e("v_add_f32 v30, v30, v34")
        e("v_add_f32 v30, v30, v32")
        wave_sum(e, 30, 26)
        e("v_mul_f32 v31, s26, v38")
        for i in range(10):
            e(f"v_sub_f32 v{E_[i]}, v{F[i]}, v31")
        e(f"v_mul_f32 v30, v{E_[0]}, v{E_[0]}")
        e(f"v_mul_f32 v32, v{E_[1]}, v{E_[1]}")
        for i in range(2, 10, 2):
            e(f"v_fmac_f32 v30, v{E_[i]}, v{E_[i]}")
            e(f"v_fmac_f32 v32, v{E_[i+1]}, v{E_[i+1]}")
        e("v_add_f32 v30, v30, v32")
        wave_sum(e, 30, 26)
        e("v_mul_f32 v32, s26, v38")
        bf16r(e, 31, 33)
        bf16r(e, 32, 33)
        e("v_add_f32 v32, v32, v39")
        bf16r(e, 32, 33)
        e("v_sqrt_f32 v32, v32")
        e("s_nop 0")
        bf16r(e, 32, 33)
        e("v_rcp_f32 v32, v32")
        for i in range(10):
            e(f"v_sub_f32 v{E_[i]}, v{F[i]}, v31")
        for i in range(5):
            e(f"v_cvt_pk_bf16_f32 v{P[i]}, v{E_[2*i]}, v{E_[2*i+1]}")
        unpack()
        for i in range(10):
            e(f"v_mul_f32 v{F[i]}, v{F[i]}, v32")
        for i in range(5):
            e(f"v_cvt_pk_bf16_f32 v{P[i]}, v{F[2*i]}, v{F[2*i+1]}")
        e(f"buffer_store_dwordx4 v[4:7], v40, s[12:15], {soff} offen")
        e(f"buffer_store_dword v8, v41, s[12:15], {soff} offen")

    unpack()
    ln("s23")
    unpack()
    e("s_nop 1")
    ln("s25")
    if STAMP:
        for i in range(1, 5):
            stamp(e, i)
        e("s_waitcnt vmcnt(0)")
        stamp(e, 5)
        stamp_rt(e, 11)
        stamp_store(e, 0, "s20", 12)
    e("ln_done:")
    e("s_endpgm")
    return kd("ln_kernel", 48, 96)


class Gemm:
    def __init__(self, pfx, NWM, NWN, TM, TN, KGS, NBUF, KG, korder, NL, vbase, sbase, lds_base=0):
        self.pfx = pfx
        self.NWM, self.NWN, self.TM, self.TN = NWM, NWN, TM, TN
        self.KGS, self.NBUF, self.KG, self.korder, self.NL = KGS, NBUF, KG, korder, NL
        self.NW = NWM * NWN
        self.BM = NWM * TM * 32
        self.BN = NWN * TN * 32
        self.NT = self.BM // 32
        self.pitch = self.BN * 2
        self.ASB = self.NT * KGS * 1024
        self.BSB = KGS * 16 * self.pitch
        self.SB = self.ASB + self.BSB
        self.lds_base = lds_base
        self.lds_bytes = self.SB * NBUF
        assert KG % KGS == 0
        self.NST = KG // KGS
        self.rpi = 1024 // self.pitch
        ops = []
        for kg in range(KGS):
            for tg in range(0, self.NT, 4):
                for i in range(min(4, self.NT - tg)):
                    ops.append(('A', kg * self.NT * 1024 + tg * 1024, kg * 65536 + tg * 1024, i * 1024))
        for i in range(self.BSB // 1024):
            ops.append(('B', self.ASB + i * 1024, i, 0))
        assert len(ops) % NL == 0, (len(ops), NL)
        self.D = len(ops) // NL
        self.lops = [ops[k * self.D:(k + 1) * self.D] for k in range(NL)]
        assert (NBUF - 1) * self.D <= 63
        v = vbase
        self.acc = v; v += TM * TN * 16
        self.fr = []
        for p in range(2):
            a = [v + 4 * j for j in range(TM)]; v += 4 * TM
            b = [v + 4 * j for j in range(TN)]; v += 4 * TN
            self.fr.append((a, b))
        self.vA0 = v; v += 1
        self.vB0 = [v + j for j in range(TN)]; v += TN
        self.vA = v; v += 1
        self.vB = [v + j for j in range(TN)]; v += TN
        self.vDA = v; v += 1
        self.vDB = v; v += 1
        self.vDB2 = v; v += 1
        self.vt = v; v += 4
        self.vend = (v + 3) // 4 * 4
        s = sbase
        self.sRd = s; s += 1
        self.sWr = s; s += 1
        self.sAo = s; s += 1
        self.sBo = s; s += 1
        self.sBinc = s; s += 1
        self.sBstep = s; s += 1
        self.sCnt = s; s += 1
        self.sIss = s; s += 1
        self.st = s; s += 4
        self.send = s

    def accr(self, tm, tn):
        return self.acc + (tm * self.TN + tn) * 16

    def loader_setup(self, e, sLdw, sA0):
        t = self.vt
        ppr = self.pitch // 16
        lgp = int(math.log2(ppr))
        e(f"v_lshlrev_b32 v{self.vDA}, 4, v0")
        e(f"v_lshrrev_b32 v{t}, {lgp}, v0")
        e(f"v_and_b32 v{t+1}, {ppr-1}, v0")
        e(f"v_lshrrev_b32 v{t+2}, 2, v{t+1}")
        if self.pitch == 256:
            e(f"v_and_b32 v{t+3}, 3, v{t}")
        else:
            e(f"v_bfe_u32 v{t+3}, v{t}, 1, 1")
        e(f"v_xor_b32 v{t+2}, v{t+2}, v{t+3}")
        e(f"v_and_b32 v{t+1}, 3, v{t+1}")
        e(f"v_lshlrev_b32 v{t+1}, 4, v{t+1}")
        e(f"v_lshl_add_u32 v{t+1}, v{t+2}, 6, v{t+1}")
        e(f"v_mul_lo_u32 v{t+2}, v{t}, {sLdw}")
        e(f"v_add_u32 v{self.vDB}, v{t+2}, v{t+1}")
        e(f"s_mul_i32 s{self.sBinc}, {sLdw}, {16*self.KGS}")
        e(f"s_mul_i32 s{self.sBstep}, {sLdw}, {self.rpi}")
        e(f"s_mov_b32 s{self.sAo}, {sA0}")
        e(f"s_mov_b32 s{self.sBo}, 0")
        e(f"s_mov_b32 s{self.sIss}, 0")
        e(f"s_mov_b32 s{self.sWr}, {self.lds_base}")

    def issue(self, e, k, SA, SBd):
        st = self.st
        rep = int(os.environ.get('REP', '1'))
        e(f"s_cmp_lt_u32 s{self.sIss}, {self.NST}")
        e(f"s_cselect_b32 s{st+1}, s{self.sAo}, 0x7ff00000")
        e(f"s_cselect_b32 s{st+2}, s{self.sBo}, 0x7ff00000")
        cur = None
        lastb = 0
        for kind, lo, gd, io in self.lops[k]:
            if kind == 'A':
                if cur != ('A', lo):
                    e(f"s_add_u32 m0, s{self.sWr}, {lo}")
                    e(f"s_add_u32 s{st}, s{st+1}, {gd}")
                    cur = ('A', lo)
                off = f" offset:{io}" if io else ""
                e(f"buffer_load_dwordx4 v{self.vDA}, s[{SA}:{SA+3}], s{st} offen{off} lds")
            else:
                e(f"s_add_u32 m0, s{self.sWr}, {lo}")
                if gd != lastb:
                    if gd - lastb == 1:
                        e(f"s_add_u32 s{st+2}, s{st+2}, s{self.sBstep}")
                    else:
                        e(f"s_mul_i32 s{st+3}, s{self.sBstep}, {gd-lastb}")
                        e(f"s_add_u32 s{st+2}, s{st+2}, s{st+3}")
                    lastb = gd
                else:
                    e("s_nop 0")
                e(f"buffer_load_dwordx4 v{self.vDB}, s[{SBd}:{SBd+3}], s{st+2} offen lds")
                cur = None
        e(f"s_add_u32 s{self.sAo}, s{self.sAo}, {self.KGS*65536}")
        e(f"s_add_u32 s{self.sBo}, s{self.sBo}, s{self.sBinc}")
        e(f"s_add_u32 s{self.sIss}, s{self.sIss}, 1")
        e(f"s_add_u32 s{self.sWr}, s{self.sWr}, {self.SB}")
        e(f"s_cmp_eq_u32 s{self.sWr}, {self.lds_base + self.SB*self.NBUF}")
        e(f"s_cselect_b32 s{self.sWr}, {self.lds_base}, s{self.sWr}")

    def loader(self, e, k, SA, SBd, endlabel):
        L = f"{self.pfx}_ld{k}_loop"
        self.issue(e, k, SA, SBd)
        self.issue(e, k, SA, SBd)
        e(f"s_waitcnt vmcnt({self.D})")
        e("s_barrier")
        for s_ in range(2, self.NBUF - 1):
            self.issue(e, k, SA, SBd)
        e(f"s_mov_b32 s{self.sCnt}, {self.NST}")
        e(f"{L}:")
        e(f"s_waitcnt vmcnt({(self.NBUF-3)*self.D})")
        e("s_barrier")
        if not os.environ.get("NODMA"):
            self.issue(e, k, SA, SBd)
        e(f"s_sub_u32 s{self.sCnt}, s{self.sCnt}, 1")
        e(f"s_cmp_lg_u32 s{self.sCnt}, 0")
        e(f"s_cbranch_scc1 {L}")
        e(f"s_branch {endlabel}")

    def setup(self, e, sWave):
        t = self.vt
        TM, TN, KGS = self.TM, self.TN, self.KGS
        st = self.st
        lg = int(math.log2(self.NWN))
        e(f"s_lshr_b32 s{st}, {sWave}, {lg}")
        e(f"s_and_b32 s{st+1}, {sWave}, {self.NWN-1}")
        e(f"v_lshlrev_b32 v{self.vDA}, 4, v0")
        e(f"s_mul_i32 s{st}, s{st}, {TM*1024}")
        e(f"s_add_u32 s{st}, s{st}, {self.lds_base}")
        e(f"v_add_u32 v{self.vA0}, s{st}, v{self.vDA}")
        e(f"v_bfe_u32 v{t}, v0, 2, 2")
        e(f"v_lshrrev_b32 v{t+1}, 5, v0")
        hmul = 8 if self.korder == 'nat' else 4
        e(f"v_mad_u32_u24 v{t+1}, v{t+1}, {hmul}, v{t}")
        e(f"v_mul_u32_u24 v{t+1}, {self.pitch}, v{t+1}")
        e(f"v_bfe_u32 v{t+2}, v0, 4, 1")
        e(f"v_lshl_add_u32 v{t+1}, v{t+2}, 5, v{t+1}")
        e(f"v_and_b32 v{t+2}, 3, v0")
        e(f"v_lshl_add_u32 v{t+1}, v{t+2}, 3, v{t+1}")
        e(f"v_add_u32 v{t+1}, {self.lds_base + self.ASB}, v{t+1}")
        if self.pitch == 128:
            e(f"v_lshrrev_b32 v{t}, 1, v{t}")
        for j in range(TN):
            e(f"s_mul_i32 s{st}, s{st+1}, {TN}")
            e(f"s_add_u32 s{st}, s{st}, {j}")
            e(f"v_xor_b32 v{t+2}, s{st}, v{t}")
            e(f"v_lshl_add_u32 v{self.vB0[j]}, v{t+2}, 6, v{t+1}")
        e(f"s_mov_b32 s{self.sRd}, 0")

    def reads(self, e, p, kg):
        a, b = self.fr[p]
        ra = [f"ds_read_b128 v[{a[j]}:{a[j]+3}], v{self.vA} offset:{kg*self.NT*1024 + j*1024}" for j in range(self.TM)]
        tmul = 4 if self.korder == 'nat' else 8
        rb = []
        for j in range(self.TN):
            for t in range(2):
                rb.append(f"ds_read_b64_tr_b16 v[{b[j]+2*t}:{b[j]+2*t+1}], v{self.vB[j]} offset:{(kg*16 + t*tmul)*self.pitch}")
        return ra[:1] + rb + ra[1:]

    def nreads(self):
        return self.TM + 2 * self.TN

    def mfmas(self, p, orient):
        a, b = self.fr[p]
        out = []
        for tm in range(self.TM):
            for tn in range(self.TN):
                d = self.accr(tm, tn)
                if orient == 'n':
                    s0, s1 = b[tn], a[tm]
                else:
                    s0, s1 = a[tm], b[tn]
                out.append(f"v_mfma_f32_32x32x16_bf16 v[{d}:{d+15}], v[{s0}:{s0+3}], v[{s1}:{s1+3}], v[{d}:{d+15}]")
        return out

    def set_bases(self, e):
        e(f"v_add_u32 v{self.vA}, s{self.sRd}, v{self.vA0}")
        for j in range(self.TN):
            e(f"v_add_u32 v{self.vB[j]}, s{self.sRd}, v{self.vB0[j]}")

    def adv_rd(self, e):
        e(f"s_add_u32 s{self.sRd}, s{self.sRd}, {self.SB}")
        e(f"s_cmp_eq_u32 s{self.sRd}, {self.SB*self.NBUF}")
        e(f"s_cselect_b32 s{self.sRd}, 0, s{self.sRd}")

    def main(self, e, orient, tag, after_first=None):
        L = f"{self.pfx}_{tag}_loop"
        self.set_bases(e)
        e(f"s_mov_b32 s{self.sCnt}, {self.NST}")
        stamp(e, 1)
        e("s_barrier")
        stamp(e, 2)
        for r in self.reads(e, 0, 0):
            e(r)
        if after_first:
            after_first()
        e(f"{L}:")
        e("s_barrier")
        nr = self.nreads()
        for kg in range(self.KGS):
            p = kg & 1
            last = kg == self.KGS - 1
            rd = self.reads(e, p ^ 1, 0 if last else kg + 1)
            mf = self.mfmas(p, orient)
            need = []
            for tm in range(self.TM):
                for tn in range(self.TN):
                    nb = 1 + 2 * (tn + 1)
                    na = 1 if tm == 0 else 1 + 2 * self.TN + tm
                    need.append(max(nb, na))
            nm = len(mf)
            gaps = max(1, nm - 2) if nm > 2 else 1
            per = (nr + gaps - 1) // gaps
            issued = 0
            have = 0
            for i in range(nm):
                if need[i] > have:
                    if not os.environ.get("NOLDS"):
                        e(f"s_waitcnt lgkmcnt({nr - need[i] + issued})")
                    have = need[i]
                if not os.environ.get("NOMFMA"):
                    e(mf[i])
                if i == 0 and last:
                    self.adv_rd(e)
                    self.set_bases(e)
                for r in rd[issued:issued + per]:
                    if not os.environ.get("NOLDS"):
                        e(r)
                issued = min(nr, issued + per)
            assert issued == nr
        e(f"s_sub_u32 s{self.sCnt}, s{self.sCnt}, 1")
        e(f"s_cmp_lg_u32 s{self.sCnt}, 0")
        e(f"s_cbranch_scc1 {L}")
        e("s_waitcnt lgkmcnt(0)")
        e("s_nop 15")
        stamp(e, 3)


def load_bias_init(e, g, srdB, sN0, tmp):
    e(f"v_lshrrev_b32 v{g.vt}, 5, v0")
    e(f"v_lshlrev_b32 v{g.vt}, 3, v{g.vt}")
    for tn in range(g.TN):
        for gg in range(4):
            r = tmp + (tn * 4 + gg) * 2
            e(f"buffer_load_dwordx2 v[{r}:{r+1}], v{g.vt}, s[{srdB}:{srdB+3}], {sN0} offen offset:{(tn*32+gg*8)*2}")


def finish_bias_init(e, g, tmp):
    for tn in range(g.TN):
        for gg in range(4):
            r = tmp + (tn * 4 + gg) * 2
            for tm in range(g.TM):
                d = g.accr(tm, tn) + gg * 4
                e(f"v_lshlrev_b32 v{d}, 16, v{r}")
                e(f"v_and_b32 v{d+1}, 0xffff0000, v{r}")
                e(f"v_lshlrev_b32 v{d+2}, 16, v{r+1}")
                e(f"v_and_b32 v{d+3}, 0xffff0000, v{r+1}")


K1_KGS = 2
K1_NBUF = 6


F_SB = 49152
F_ASB = 32768
F_NBUF = 3
F_NST = 10
F_MU = F_SB * F_NBUF
F_RS = F_MU + 1024
F_CS = F_RS + 1024
F_BI = F_CS + 512
F_FLAG = F_BI + 256
F_PT = F_FLAG + 64
F_LDS = F_PT + 2560
NSIG = 8 + 15
SPIN_MAX = 64


def ln_finalize(e, aS, aQ, o, t1, m, v, den1, mb):
    e(f"v_mul_f32 v{m}, 0x{f32bits(1.0/640.0):08x}, v{aS}")
    e(f"v_mul_f32 v{v}, 0x{f32bits(1.0/640.0):08x}, v{aQ}")
    e(f"v_fma_f32 v{v}, -v{m}, v{m}, v{v}")
    e(f"v_max_f32 v{v}, 0, v{v}")
    e(f"v_mov_b32 v{mb}, v{m}")
    bf16r(e, mb, t1)
    e(f"v_mov_b32 v{den1}, v{v}")
    bf16r(e, den1, t1)
    e(f"v_add_f32 v{den1}, 0x{f32bits(1e-5):08x}, v{den1}")
    bf16r(e, den1, t1)
    e(f"v_sqrt_f32 v{den1}, v{den1}")
    e("s_nop 0")
    bf16r(e, den1, t1)
    e(f"v_rcp_f32 v{o+1}, v{den1}")
    e(f"v_mov_b32 v{o}, v{mb}")
    m2, d2 = o + 4, o + 5
    e(f"v_sub_f32 v{m2}, v{m}, v{mb}")
    e(f"v_mul_f32 v{m2}, v{m2}, v{o+1}")
    bf16r(e, m2, t1)
    e(f"v_mul_f32 v{d2}, v{v}, v{o+1}")
    e(f"v_mul_f32 v{d2}, v{d2}, v{o+1}")
    bf16r(e, d2, t1)
    e(f"v_add_f32 v{d2}, 0x{f32bits(1e-5):08x}, v{d2}")
    bf16r(e, d2, t1)
    e(f"v_sqrt_f32 v{d2}, v{d2}")
    e("s_nop 0")
    bf16r(e, d2, t1)
    e(f"v_rcp_f32 v{d2}, v{d2}")
    e(f"v_fma_f32 v{o+2}, v{m2}, v{den1}, v{mb}")
    e(f"v_mul_f32 v{o+3}, v{o+1}, v{d2}")


def row_sums(e, A, aS, aQ):
    e(f"v_mov_b32 v{aS}, 0")
    e(f"v_mov_b32 v{aQ}, 0")
    for i in range(20):
        e(f"v_dot2_f32_bf16 v{aS}, v{A+i}, s57, v{aS}")
        e(f"v_dot2_f32_bf16 v{aQ}, v{A+i}, v{A+i}, v{aQ}")
    e("s_nop 2")
    for sh in (8, 4, 2, 1):
        e(f"v_add_f32_dpp v{aS}, v{aS}, v{aS} row_ror:{sh} row_mask:0xf bank_mask:0xf")
        e(f"v_add_f32_dpp v{aQ}, v{aQ}, v{aQ} row_ror:{sh} row_mask:0xf bank_mask:0xf")
        e("s_nop 0")


def class_combine(e, aC, A, n=8):
    for op in ("v_permlane32_swap_b32", "v_permlane16_swap_b32"):
        for i in range(n):
            e(f"v_mov_b32 v{A+i}, v{aC+i}")
        e("s_nop 1")
        for i in range(n):
            e(f"{op} v{aC+i}, v{A+i}")
        e("s_nop 1")
        for i in range(n):
            e(f"v_add_f32 v{aC+i}, v{aC+i}, v{A+i}")


def row_stats_fb(e, sMt, sWave, R):
    A = R
    vO, aS, aQ, t1, m, v, den1, mb = R + 40, R + 41, R + 42, R + 43, R + 44, R + 45, R + 46, R + 47
    e(f"v_lshrrev_b32 v{vO}, 4, v0")
    e(f"v_mul_u32_u24 v{vO}, 1280, v{vO}")
    e(f"v_and_b32 v{t1}, 15, v0")
    e(f"v_lshl_add_u32 v{vO}, v{t1}, 4, v{vO}")
    e(f"s_lshl_b32 s54, {sMt}, 8")
    e(f"s_lshl_b32 s55, {sWave}, 4")
    e("s_add_u32 s54, s54, s55")
    e("s_mul_i32 s55, s54, 1280")
    e("s_mov_b32 s57, 0x3f803f80")
    e(f"s_lshl_b32 s56, {sWave}, 6")
    e("s_mov_b32 s54, 4")
    e("k1_fbr:")
    for i in range(5):
        e(f"buffer_load_dwordx4 v[{A+4*i}:{A+4*i+3}], v{vO}, s[12:15], s55 offen offset:{i*256}")
    e(f"s_add_u32 s55, s55, {4*1280}")
    e("s_waitcnt vmcnt(0)")
    row_sums(e, A, aS, aQ)
    ln_finalize(e, aS, aQ, A, t1, m, v, den1, mb)
    e("s_cmp_eq_u32 s26, 0")
    e("s_cbranch_scc1 k1_fbq")
    e(f"v_mov_b32 v{A}, v{A+2}")
    e(f"v_mov_b32 v{A+1}, v{A+3}")
    e("k1_fbq:")
    e(f"v_lshrrev_b32 v{t1}, 4, v0")
    e(f"v_lshlrev_b32 v{t1}, 2, v{t1}")
    e(f"v_add_u32 v{t1}, s56, v{t1}")
    e(f"v_add_u32 v{t1}, {F_MU}, v{t1}")
    e(f"ds_write_b32 v{t1}, v{A}")
    e(f"ds_write_b32 v{t1}, v{A+1} offset:1024")
    e("s_waitcnt lgkmcnt(0)")
    e("s_add_u32 s56, s56, 16")
    e("s_sub_u32 s54, s54, 1")
    e("s_cmp_lg_u32 s54, 0")
    e("s_cbranch_scc1 k1_fbr")


def col_stats_fb(e, sWave, R):
    A = R
    aC = R + 40
    vO, t1 = R + 38, R + 39
    e("""
    s_cmp_eq_u32 s26, 0
    s_cselect_b32 s16, s6, s8
    s_cselect_b32 s17, s7, s9
    """)
    csel(e, "s55", 3840, 3456)
    csel(e, "s18", 640*3840, 640*3456)
    e("s_and_b32 s17, s17, 0xffff")
    e("s_mov_b32 s19, 0x00020000")
    e(f"s_mul_i32 s57, {sWave}, 40")
    e("s_mul_i32 s57, s57, s55")
    e("s_add_u32 s56, s28, s57")
    e("s_lshl_b32 s57, s55, 2")
    e(f"v_lshrrev_b32 v{vO}, 4, v0")
    e(f"v_mul_lo_u32 v{vO}, v{vO}, s55")
    e(f"v_and_b32 v{t1}, 15, v0")
    e(f"v_lshl_add_u32 v{vO}, v{t1}, 4, v{vO}")
    e("s_mov_b32 s58, 0x00003f80")
    e("s_mov_b32 s59, 0x3f800000")
    for i in range(8):
        e(f"v_mov_b32 v{aC+i}, 0")
    e("s_mov_b32 s54, 10")
    e("k1_fbc:")
    e(f"buffer_load_dwordx4 v[{A}:{A+3}], v{vO}, s[16:19], s56 offen")
    e("s_add_u32 s56, s56, s57")
    e("s_waitcnt vmcnt(0)")
    for j in range(4):
        e(f"v_dot2_f32_bf16 v{aC+2*j}, v{A+j}, s58, v{aC+2*j}")
        e(f"v_dot2_f32_bf16 v{aC+2*j+1}, v{A+j}, s59, v{aC+2*j+1}")
    e("s_sub_u32 s54, s54, 1")
    e("s_cmp_lg_u32 s54, 0")
    e("s_cbranch_scc1 k1_fbc")
    e("s_nop 2")
    class_combine(e, aC, A)
    e(f"s_lshl_b32 s54, {sWave}, 9")
    e(f"v_lshlrev_b32 v{t1}, 5, v{t1}")
    e(f"v_add_u32 v{t1}, s54, v{t1}")
    e(f"ds_write_b128 v{t1}, v[{aC}:{aC+3}]")
    e(f"ds_write_b128 v{t1}, v[{aC+4}:{aC+7}] offset:16")
    e("s_waitcnt lgkmcnt(0)")
    e("s_barrier")
    e(f"s_cmp_ge_u32 {sWave}, 2")
    e("s_cbranch_scc1 k1_fbs")
    e(f"s_lshl_b32 s57, {sWave}, 8")
    e(f"v_lshlrev_b32 v{t1}, 2, v0")
    e(f"v_add_u32 v{vO}, s57, v{t1}")
    for j in range(16):
        e(f"ds_read_b32 v{A+j}, v{vO} offset:{j*512}")
    e("s_waitcnt lgkmcnt(0)")
    for j in range(1, 16):
        e(f"v_add_f32 v{A}, v{A}, v{A+j}")
    e(f"v_add_u32 v{vO}, {F_CS}, v{vO}")
    e(f"ds_write_b32 v{vO}, v{A}")
    e("s_waitcnt lgkmcnt(0)")
    e("k1_fbs:")


def fetch_issue(e):
    e("s_lshl_b32 s54, s23, 8")
    e("s_lshl_b32 s55, s30, 6")
    e("s_add_u32 s54, s54, s55")
    e("s_lshl_b32 s54, s54, 5")
    e("s_lshl_b32 s55, s26, 4")
    e("s_add_u32 s54, s54, s55")
    e(f"s_add_u32 s54, s54, {ST_OFF}")
    e("v_lshlrev_b32 v73, 5, v0")
    e("buffer_load_dwordx4 v[76:79], v73, s[36:39], s54 offen sc0 sc1")
    e("s_lshl_b32 s31, s35, 13")
    e("s_lshl_b32 s55, s30, 8")
    e("s_add_u32 s31, s31, s55")
    e(f"s_add_u32 s31, s31, {CS_OFF}")
    e("v_and_b32 v74, 15, v0")
    e("v_lshlrev_b32 v74, 4, v74")
    e("v_lshrrev_b32 v75, 4, v0")
    e("v_lshl_add_u32 v75, v75, 11, v74")
    e("buffer_load_dwordx4 v[80:83], v75, s[36:39], s31 offen sc0 sc1")
    e("buffer_load_dwordx4 v[84:87], v75, s[36:39], s31 offen offset:1024 sc0 sc1")


def fetch_check(e):
    e("v_cmp_ne_u32 vcc, s48, v78")
    e("v_cmp_ne_u32 s[54:55], s48, v82")
    e("v_cmp_ne_u32 s[56:57], s48, v86")
    e("s_nop 3")
    e("s_or_b64 s[54:55], s[54:55], vcc")
    e("s_or_b64 s[54:55], s[54:55], s[56:57]")
    e("s_cmp_eq_u32 s48, 0")
    e("s_cselect_b32 s54, 1, s54")
    e("s_cmp_eq_u64 s[54:55], 0")
    e("s_cselect_b32 s50, 1, 0")


def fetch_commit(e):
    e("s_lshl_b32 s54, s30, 8")
    e("v_lshlrev_b32 v72, 2, v0")
    e("v_add_u32 v72, s54, v72")
    e(f"v_add_u32 v72, {F_MU}, v72")
    e("ds_write_b32 v72, v76")
    e("ds_write_b32 v72, v77 offset:1024")
    e("v_add_f32 v80, v80, v84")
    e("v_add_f32 v81, v81, v85")
    class_combine(e, 80, 84, 2)
    e("s_lshl_b32 s54, s30, 7")
    e("v_and_b32 v74, 15, v0")
    e("v_lshlrev_b32 v74, 3, v74")
    e("v_add_u32 v74, s54, v74")
    e(f"v_add_u32 v74, {F_CS}, v74")
    e("ds_write_b64 v74, v[80:81]")
    e("s_waitcnt lgkmcnt(0)")


def gen_k1(e):
    kernel_head(e, "gemm1_kernel")
    e("""
    s_cmp_ge_u32 s2, 256
    s_cbranch_scc1 k1_done
    s_load_dwordx2 s[4:5], s[0:1], 80
    s_load_dwordx2 s[6:7], s[0:1], 8
    s_load_dwordx2 s[8:9], s[0:1], 32
    s_load_dwordx2 s[10:11], s[0:1], 40
    s_load_dwordx2 s[60:61], s[0:1], 0
    s_load_dwordx2 s[62:63], s[0:1], 72
    v_lshrrev_b32 v1, 6, v0
    v_and_b32 v0, 63, v0
    s_and_b32 s20, s2, 7
    v_readfirstlane_b32 s24, v1
    s_lshr_b32 s21, s2, 3
    s_and_b32 s22, s21, 3
    s_lshr_b32 s21, s21, 2
    s_lshr_b32 s26, s20, 2
    s_bfe_u32 s23, s20, 0x10001
    s_lshl_b32 s23, s23, 2
    s_add_u32 s23, s23, s22
    s_and_b32 s27, s20, 1
    """)
    e("""
    s_cmp_eq_u32 s26, 0
    s_cselect_b32 s25, 8, 7
    s_mul_i32 s25, s25, s27
    s_add_u32 s25, s25, s21
    s_lshl_b32 s28, s25, 8
    s_waitcnt lgkmcnt(0)
    """)
    srd(e, 36, "s4", "s5", WS_BYTES)
    srd(e, 12, "s60", "s61", 2048 * 1280)
    srd(e, 64, "s62", "s63", 256)
    e("s_xor_b32 s56, s24, 12")
    e("s_or_b32 s56, s56, s2")
    e("s_cmp_lg_u32 s56, 0")
    e("s_cbranch_scc1 k1_nn")
    e("s_memrealtime s[56:57]")
    e("v_mov_b32 v5, 0")
    e("s_waitcnt lgkmcnt(0)")
    e("s_or_b32 s56, s56, 1")
    e("v_mov_b32 v7, s56")
    e("s_mov_b64 exec, 1")
    e("buffer_store_dword v7, v5, s[64:67], 0 offen sc0 sc1")
    e("s_mov_b64 exec, -1")
    e("k1_nn:")
    stamp_rt(e, 10)
    stamp(e, 0)
    e("""
    s_cmp_eq_u32 s26, 0
    s_cselect_b32 s31, 15, 14
    s_cselect_b32 s32, 8, 7
    s_cmp_ge_u32 s25, s31
    s_cbranch_scc1 k1_done
    s_cmp_ge_u32 s21, s32
    s_cbranch_scc1 k1_done
    s_cmp_eq_u32 s26, 0
    s_cselect_b32 s35, 0, 15
    s_add_u32 s35, s35, s25
    """)
    e("k1_gemm:")
    e("s_cmp_lt_u32 s24, 8")
    e("s_cbranch_scc1 k1_compute")
    vDAe, vDAo, vDB = 2, 3, 4
    T = 56
    e("""
    s_cmp_eq_u32 s26, 0
    s_cselect_b32 s32, s6, s8
    s_cselect_b32 s33, s7, s9
    """)
    csel(e, "s29", 3840, 3456)
    csel(e, "s34", 640*3840, 640*3456)
    e("""
    s_add_u32 s16, s32, s28
    s_addc_u32 s17, s33, 0
    s_and_b32 s17, s17, 0xffff
    s_sub_u32 s18, s34, s28
    s_mov_b32 s19, 0x00020000
    s_lshl_b32 s45, s29, 2
    s_and_b32 s30, s24, 3
    s_cmp_ge_u32 s24, 12
    s_cbranch_scc1 k1_sw
    """)
    e(f"v_lshrrev_b32 v{T}, 3, v0")
    e(f"v_mul_u32_u24 v{T}, 1280, v{T}")
    e(f"v_and_b32 v{T+1}, 7, v0")
    e(f"v_lshrrev_b32 v{T+2}, 4, v0")
    e(f"v_xor_b32 v{T+3}, v{T+1}, v{T+2}")
    e(f"v_lshl_add_u32 v{vDAe}, v{T+3}, 4, v{T}")
    e(f"v_xor_b32 v{T+3}, 4, v{T+3}")
    e(f"v_lshl_add_u32 v{vDAo}, v{T+3}, 4, v{T}")
    e(f"v_lshrrev_b32 v{T}, 4, v0")
    e(f"v_bfe_u32 v{T+1}, v0, 2, 2")
    e(f"v_xor_b32 v{T+1}, v{T+1}, v{T}")
    e(f"v_and_b32 v{T+2}, 3, v0")
    e(f"v_lshlrev_b32 v{T+2}, 4, v{T+2}")
    e(f"v_lshl_add_u32 v{T+2}, v{T+1}, 6, v{T+2}")
    e(f"v_mul_lo_u32 v{T+3}, v{T}, s29")
    e(f"v_add_u32 v{vDB}, v{T+3}, v{T+2}")
    e("s_lshl_b32 s40, s23, 8")
    e("s_lshl_b32 s31, s30, 6")
    e("s_add_u32 s40, s40, s31")
    e("s_mul_i32 s40, s40, 1280")
    e("s_lshl_b32 s41, s30, 4")
    e("s_mul_i32 s41, s41, s29")
    e("s_lshl_b32 s44, s29, 6")
    e("s_lshl_b32 s46, s30, 13")
    e("s_lshl_b32 s47, s30, 12")
    e(f"s_add_u32 s47, s47, {F_ASB}")
    e("s_mov_b32 s42, 0")

    def issue():
        e("s_mov_b32 s50, s40")
        e("s_mov_b32 s51, s41")
        e("s_add_u32 s52, s42, s46")
        e("s_add_u32 s53, s42, s47")
        for i in range(8):
            e(f"s_add_u32 m0, s52, {i*1024}")
            e(f"s_add_u32 s50, s50, {8*1280}" if i else "s_nop 0")
            e(f"buffer_load_dwordx4 v{vDAo if i & 1 else vDAe}, s[12:15], s50 offen lds")
        for i in range(4):
            e(f"s_add_u32 m0, s53, {i*1024}")
            e("s_add_u32 s51, s51, s45" if i else "s_nop 0")
            e(f"buffer_load_dwordx4 v{vDB}, s[16:19], s51 offen lds")
        e("s_add_u32 s40, s40, 128")
        e("s_add_u32 s41, s41, s44")
        e(f"s_add_u32 s42, s42, {F_SB}")
        e(f"s_cmp_eq_u32 s42, {F_SB*F_NBUF}")
        e("s_cselect_b32 s42, 0, s42")
    D = 12
    issue()
    issue()
    e(f"s_waitcnt vmcnt({D})")
    e("s_barrier")
    e(f"s_mov_b32 s49, {F_NST-2}")
    e("k1_hl:")
    issue()
    e(f"s_waitcnt vmcnt({D})")
    e("s_barrier")
    e("s_sub_u32 s49, s49, 1")
    e("s_cmp_lg_u32 s49, 0")
    e("s_cbranch_scc1 k1_hl")
    e("s_waitcnt vmcnt(0)")
    e("s_barrier")
    e("s_barrier")
    e("s_branch k1_sync")

    e("k1_sw:")
    A = 16
    C = 84
    aC = 40
    vO, aS, aQ, t1, m, v, den1, mb = 48, 49, 50, 51, 52, 53, 54, 55
    e("s_mul_i32 s54, s23, 80")
    e("s_mul_i32 s56, s30, 20")
    e("s_add_u32 s54, s54, s56")
    e("s_mul_i32 s54, s54, s29")
    e(f"v_lshrrev_b32 v{vO}, 4, v0")
    e(f"v_mul_lo_u32 v{m}, v{vO}, s29")
    e(f"v_and_b32 v{t1}, 15, v0")
    e(f"v_lshl_add_u32 v{m}, v{t1}, 4, v{m}")
    for i in range(5):
        e(f"buffer_load_dwordx4 v[{C+4*i}:{C+4*i+3}], v{m}, s[16:19], s54 offen")
        e("s_add_u32 s54, s54, s45")
    e("s_mul_i32 s54, s35, 9")
    e("s_lshl_b32 s55, s30, 2")
    e("s_add_u32 s54, s54, s55")
    e("s_lshl_b32 s55, s23, 8")
    e("s_add_u32 s55, s55, s54")
    e("s_mul_i32 s56, s55, 1280")
    e(f"v_mul_u32_u24 v{vO}, 1280, v{vO}")
    e(f"v_lshl_add_u32 v{vO}, v{t1}, 4, v{vO}")
    for i in range(5):
        e(f"buffer_load_dwordx4 v[{A+4*i}:{A+4*i+3}], v{vO}, s[12:15], s56 offen offset:{i*256}")
    e("s_cmp_lg_u32 s30, 3")
    e("s_cbranch_scc1 k1_nb")
    srd(e, 56, "s10", "s11", 1728 * 2)
    e(f"v_lshlrev_b32 v{T+3}, 4, v0")
    e(f"s_mov_b32 m0, {F_BI}")
    e("s_mov_b64 exec, 0xffff")
    e(f"buffer_load_dwordx4 v{T+3}, s[56:59], s28 offen lds")
    e("s_mov_b64 exec, -1")
    e("k1_nb:")
    e("v_mov_b32 v5, 0")
    e(f"v_mov_b32 v6, {F_FLAG}")
    e("ds_write_b32 v6, v5")
    e("ds_write_b32 v6, v5 offset:4")
    e("s_waitcnt lgkmcnt(0)")
    e("s_barrier")
    e("s_barrier")
    stamp(e, 0)
    e("s_waitcnt vmcnt(0)")
    e("buffer_load_dword v7, v5, s[64:67], 0 offen sc0 sc1")
    e("s_mov_b32 s58, 0x00003f80")
    e("s_mov_b32 s59, 0x3f800000")
    for i in range(8):
        e(f"v_mov_b32 v{aC+i}, 0")
    for i in range(5):
        for j in range(4):
            e(f"v_dot2_f32_bf16 v{aC+2*j}, v{C+4*i+j}, s58, v{aC+2*j}")
            e(f"v_dot2_f32_bf16 v{aC+2*j+1}, v{C+4*i+j}, s59, v{aC+2*j+1}")
    e("s_barrier")
    e("s_nop 2")
    class_combine(e, aC, C)
    e("s_lshl_b32 s56, s30, 9")
    e(f"v_lshlrev_b32 v{t1}, 5, v{t1}")
    e(f"v_add_u32 v{t1}, s56, v{t1}")
    e(f"v_add_u32 v{t1}, {F_PT}, v{t1}")
    e(f"ds_write_b128 v{t1}, v[{aC}:{aC+3}]")
    e(f"ds_write_b128 v{t1}, v[{aC+4}:{aC+7}] offset:16")
    e("s_waitcnt lgkmcnt(0)")
    e("s_barrier")
    stamp(e, 1)
    e("s_waitcnt vmcnt(0)")
    e("v_readfirstlane_b32 s48, v7")
    e("buffer_load_dword v7, v5, s[64:67], 0 offen sc0 sc1")
    e("s_mov_b32 s57, 0x3f803f80")
    e("s_cmp_eq_u32 s30, 3")
    e("s_cbranch_scc1 k1_s3a")
    row_sums(e, A, aS, aQ)
    e("k1_s3a:")
    e("s_barrier")
    e("s_waitcnt vmcnt(0)")
    e("v_readfirstlane_b32 s56, v7")
    e("s_nop 3")
    e("s_cmp_eq_u32 s48, 0")
    e("s_cselect_b32 s48, s56, s48")
    e("s_cmp_eq_u32 s30, 3")
    e("s_cbranch_scc1 k1_s3")
    ln_finalize(e, aS, aQ, A, t1, m, v, den1, mb)
    e(f"v_and_b32 v{m}, 15, v0")
    e(f"v_cmp_eq_u32 vcc, 1, v{m}")
    e(f"v_lshrrev_b32 v{t1}, 4, v0")
    e(f"v_add_u32 v{v}, s54, v{t1}")
    e(f"v_cndmask_b32 v{A}, v{A}, v{A+2}, vcc")
    e(f"v_cndmask_b32 v{A+1}, v{A+1}, v{A+3}, vcc")
    e(f"v_mov_b32 v{A+2}, s48")
    e(f"v_mov_b32 v{A+3}, s48")
    e(f"v_cmp_gt_u32 vcc, 256, v{v}")
    e("s_lshl_b32 s56, s30, 2")
    e(f"v_add_u32 v{v}, s56, v{t1}")
    e(f"v_cmp_gt_u32 s[58:59], 9, v{v}")
    e(f"v_lshlrev_b32 v{t1}, 5, v{t1}")
    e(f"v_lshl_add_u32 v{t1}, v{m}, 4, v{t1}")
    e("s_lshl_b32 s56, s55, 5")
    e(f"s_add_u32 s56, s56, {ST_OFF}")
    e("s_and_b64 s[58:59], s[58:59], vcc")
    e("s_and_b32 s58, s58, 0x00030003")
    e("s_and_b32 s59, s59, 0x00030003")
    e("s_mov_b64 exec, s[58:59]")
    e("s_cbranch_execz k1_lr0")
    e(f"buffer_store_dwordx4 v[{A}:{A+3}], v{t1}, s[36:39], s56 offen sc0 sc1")
    e("k1_lr0:")
    e("s_mov_b64 exec, -1")
    e("s_branch k1_lj")
    e("k1_s3:")
    e(f"v_lshlrev_b32 v{t1}, 3, v0")
    e(f"v_add_u32 v{vO}, {F_PT}, v{t1}")
    for j in range(4):
        e(f"ds_read_b64 v[{A+2*j}:{A+2*j+1}], v{vO} offset:{j*512}")
    e("s_lshl_b32 s56, s35, 3")
    e("s_add_u32 s56, s56, s23")
    e("s_lshl_b32 s56, s56, 10")
    e(f"s_add_u32 s56, s56, {CS_OFF}")
    e(f"v_lshlrev_b32 v{t1}, 4, v0")
    e("s_waitcnt lgkmcnt(0)")
    for j in range(1, 4):
        e(f"v_add_f32 v{A}, v{A}, v{A+2*j}")
        e(f"v_add_f32 v{A+1}, v{A+1}, v{A+2*j+1}")
    e(f"v_mov_b32 v{A+2}, s48")
    e(f"v_mov_b32 v{A+3}, s48")
    e(f"buffer_store_dwordx4 v[{A}:{A+3}], v{t1}, s[36:39], s56 offen sc0 sc1")
    e("k1_lj:")
    e("s_barrier")
    stamp(e, 2)
    e("s_barrier")
    e("s_barrier")
    fetch_issue(e)
    e("s_barrier")
    stamp(e, 3)
    e("s_waitcnt vmcnt(0)")
    fetch_check(e)
    if os.environ.get("FORCEFB") or os.environ.get("FORCESLOW"):
        e("s_cmp_eq_u32 s50, 12345")
    e("s_cbranch_scc1 k1_rdy1")
    fetch_issue(e)
    e("s_barrier")
    e("s_waitcnt vmcnt(0)")
    fetch_check(e)
    if os.environ.get("FORCEFB") or os.environ.get("FORCESLOW"):
        e("s_cmp_eq_u32 s50, 12345")
    e("s_cbranch_scc1 k1_rdy2")
    e("v_mov_b32 v5, 1")
    e("ds_write_b32 v6, v5")
    e("s_waitcnt lgkmcnt(0)")
    e("s_branch k1_t9")
    e("k1_rdy1:")
    fetch_commit(e)
    e("s_barrier")
    e("s_branch k1_t9")
    e("k1_rdy2:")
    fetch_commit(e)
    e("k1_t9:")
    e("s_barrier")
    e("s_branch k1_sync")

    e("k1_compute:")
    ACC = 8
    FR_ = [([72, 76], [80, 84]), ([88, 92], [96, 100])]
    vA0 = [104, 105, 106, 107]
    vB0 = [108, 109]
    vA = [110, 111, 112, 113]
    vB = [114, 115]
    vL = 116
    T = 72
    T0 = 117
    sRd, sCnt, sWM, sWN, sRole = 40, 41, 42, 43, 44
    ROLE = {'mlp': 1, 'qk': 2, 'v': 3}
    sT = 46

    def accr(tm, tn):
        return ACC + (tm * 2 + tn) * 16
    e(f"s_lshr_b32 s{sWM}, s24, 1")
    e(f"s_and_b32 s{sWN}, s24, 1")
    e(f"v_lshlrev_b32 v{vL}, 4, v0")
    e(f"v_lshrrev_b32 v{T}, 5, v0")
    e(f"v_and_b32 v{T+1}, 31, v0")
    e(f"v_bfe_u32 v{T+2}, v0, 1, 3")
    e(f"s_lshl_b32 s{sT}, s{sWM}, 13")
    e(f"v_lshlrev_b32 v{T+3}, 7, v{T+1}")
    e(f"v_add_u32 v{T+3}, s{sT}, v{T+3}")
    for kg in range(4):
        e(f"v_add_u32 v{T+4}, {2*kg}, v{T}")
        e(f"v_xor_b32 v{T+4}, v{T+4}, v{T+2}")
        e(f"v_lshl_add_u32 v{vA0[kg]}, v{T+4}, 4, v{T+3}")
    e(f"v_bfe_u32 v{T+1}, v0, 2, 2")
    e(f"v_mad_u32_u24 v{T+2}, v{T}, 8, v{T+1}")
    e(f"v_lshlrev_b32 v{T+2}, 8, v{T+2}")
    e(f"v_bfe_u32 v{T+3}, v0, 4, 1")
    e(f"v_lshl_add_u32 v{T+2}, v{T+3}, 5, v{T+2}")
    e(f"v_and_b32 v{T+3}, 3, v0")
    e(f"v_lshl_add_u32 v{T+2}, v{T+3}, 3, v{T+2}")
    e(f"v_add_u32 v{T+2}, {F_ASB}, v{T+2}")
    for j in range(2):
        e(f"s_lshl_b32 s{sT}, s{sWN}, 1")
        e(f"s_add_u32 s{sT}, s{sT}, {j}")
        e(f"v_xor_b32 v{T+3}, s{sT}, v{T+1}")
        e(f"v_lshl_add_u32 v{vB0[j]}, v{T+3}, 6, v{T+2}")
    for i in range(64):
        e(f"v_mov_b32 v{ACC+i}, 0")
    e(f"s_mov_b32 s{sRd}, 0")

    def set_bases():
        for kg in range(4):
            e(f"v_add_u32 v{vA[kg]}, s{sRd}, v{vA0[kg]}")
        for j in range(2):
            e(f"v_add_u32 v{vB[j]}, s{sRd}, v{vB0[j]}")

    def reads(p, kg):
        a, b = FR_[p]
        ra = [f"ds_read_b128 v[{a[j]}:{a[j]+3}], v{vA[kg]} offset:{j*4096}" for j in range(2)]
        rb = []
        for j in range(2):
            for t in range(2):
                rb.append(f"ds_read_b64_tr_b16 v[{b[j]+2*t}:{b[j]+2*t+1}], v{vB[j]} offset:{(kg*16 + t*4)*256}")
        return ra[:1] + rb + ra[1:]

    def mfmas(p, orient):
        a, b = FR_[p]
        out = []
        for tm in range(2):
            for tn in range(2):
                d = accr(tm, tn)
                s0, s1 = (b[tn], a[tm]) if orient == 'n' else (a[tm], b[tn])
                out.append(f"v_mfma_f32_32x32x16_bf16 v[{d}:{d+15}], v[{s0}:{s0+3}], v[{s1}:{s1+3}], v[{d}:{d+15}]")
        return out

    def main(orient, tag):
        L = f"k1_{tag}_loop"
        set_bases()
        e(f"s_mov_b32 s{sCnt}, {F_NST}")
        stamp(e, 1)
        e("s_barrier")
        stamp(e, 2)
        for r in reads(0, 0):
            e(r)
        e(f"{L}:")
        for kg in range(4):
            p = kg & 1
            mf = mfmas(p, orient)
            if kg < 3:
                rd = reads(p ^ 1, kg + 1)
                e("s_waitcnt lgkmcnt(3)")
                e(mf[0])
                for r in rd[:3]:
                    e(r)
                e("s_waitcnt lgkmcnt(4)")
                e(mf[1])
                for r in rd[3:]:
                    e(r)
                e("s_waitcnt lgkmcnt(6)")
                e(mf[2])
                e(mf[3])
            else:
                e(f"s_add_u32 s{sRd}, s{sRd}, {F_SB}")
                e(f"s_cmp_eq_u32 s{sRd}, {F_SB*F_NBUF}")
                e(f"s_cselect_b32 s{sRd}, 0, s{sRd}")
                e("s_waitcnt lgkmcnt(0)")
                e("s_barrier")
                e(mf[0])
                set_bases()
                rd = reads(p ^ 1, 0)
                for r in rd[:3]:
                    e(r)
                e(mf[1])
                for r in rd[3:]:
                    e(r)
                e(mf[2])
                e(mf[3])
        e(f"s_sub_u32 s{sCnt}, s{sCnt}, 1")
        e(f"s_cmp_lg_u32 s{sCnt}, 0")
        e(f"s_cbranch_scc1 {L}")
        e("s_waitcnt lgkmcnt(0)")
        stamp(e, 3)
        e(f"s_mov_b32 s{sRole}, {ROLE[tag]}")
        e("s_nop 15")
        e("s_branch k1_sync")
        e(f"k1_ret_{tag}:")

    MU, CSr, AD = 104, 72, 108

    def ln_fix_n(scale_sgpr):
        e(f"v_and_b32 v{AD}, 31, v0")
        e(f"s_lshl_b32 s{sT}, s{sWM}, 8")
        e(f"v_lshlrev_b32 v{AD}, 2, v{AD}")
        e(f"v_add_u32 v{AD}, s{sT}, v{AD}")
        e(f"v_add_u32 v{AD}, {F_MU}, v{AD}")
        e(f"ds_read_b32 v{MU}, v{AD}")
        e(f"ds_read_b32 v{MU+1}, v{AD} offset:128")
        e(f"ds_read_b32 v{MU+2}, v{AD} offset:1024")
        e(f"ds_read_b32 v{MU+3}, v{AD} offset:1152")
        e(f"v_lshrrev_b32 v{AD+1}, 5, v0")
        e(f"v_lshlrev_b32 v{AD+1}, 4, v{AD+1}")
        e(f"s_lshl_b32 s{sT}, s{sWN}, 8")
        e(f"v_add_u32 v{AD+1}, s{sT}, v{AD+1}")
        e(f"v_add_u32 v{AD+1}, {F_CS}, v{AD+1}")
        for tn in range(2):
            for gg in range(4):
                e(f"ds_read_b128 v[{CSr+16*tn+4*gg}:{CSr+16*tn+4*gg+3}], v{AD+1} offset:{(tn*32+gg*8)*4}")
        for tn in range(2):
            e(f"s_waitcnt lgkmcnt({4 if tn == 0 else 0})")
            if tn == 0 and scale_sgpr:
                e(f"v_mul_f32 v{MU+2}, {scale_sgpr}, v{MU+2}")
                e(f"v_mul_f32 v{MU+3}, {scale_sgpr}, v{MU+3}")
            for tm in range(2):
                a = accr(tm, tn)
                for i in range(16):
                    e(f"v_fma_f32 v{a+i}, -v{MU+tm}, v{CSr+16*tn+i}, v{a+i}")

    e("s_cmp_eq_u32 s26, 0")
    e("s_cbranch_scc1 k1_qkv")
    main('n', 'mlp')
    e(f"s_lshl_b32 s{sT}, s{sWN}, 6")
    e(f"s_lshr_b32 s{sT+1}, s28, 1")
    e(f"s_add_u32 s{sT+6}, s{sT}, s{sT+1}")
    e(f"s_cmp_ge_u32 s{sT+6}, 1728")
    e("s_cbranch_scc1 k1_end")
    ln_fix_n(None)
    BI = 88
    e(f"v_lshrrev_b32 v{AD}, 5, v0")
    e(f"v_lshlrev_b32 v{AD}, 3, v{AD}")
    e(f"s_lshl_b32 s{sT}, s{sWN}, 7")
    e(f"v_add_u32 v{AD}, s{sT}, v{AD}")
    e(f"v_add_u32 v{AD}, {F_BI}, v{AD}")
    for tn in range(2):
        for gg in range(4):
            r = BI + (tn * 4 + gg) * 2
            e(f"ds_read_b64 v[{r}:{r+1}], v{AD} offset:{(tn*32+gg*8)*2}")
    e("s_waitcnt lgkmcnt(0)")
    for tn in range(2):
        for gg in range(4):
            r = BI + (tn * 4 + gg) * 2
            e(f"v_lshlrev_b32 v{T}, 16, v{r}")
            e(f"v_and_b32 v{T+1}, 0xffff0000, v{r}")
            e(f"v_lshlrev_b32 v{T+2}, 16, v{r+1}")
            e(f"v_and_b32 v{T+3}, 0xffff0000, v{r+1}")
            for tm in range(2):
                a = accr(tm, tn) + gg * 4
                for i in range(4):
                    e(f"v_fma_f32 v{a+i}, v{a+i}, v{MU+2+tm}, v{T+i}")
    e(f"s_lshl_b32 s{sT+1}, s23, 3")
    e(f"s_lshl_b32 s{sT+7}, s{sWM}, 1")
    e(f"s_add_u32 s{sT+1}, s{sT+1}, s{sT+7}")
    e(f"s_lshr_b32 s{sT}, s{sT+6}, 4")
    e(f"s_lshl_b32 s{sT}, s{sT}, 6")
    e(f"s_add_u32 s{sT}, s{sT}, s{sT+1}")
    e(f"s_lshl_b32 s{sT}, s{sT}, 10")
    e(f"s_add_u32 s{sT}, s{sT}, {H_OFF}")
    for i in range(1, 4):
        e(f"s_add_u32 s{sT+i}, s{sT}, {65536*i}")
    c0 = -2.0 * math.sqrt(2.0 / math.pi) * 1.4426950408889634
    c1 = c0 * 0.044715
    tmpv = 110
    e(f"v_mov_b32 v{tmpv}, 0x{f32bits(c0):08x}")
    e(f"v_mov_b32 v{tmpv+1}, 0x{f32bits(c1):08x}")
    for tm in range(2):
        for tn in range(2):
            a = accr(tm, tn)
            for half in range(2):
                t = 72 + 8 * ((tm * 4 + tn * 2 + half) & 1)
                pk = 88 + 4 * ((tm * 4 + tn * 2 + half) & 1)
                r0 = a + half * 8
                for i in range(8):
                    e(f"v_mul_f32 v{t+i}, v{r0+i}, v{r0+i}")
                for i in range(8):
                    e(f"v_fma_f32 v{t+i}, v{t+i}, v{tmpv+1}, v{tmpv}")
                for i in range(8):
                    e(f"v_mul_f32 v{t+i}, v{t+i}, v{r0+i}")
                for i in range(8):
                    e(f"v_exp_f32 v{t+i}, v{t+i}")
                for i in range(8):
                    e(f"v_add_f32 v{t+i}, 1.0, v{t+i}")
                for i in range(8):
                    e(f"v_rcp_f32 v{t+i}, v{t+i}")
                for i in range(8):
                    e(f"v_mul_f32 v{t+i}, v{t+i}, v{r0+i}")
                for i in range(4):
                    e(f"v_cvt_pk_bf16_f32 v{pk+i}, v{t+2*i}, v{t+2*i+1}")
                so = sT + tn * 2 + half
                e(f"buffer_store_dwordx4 v[{pk}:{pk+3}], v{vL}, s[36:39], s{so} offen offset:{tm*1024}")
    e("s_branch k1_end")
    e("k1_qkv:")
    e("s_cmp_ge_u32 s25, 10")
    e("s_cbranch_scc1 k1_v")
    main('n', 'qk')
    qs = (20 ** -0.5) * 1.4426950408889634
    e("s_cmp_lt_u32 s25, 5")
    e(f"s_cselect_b32 s{sT+5}, 0x{f32bits(qs):08x}, 1.0")
    ln_fix_n(f"s{sT+5}")
    e("s_cmp_lt_u32 s25, 5")
    csel(e, f"s{sT+1}", 1280, 2560)
    csel(e, f"s{sT+6}", QF_OFF, KV_OFF)
    e(f"s_cselect_b32 s{sT+7}, 0, 5")
    e(f"s_sub_u32 s{sT+7}, s25, s{sT+7}")
    e(f"s_lshl_b32 s{sT+7}, s{sT+7}, 5")
    e(f"s_lshl_b32 s{sT+2}, s{sWN}, 4")
    e(f"s_add_u32 s{sT+7}, s{sT+7}, s{sT+2}")
    e(f"s_lshl_b32 s{sT+2}, s23, 3")
    e(f"s_lshl_b32 s{sT+3}, s{sWM}, 1")
    e(f"s_add_u32 s{sT+2}, s{sT+2}, s{sT+3}")
    e(f"s_mul_i32 s{sT+2}, s{sT+2}, s{sT+1}")
    e(f"s_add_u32 s{sT+2}, s{sT+2}, s{sT+6}")
    e(f"s_add_u32 s{sT+3}, s{sT+2}, s{sT+1}")
    e(f"s_lshl_b32 s{sT+4}, s{sT+1}, 6")
    t = T
    e(f"v_lshrrev_b32 v{t}, 5, v0")
    e(f"v_add_u32 v{t}, s{sT+7}, v{t}")
    e(f"v_and_b32 v{t+1}, 31, v0")
    e(f"v_lshlrev_b32 v{t+2}, 4, v{t+1}")
    e(f"v_lshlrev_b32 v{t+3}, 3, v{t+1}")
    for tn in range(2):
        for gg in range(4):
            c, hd, j, ad = t + 4, t + 5, t + 6, t + 7
            e(f"v_add_u32 v{c}, {8*tn+2*gg}, v{t}")
            e(f"v_mul_u32_u24 v{hd}, 205, v{c}")
            e(f"v_lshrrev_b32 v{hd}, 10, v{hd}")
            e(f"v_mul_u32_u24 v{j}, 5, v{hd}")
            e(f"v_sub_u32 v{j}, v{c}, v{j}")
            e(f"v_cmp_eq_u32 vcc, 4, v{j}")
            e(f"v_mul_lo_u32 v{ad}, v{hd}, s{sT+4}")
            e(f"v_lshrrev_b32 v{c}, 1, v{j}")
            e(f"v_lshl_add_u32 v{ad}, v{c}, 9, v{ad}")
            e(f"v_and_b32 v{c}, 1, v{j}")
            e(f"v_lshl_add_u32 v{ad}, v{c}, 3, v{ad}")
            e(f"v_cndmask_b32 v{c}, v{t+2}, v{t+3}, vcc")
            e(f"v_add_u32 v{ad}, v{ad}, v{c}")
            for tm in range(2):
                a = accr(tm, tn) + gg * 4
                pk = t + 8 + 2 * tm
                for i in range(4):
                    e(f"v_mul_f32 v{a+i}, v{a+i}, v{MU+2+tm}")
                e(f"v_cvt_pk_bf16_f32 v{pk}, v{a}, v{a+1}")
                e(f"v_cvt_pk_bf16_f32 v{pk+1}, v{a+2}, v{a+3}")
                e(f"buffer_store_dwordx2 v[{pk}:{pk+1}], v{ad}, s[36:39], s{sT+2+tm} offen")
    e("s_branch k1_end")
    e("k1_v:")
    main('t', 'v')
    e("s_waitcnt vmcnt(0)")
    e(f"v_and_b32 v{AD}, 31, v0")
    e(f"v_lshlrev_b32 v{AD}, 2, v{AD}")
    e(f"s_lshl_b32 s{sT}, s{sWN}, 8")
    e(f"v_add_u32 v{AD}, s{sT}, v{AD}")
    e(f"v_add_u32 v{AD}, {F_CS}, v{AD}")
    e(f"ds_read_b32 v104, v{AD}")
    e(f"ds_read_b32 v105, v{AD} offset:128")
    e(f"v_lshrrev_b32 v{AD+1}, 5, v0")
    e(f"v_lshlrev_b32 v{AD+1}, 4, v{AD+1}")
    e(f"s_lshl_b32 s{sT}, s{sWM}, 8")
    e(f"v_add_u32 v{AD+1}, s{sT}, v{AD+1}")
    e(f"v_add_u32 v{AD+1}, {F_MU}, v{AD+1}")
    for tm in range(2):
        MUr, RSr = 72, 88
        for gg in range(4):
            e(f"ds_read_b128 v[{MUr+4*gg}:{MUr+4*gg+3}], v{AD+1} offset:{(tm*32+gg*8)*4}")
            e(f"ds_read_b128 v[{RSr+4*gg}:{RSr+4*gg+3}], v{AD+1} offset:{1024+(tm*32+gg*8)*4}")
        e("s_waitcnt lgkmcnt(0)")
        for tn in range(2):
            a = accr(tm, tn)
            for i in range(16):
                e(f"v_fma_f32 v{a+i}, -v{MUr+i}, v{104+tn}, v{a+i}")
            for i in range(16):
                e(f"v_mul_f32 v{a+i}, v{a+i}, v{RSr+i}")
    e(f"s_sub_u32 s{sT}, s25, 10")
    e(f"s_lshl_b32 s{sT}, s{sT}, 7")
    e(f"s_lshl_b32 s{sT+1}, s{sWN}, 6")
    e(f"s_add_u32 s{sT}, s{sT}, s{sT+1}")
    e(f"s_lshl_b32 s{sT+2}, s23, 3")
    e(f"s_lshl_b32 s{sT+3}, s{sWM}, 1")
    e(f"s_add_u32 s{sT+2}, s{sT+2}, s{sT+3}")
    e(f"s_mul_i32 s{sT+2}, s{sT+2}, 2560")
    e(f"s_add_u32 s{sT+2}, s{sT+2}, {KV_OFF + 1280}")
    e(f"s_mov_b32 s{sT+4}, {64*2560}")
    t = T
    e(f"v_and_b32 v{t}, 31, v0")
    e(f"v_add_u32 v{t}, s{sT}, v{t}")
    e(f"v_lshrrev_b32 v{t+1}, 5, v0")
    e(f"v_mul_u32_u24 v{t+1}, 320, v{t+1}")
    for tn in range(2):
        c, hd, d, ad = t + 4, t + 5, t + 6, t + 7
        e(f"v_add_u32 v{c}, {32*tn}, v{t}")
        e(f"v_mul_u32_u24 v{hd}, 3277, v{c}")
        e(f"v_lshrrev_b32 v{hd}, 16, v{hd}")
        e(f"v_mul_u32_u24 v{d}, 20, v{hd}")
        e(f"v_sub_u32 v{d}, v{c}, v{d}")
        e(f"v_mul_lo_u32 v{ad}, v{hd}, s{sT+4}")
        e(f"v_lshl_add_u32 v{ad}, v{d}, 4, v{ad}")
        e(f"v_add_u32 v{ad}, v{ad}, v{t+1}")
        for tm in range(2):
            a = accr(tm, tn)
            for half in range(2):
                pk = t + 8 + 4 * ((tm * 2 + half) & 1)
                for i in range(4):
                    e(f"v_cvt_pk_bf16_f32 v{pk+i}, v{a+half*8+2*i}, v{a+half*8+2*i+1}")
                e(f"buffer_store_dwordx4 v[{pk}:{pk+3}], v{ad}, s[36:39], s{sT+2} offen offset:{tm*2560+half*640}")
    e("s_branch k1_end")
    e("k1_sync:")
    e(f"v_mov_b32 v117, {F_FLAG}")
    e("ds_read_b32 v118, v117")
    e("s_waitcnt lgkmcnt(0)")
    e("v_readfirstlane_b32 s54, v118")
    e("s_nop 3")
    e("s_cmp_eq_u32 s54, 0")
    e("s_cbranch_scc1 k1_go")
    e("s_cmp_lt_u32 s24, 12")
    e("s_cbranch_scc1 k1_np")
    e(f"s_mov_b32 s49, {SPIN_MAX}")
    e("k1_poll:")
    fetch_issue(e)
    e("s_waitcnt vmcnt(0)")
    e("s_sub_u32 s49, s49, 1")
    fetch_check(e)
    if os.environ.get("FORCEFB"):
        e("s_cmp_eq_u32 s50, 12345")
    e("s_cbranch_scc1 k1_got")
    e("s_sleep 8")
    e("s_cmp_lg_u32 s49, 0")
    e("s_cbranch_scc1 k1_poll")
    e("v_mov_b32 v73, 1")
    e("ds_write_b32 v117, v73 offset:4")
    e("s_waitcnt lgkmcnt(0)")
    e("s_branch k1_np")
    e("k1_got:")
    fetch_commit(e)
    e("k1_np:")
    e("s_barrier")
    e("ds_read_b32 v118, v117 offset:4")
    e("s_waitcnt lgkmcnt(0)")
    e("v_readfirstlane_b32 s54, v118")
    e("s_nop 3")
    e("s_cmp_eq_u32 s54, 0")
    e("s_cbranch_scc1 k1_go")
    row_stats_fb(e, "s23", "s24", 72)
    col_stats_fb(e, "s24", 72)
    e("s_barrier")
    e("k1_go:")
    e("s_cmp_ge_u32 s24, 8")
    e("s_cbranch_scc1 k1_end")
    e(f"v_lshlrev_b32 v{vL}, 4, v0")
    e(f"s_cmp_eq_u32 s{sRole}, 1")
    e("s_cbranch_scc1 k1_ret_mlp")
    e(f"s_cmp_eq_u32 s{sRole}, 2")
    e("s_cbranch_scc1 k1_ret_qk")
    e("s_branch k1_ret_v")
    e("k1_end:")
    stamp(e, 4)
    e("s_waitcnt vmcnt(0)")
    stamp(e, 5)
    stamp_rt(e, 11)
    stamp_store(e, 1, "s24", 36)
    e("k1_done:")
    e("s_endpgm")
    return kd("gemm1_kernel", 120, 96), F_LDS


AT_STAGE = 8 * 2560
K2_KGS = 2
K2_NBUF = 5


def gen_k2(e):
    kernel_head(e, "attn_kernel")
    e("""
    s_cmp_ge_u32 s2, 416
    s_cbranch_scc1 k2_done
    s_load_dwordx2 s[4:5], s[0:1], 80
    s_load_dwordx2 s[6:7], s[0:1], 48
    s_load_dwordx2 s[8:9], s[0:1], 56
    v_lshrrev_b32 v1, 6, v0
    v_and_b32 v0, 63, v0
    s_and_b32 s20, s2, 7
    v_readfirstlane_b32 s24, v1
    s_cmp_ge_u32 s2, 256
    s_cbranch_scc1 k2_mlp
    """)
    Q1, Q2 = 4, 8
    KF = [(12, 16), (20, 24)]
    VF = [(28, 32), (36, 40)]
    SS = [44, 60]
    PP = [76, 84]
    O = 92
    vK, vKh, vV, vKn, vKhn = 108, 109, 110, 111, 112
    vK0, vKh0, vV0 = 113, 114, 115
    vInc, vIncW, vMask, vD2 = 116, 117, 118, 119
    T = 120
    CA = 3 * AT_STAGE
    e("""
    s_lshr_b32 s21, s2, 3
    s_lshr_b32 s22, s21, 3
    s_lshl_b32 s23, s20, 2
    s_add_u32 s22, s22, s23
    s_and_b32 s23, s21, 7
    """)
    e("s_waitcnt lgkmcnt(0)")
    srd(e, 36, "s4", "s5", WS_BYTES)
    stamp_rt(e, 10)
    stamp(e, 0)
    e(f"s_mul_i32 s25, s22, {64*2560}")
    e(f"s_add_u32 s25, s25, {KV_OFF}")
    e("s_add_u32 s12, s4, s25")
    e("s_addc_u32 s13, s5, 0")
    e("s_and_b32 s13, s13, 0xffff")
    e(f"s_mov_b32 s14, {64*2560}")
    e("s_mov_b32 s15, 0x00020000")
    e(f"v_lshlrev_b32 v{vK0}, 4, v0")
    e("s_cmp_lt_u32 s24, 4")
    e("s_mul_i32 s26, s24, 3072")
    e("s_lshl_b32 s27, s24, 11")
    e("s_add_u32 s27, s27, 4096")
    e("s_cmp_lt_u32 s24, 4")
    e("s_cselect_b32 s26, s26, s27")
    e("s_mov_b32 s30, s26")
    e("s_mov_b32 s31, s26")

    def dma(tag):
        e("s_mov_b32 m0, s31")
        e("s_cmp_lt_u32 s24, 4")
        e(f"buffer_load_dwordx4 v{vK0}, s[12:15], s30 offen lds")
        e(f"buffer_load_dwordx4 v{vK0}, s[12:15], s30 offen offset:1024 lds")
        e(f"s_cbranch_scc0 k2_dm{tag}")
        e(f"buffer_load_dwordx4 v{vK0}, s[12:15], s30 offen offset:2048 lds")
        e(f"k2_dm{tag}:")
        e(f"s_add_u32 s31, s31, {AT_STAGE}")
        e(f"s_add_u32 s30, s30, {AT_STAGE}")
        e(f"s_cmp_ge_u32 s31, {3*AT_STAGE}")
        e("s_cselect_b32 s31, s26, s31")
    e(f"v_and_b32 v{T}, 31, v0")
    e(f"v_lshlrev_b32 v{vKh0}, 3, v{T}")
    e(f"v_add_u32 v{vKh0}, 1024, v{vKh0}")
    e("s_lshl_b32 s32, s23, 3")
    e("s_add_u32 s32, s32, s24")
    e("s_lshl_b32 s33, s22, 6")
    e("s_add_u32 s33, s33, s32")
    e("s_mul_i32 s33, s33, 1280")
    e(f"s_add_u32 s33, s33, {QF_OFF}")
    for i in range(4):
        e(f"v_mov_b32 v{Q2+i}, 0")
    dma("p0")
    e(f"buffer_load_dwordx4 v[{Q1}:{Q1+3}], v{vK0}, s[36:39], s33 offen")
    e("s_mov_b32 exec_hi, 0")
    e(f"buffer_load_dwordx2 v[{Q2}:{Q2+1}], v{vKh0}, s[36:39], s33 offen")
    e("s_mov_b64 exec, -1")
    e(f"v_lshrrev_b32 v{T+1}, 5, v0")
    e(f"v_mad_u32_u24 v{vV0}, v{T+1}, 20, v{T}")
    e(f"v_lshlrev_b32 v{vV0}, 4, v{vV0}")
    e(f"v_add_u32 v{vV0}, 1280, v{vV0}")
    e("s_mov_b32 s28, 0x000fffff")
    e("s_mov_b32 s29, 0x000fffff")
    X = SS[0]
    e(f"v_and_b32 v{T+2}, 1, v0")
    e(f"v_cmp_eq_u32 vcc, 0, v{T+2}")
    e(f"v_mov_b32 v{T+3}, 0x3f803f80")
    e(f"v_bfe_u32 v{T+4}, v0, 1, 1")
    e(f"v_mul_u32_u24 v{T+4}, 640, v{T+4}")
    e(f"v_lshl_add_u32 v{T+4}, v{T+2}, 4, v{T+4}")
    for i in range(4):
        e(f"v_cndmask_b32 v{X+i}, 0, v{T+3}, vcc")
    e(f"ds_write_b128 v{T+4}, v[{X}:{X+3}] offset:{CA}")
    e(f"v_cmp_gt_u32 vcc, 20, v{T}")
    e(f"v_cmp_eq_u32 s[40:41], 20, v{T}")
    e(f"v_mov_b32 v{T+5}, {CA+16}")
    e(f"v_mov_b32 v{T+6}, {CA}")
    e(f"v_cndmask_b32 v{T+5}, v{T+5}, v{T+6}, s[40:41]")
    e(f"v_cndmask_b32 v{vV}, v{T+5}, v{vV0}, vcc")
    e(f"v_cndmask_b32 v{vMask}, 0, 1, vcc")
    e(f"v_mul_u32_u24 v{vInc}, 2560, v{vMask}")
    for lo, hi in KF:
        for i in range(4):
            e(f"v_mov_b32 v{hi+i}, 0")
    for a, b in VF:
        for r in (a, b):
            for i in range(4):
                e(f"v_mov_b32 v{r+i}, 0")
    for i in range(8):
        e(f"v_mov_b32 v{PP[1]+i}, 0")
    for i in range(16):
        e(f"v_mov_b32 v{O+i}, 0")
    e(f"v_mov_b32 v{vKn}, v{vK0}")
    e(f"v_mov_b32 v{vKhn}, v{vKh0}")
    e(f"s_mov_b32 s34, {AT_STAGE}")
    e("s_mov_b32 s35, 8")

    def rdK(t, p):
        lo, hi = KF[p]
        a, b = (vK, vKh) if t < 8 else (vKn, vKhn)
        o = (t % 8) * 2560
        return [f"ds_read_b128 v[{lo}:{lo+3}], v{a} offset:{o}",
                f"ds_read_b64 v[{hi}:{hi+1}], v{b} offset:{o}"]

    def rdV(p):
        v0_, v1_ = VF[p]
        return [f"ds_read_b128 v[{v0_}:{v0_+3}], v{vV}",
                f"ds_read_b128 v[{v1_}:{v1_+3}], v{vV} offset:640"]

    def mS(S, p):
        lo, hi = KF[p]
        return [f"v_mfma_f32_32x32x16_bf16 v[{S}:{S+15}], v[{lo}:{lo+3}], v[{Q1}:{Q1+3}], 0",
                f"v_mfma_f32_32x32x16_bf16 v[{S}:{S+15}], v[{hi}:{hi+3}], v[{Q2}:{Q2+3}], v[{S}:{S+15}]"]

    def mPV(p, P):
        v0_, v1_ = VF[p]
        return [f"v_mfma_f32_32x32x16_bf16 v[{O}:{O+15}], v[{v0_}:{v0_+3}], v[{P}:{P+3}], v[{O}:{O+15}]",
                f"v_mfma_f32_32x32x16_bf16 v[{O}:{O+15}], v[{v1_}:{v1_+3}], v[{P+4}:{P+7}], v[{O}:{O+15}]"]

    stamp(e, 1)
    e("s_waitcnt vmcnt(0) lgkmcnt(0)")
    e("s_barrier")
    stamp(e, 2)
    dma("p1")
    for r in rdK(8, 0) + rdK(9, 1):
        e(r)
    e("s_waitcnt lgkmcnt(0)")
    for m in mS(SS[0], 0):
        e(m)
    e("s_nop 7")
    e("k2_stage:")
    e("s_waitcnt vmcnt(0)")
    e("s_barrier")
    dma("l")
    e(f"v_mov_b32 v{vK}, v{vKn}")
    e(f"v_mov_b32 v{vKh}, v{vKhn}")
    e(f"v_add_u32 v{vKn}, s34, v{vK0}")
    e(f"v_add_u32 v{vKhn}, s34, v{vKh0}")
    e("s_cmp_eq_u32 s34, 0")
    csel(e, "s27", 2560 - 3 * AT_STAGE, 2560)
    e(f"v_mul_lo_u32 v{vIncW}, v{vMask}, s27")
    e(f"s_add_u32 s34, s34, {AT_STAGE}")
    e(f"s_cmp_eq_u32 s34, {3*AT_STAGE}")
    e("s_cselect_b32 s34, 0, s34")

    def phase(S, P, mf, extra):
        ex = list(extra)
        for q in range(4):
            e(mf[q])
            for i in range(4):
                e(f"v_exp_f32 v{S+4*q+i}, v{S+4*q+i}")
                if ex and i in (0, 2):
                    x = ex.pop(0)
                    if x:
                        e(x)
            e(f"v_cvt_pk_bf16_f32 v{P+2*q}, v{S+4*q}, v{S+4*q+1}")
            e(f"v_cvt_pk_bf16_f32 v{P+2*q+1}, v{S+4*q+2}, v{S+4*q+3}")
        assert not ex

    for t in range(8):
        p = t & 1
        inc = vIncW if t == 7 else vInc
        X_ = os.environ.get("ATX", "")
        ex = rdV(p) + rdK(t + 2, p) + [f"v_add_u32 v{vV}, v{vV}, v{inc}", None, None, "s_waitcnt lgkmcnt(0)"]
        if "nolds" in X_:
            ex = []
        if "nowait" in X_:
            ex = ex[:-1]
        if "nopsonly" in X_:
            ex = ["s_nop 0"] * 4 + ex[4:]
        if "onlyk" in X_:
            ex = ["s_nop 0"] * 2 + ex[2:]
        if "onlyv" in X_:
            ex = ex[:2] + ["s_nop 0"] * 2 + ex[4:]
        if "late" in X_:
            pass
        PR = os.environ.get("PRIO", "none")
        if PR != "none" and (t == 0 or PR[t] != PR[t-1]):
            e(f"s_setprio {PR[t]}")
        mf = mS(SS[p ^ 1], p ^ 1) + mPV(p ^ 1, PP[p ^ 1])
        if "nopv" in X_:
            mf = mf[:2] + ["s_nop 0", "s_nop 0"]
        if "nos" in X_:
            mf = ["s_nop 0", "s_nop 0"] + mf[2:]
        if "pvq" in X_:
            mf = mf[:2] + [f"v_mfma_f32_32x32x16_bf16 v[{O}:{O+15}], v[{VF[0][0]}:{VF[0][0]+3}], v[{Q1}:{Q1+3}], v[{O}:{O+15}]"] * 2
        if "sacc" in X_:
            mf = [f"v_mfma_f32_32x32x16_bf16 v[{O}:{O+15}], v[{KF[0][0]}:{KF[0][0]+3}], v[{Q1}:{Q1+3}], v[{O}:{O+15}]"] * 2 + mf[2:]
        phase(SS[p], PP[p], mf, ex)
    e("s_sub_u32 s35, s35, 1")
    e("s_cmp_lg_u32 s35, 0")
    e("s_cbranch_scc1 k2_stage")
    for m in mPV(1, PP[1]):
        e(m)
    e("s_waitcnt lgkmcnt(0) vmcnt(0)")
    e("s_nop 15")
    stamp(e, 3)
    L = T
    lo_lim = f32bits(2.0 ** -80)
    hi_lim = f32bits(2.0 ** 100)

    def bcast_l(dst, tmp):
        e(f"v_mov_b32 v{tmp}, v{O+8}")
        e(f"v_mov_b32 v{dst}, v{O+8}")
        e("s_nop 1")
        e(f"v_permlane32_swap_b32 v{tmp}, v{dst}")

    e(f"v_mov_b32 v{T+4}, 0")
    bcast_l(L, T + 2)
    for i in range(12):
        e(f"v_fma_f32 v{T+4}, v{O+i}, 0, v{T+4}")
    e(f"s_mov_b32 s40, 0x{lo_lim:08x}")
    e(f"s_mov_b32 s41, 0x{hi_lim:08x}")
    e(f"v_cmp_u_f32 s[42:43], v{T+4}, v{T+4}")
    e(f"v_cmp_nle_f32 s[44:45], s40, v{L}")
    e(f"v_cmp_nge_f32 s[46:47], s41, v{L}")
    e("s_nop 3")
    e("s_or_b64 s[42:43], s[42:43], s[44:45]")
    e("s_or_b64 s[42:43], s[42:43], s[46:47]")
    e("s_cmp_eq_u64 s[42:43], 0")
    e("s_cbranch_scc1 k2_epi")
    v0_, v1_ = VF[0]
    Sa, Pa = SS[0], PP[0]
    e(f"v_and_b32 v{T+2}, 31, v0")
    e(f"v_cmp_eq_u32 vcc, 20, v{T+2}")
    e(f"v_mov_b32 v{T+3}, 0x3f803f80")
    e("s_nop 0")
    for r in (v0_, v1_):
        for i in range(4):
            e(f"v_cndmask_b32 v{r+i}, 0, v{T+3}, vcc")
    lo, hi = KF[0]
    M = T + 6
    e(f"v_mov_b32 v{M}, 0xff800000")
    e("s_mov_b32 s40, 0")
    e(f"k2_fb1:")
    e(f"buffer_load_dwordx4 v[{lo}:{lo+3}], v{vK0}, s[12:15], s40 offen")
    e(f"buffer_load_dwordx2 v[{hi}:{hi+1}], v{vKh0}, s[12:15], s40 offen")
    e("s_waitcnt vmcnt(0)")
    for m in mS(Sa, 0):
        e(m)
    e("s_nop 15")
    e("s_nop 3")
    for i in range(8):
        e(f"v_max3_f32 v{M}, v{Sa+2*i}, v{Sa+2*i+1}, v{M}")
    e("s_add_u32 s40, s40, 2560")
    e(f"s_cmp_lt_u32 s40, {64*2560}")
    e(f"s_cbranch_scc1 k2_fb1")
    e(f"v_mov_b32 v{M+1}, v{M}")
    e("s_nop 1")
    e(f"v_permlane32_swap_b32 v{M}, v{M+1}")
    e("s_nop 1")
    e(f"v_max_f32 v{M}, v{M}, v{M+1}")
    for i in range(16):
        e(f"v_mov_b32 v{O+i}, 0")
    e("s_mov_b32 s40, 0")
    e(f"k2_fb2:")
    e(f"buffer_load_dwordx4 v[{lo}:{lo+3}], v{vK0}, s[12:15], s40 offen")
    e(f"buffer_load_dwordx2 v[{hi}:{hi+1}], v{vKh0}, s[12:15], s40 offen")
    e("s_mov_b64 exec, s[28:29]")
    e(f"buffer_load_dwordx4 v[{v0_}:{v0_+3}], v{vV0}, s[12:15], s40 offen")
    e(f"buffer_load_dwordx4 v[{v1_}:{v1_+3}], v{vV0}, s[12:15], s40 offen offset:640")
    e("s_mov_b64 exec, -1")
    e("s_waitcnt vmcnt(0)")
    for m in mS(Sa, 0):
        e(m)
    e("s_nop 15")
    e("s_nop 3")
    for i in range(16):
        e(f"v_sub_f32 v{Sa+i}, v{Sa+i}, v{M}")
    for i in range(16):
        e(f"v_exp_f32 v{Sa+i}, v{Sa+i}")
    e("s_nop 0")
    for i in range(8):
        e(f"v_cvt_pk_bf16_f32 v{Pa+i}, v{Sa+2*i}, v{Sa+2*i+1}")
    e("s_nop 1")
    for m in mPV(0, Pa):
        e(m)
    e("s_add_u32 s40, s40, 2560")
    e(f"s_cmp_lt_u32 s40, {64*2560}")
    e("s_nop 7")
    e(f"s_cbranch_scc1 k2_fb2")
    e("s_nop 15")
    bcast_l(L, T + 2)
    e("k2_epi:")
    e("s_lshl_b32 s41, s22, 6")
    e("s_add_u32 s41, s41, s32")
    e("s_lshl_b32 s41, s41, 10")
    e(f"s_add_u32 s41, s41, {O_OFF}")
    e("s_lshr_b32 s43, s22, 2")
    e("s_add_u32 s43, s43, 32")
    e("s_lshl_b32 s43, s43, 6")
    e("s_add_u32 s43, s43, s32")
    e("s_lshl_b32 s43, s43, 10")
    e("s_bfe_u32 s44, s22, 0x10001")
    e("s_lshl_b32 s44, s44, 9")
    e("s_add_u32 s43, s43, s44")
    e("s_and_b32 s44, s22, 1")
    e("s_lshl_b32 s44, s44, 3")
    e("s_add_u32 s43, s43, s44")
    e(f"s_add_u32 s43, s43, {O_OFF}")
    e(f"v_rcp_f32 v{L}, v{L}")
    e("s_nop 0")
    pk = PP[0]
    for i in range(12):
        e(f"v_mul_f32 v{O+i}, v{O+i}, v{L}")
    for i in range(6):
        e(f"v_cvt_pk_bf16_f32 v{pk+i}, v{O+2*i}, v{O+2*i+1}")
    e(f"buffer_store_dwordx4 v[{pk}:{pk+3}], v{vK0}, s[36:39], s41 offen")
    e("s_mov_b32 exec_hi, 0")
    e(f"buffer_store_dwordx2 v[{pk+4}:{pk+5}], v{vK0}, s[36:39], s43 offen")
    e("s_mov_b64 exec, -1")
    e("s_branch k2_end")

    e("k2_mlp:")
    if os.environ.get("PRIO", "none") != "none":
        e("s_setprio 3")
    g = Gemm("k2", NWM=2, NWN=2, TM=2, TN=1, KGS=K2_KGS, NBUF=K2_NBUF, KG=108, korder='d', NL=1, vbase=8, sbase=40)
    e("""
    s_sub_u32 s21, s2, 256
    s_lshr_b32 s21, s21, 3
    s_cmp_ge_u32 s21, 10
    s_cselect_b32 s22, 1, 0
    s_cselect_b32 s23, 10, 0
    s_sub_u32 s25, s21, s23
    s_lshl_b32 s23, s20, 1
    s_add_u32 s23, s23, s22
    s_lshl_b32 s28, s25, 7
    s_mov_b32 s29, 1280
    s_waitcnt lgkmcnt(0)
    """)
    srd(e, 36, "s4", "s5", WS_BYTES)
    stamp_rt(e, 10)
    stamp(e, 0)
    e("s_cmp_lt_u32 s24, 4")
    e("s_cbranch_scc1 k2_mc")
    e("s_cmp_gt_u32 s24, 4")
    e("s_cbranch_scc1 k2_done")
    e("""
    s_add_u32 s16, s6, s28
    s_addc_u32 s17, s7, 0
    s_and_b32 s17, s17, 0xffff
    """)
    e(f"s_sub_u32 s18, {1728*1280}, s28")
    e("s_mov_b32 s19, 0x00020000")
    e(f"s_add_u32 s12, s4, {H_OFF}")
    e("s_addc_u32 s13, s5, 0")
    e("s_and_b32 s13, s13, 0xffff")
    e(f"s_mov_b32 s14, {108*65536}")
    e("s_mov_b32 s15, 0x00020000")
    e("s_lshl_b32 s34, s23, 12")
    g.loader_setup(e, "s29", "s34")
    g.loader(e, 0, 12, 16, "k2_end")
    e("k2_mc:")
    g.setup(e, "s24")
    sWM, sWN = g.send, g.send + 1
    e(f"s_lshr_b32 s{sWM}, s24, 1")
    e(f"s_and_b32 s{sWN}, s24, 1")
    sT = (g.send + 2 + 3) // 4 * 4 + 2
    tmpv = g.vend
    srd(e, sT + 2, "s8", "s9", 640 * 2)
    e(f"s_lshl_b32 s{sT}, s{sWN}, 6")
    e(f"s_add_u32 s{sT}, s{sT}, s28")
    load_bias_init(e, g, sT + 2, f"s{sT}", tmpv)
    e(f"s_waitcnt vmcnt(0)")
    finish_bias_init(e, g, tmpv)
    g.main(e, 'n', 'm')
    e(f"s_lshl_b32 s{sT}, s23, 2")
    e(f"s_lshl_b32 s{sT+1}, s{sWM}, 1")
    e(f"s_add_u32 s{sT}, s{sT}, s{sT+1}")
    e(f"s_mul_i32 s{sT}, s{sT}, 20")
    e(f"s_lshl_b32 s{sT+1}, s25, 1")
    e(f"s_add_u32 s{sT}, s{sT}, s{sT+1}")
    e(f"s_add_u32 s{sT}, s{sT}, s{sWN}")
    e(f"s_lshl_b32 s{sT}, s{sT}, 11")
    e(f"s_add_u32 s{sT}, s{sT}, {G_OFF}")
    e(f"s_add_u32 s{sT+1}, s{sT}, {20*2048}")
    e(f"v_mov_b32 v{tmpv}, 0x{f32bits(-1.4426950408889634):08x}")
    for tm in range(2):
        a = g.accr(tm, 0)
        for half in range(2):
            t = tmpv + 4 + 8 * half
            pk = tmpv + 20 + 4 * half
            r0 = a + half * 8
            for i in range(8):
                e(f"v_mul_f32 v{t+i}, v{r0+i}, v{tmpv}")
            for i in range(8):
                e(f"v_exp_f32 v{t+i}, v{t+i}")
            for i in range(8):
                e(f"v_add_f32 v{t+i}, 1.0, v{t+i}")
            for i in range(8):
                e(f"v_rcp_f32 v{t+i}, v{t+i}")
            for i in range(8):
                e(f"v_mul_f32 v{t+i}, v{t+i}, v{r0+i}")
            for i in range(4):
                e(f"v_cvt_pk_bf16_f32 v{pk+i}, v{t+2*i}, v{t+2*i+1}")
            e(f"buffer_store_dwordx4 v[{pk}:{pk+3}], v{g.vDA}, s[36:39], s{sT+tm} offen offset:{half*1024}")
    e("k2_end:")
    stamp(e, 4)
    e("s_waitcnt vmcnt(0)")
    stamp(e, 5)
    stamp_rt(e, 11)
    stamp_store(e, 2, "s24", 36)
    e("k2_done:")
    e("s_endpgm")
    nv = max(T + 8, tmpv + 28)
    assert nv <= 128, nv
    return kd("attn_kernel", nv, 96), max(CA + 640 + 32, g.lds_bytes)


K3_NBUF = 11


def gen_k3(e):
    kernel_head(e, "out_kernel")
    g = Gemm("k3", NWM=2, NWN=2, TM=2, TN=1, KGS=2, NBUF=K3_NBUF, KG=40, korder='d', NL=2, vbase=8, sbase=48)
    e("""
    s_cmp_ge_u32 s2, 160
    s_cbranch_scc1 k3_done
    s_load_dwordx2 s[4:5], s[0:1], 80
    s_load_dwordx2 s[6:7], s[0:1], 16
    s_load_dwordx2 s[8:9], s[0:1], 0
    s_load_dwordx2 s[10:11], s[0:1], 64
    v_lshrrev_b32 v1, 6, v0
    v_and_b32 v0, 63, v0
    s_and_b32 s20, s2, 7
    v_readfirstlane_b32 s24, v1
    s_lshr_b32 s21, s2, 3
    s_cmp_ge_u32 s21, 10
    s_cselect_b32 s22, 1, 0
    s_cselect_b32 s23, 10, 0
    s_sub_u32 s25, s21, s23
    s_lshl_b32 s23, s20, 1
    s_add_u32 s23, s23, s22
    s_lshl_b32 s28, s25, 7
    s_mov_b32 s29, 1280
    s_waitcnt lgkmcnt(0)
    """)
    srd(e, 36, "s4", "s5", WS_BYTES)
    stamp_rt(e, 10)
    stamp(e, 0)
    e("s_cmp_lt_u32 s24, 4")
    e("s_cbranch_scc1 k3_c")
    e("""
    s_add_u32 s16, s6, s28
    s_addc_u32 s17, s7, 0
    s_and_b32 s17, s17, 0xffff
    """)
    e(f"s_sub_u32 s18, {640*1280}, s28")
    e("s_mov_b32 s19, 0x00020000")
    e(f"s_add_u32 s12, s4, {O_OFF}")
    e("s_addc_u32 s13, s5, 0")
    e("s_and_b32 s13, s13, 0xffff")
    e(f"s_mov_b32 s14, {FR}")
    e("s_mov_b32 s15, 0x00020000")
    e("s_lshl_b32 s34, s23, 12")
    g.loader_setup(e, "s29", "s34")
    t = g.vt
    e(f"v_lshrrev_b32 v{t+2}, 2, v{t}")
    e(f"v_mul_u32_u24 v{t+2}, 40, v{t+2}")
    e(f"v_and_b32 v{t+3}, 3, v{t}")
    e(f"v_add_u32 v{t+2}, v{t+2}, v{t+3}")
    e(f"v_mul_u32_u24 v{t+2}, 1280, v{t+2}")
    e(f"v_add_u32 v{g.vDB2}, v{t+2}, v{t+1}")
    e("s_cmp_eq_u32 s24, 5")
    e("s_cbranch_scc1 k3_ld1")
    D = 6
    for kgl in range(2):
        if kgl == 1:
            e("k3_ld1:")

        def issue(st_):
            buf = (st_ % g.NBUF) * g.SB
            kg = st_ * 2 + kgl
            e(f"s_mov_b32 m0, {buf + kgl*4096}")
            e(f"s_add_u32 s{g.st}, s34, {kg*65536}")
            for i in range(4):
                off = f" offset:{i*1024}" if i else ""
                e(f"buffer_load_dwordx4 v{g.vDA}, s[12:15], s{g.st} offen{off} lds")
            for tt in range(2):
                e(f"s_mov_b32 m0, {buf + g.ASB + (kgl*2+tt)*1024}")
                if kg < 32:
                    e(f"s_mov_b32 s{g.st}, {(20*kg + 8*tt)*1280}")
                    e(f"buffer_load_dwordx4 v{g.vDB}, s[16:19], s{g.st} offen lds")
                else:
                    G = kg - 32
                    e(f"s_mov_b32 s{g.st}, {((4*G + tt)*20 + 16)*1280}")
                    e(f"buffer_load_dwordx4 v{g.vDB2}, s[16:19], s{g.st} offen lds")
        npre = 4
        for s_ in range(npre):
            issue(s_)
        e(f"s_waitcnt vmcnt({(npre-1)*D})")
        e("s_barrier")
        for s_ in range(npre, g.NBUF - 1):
            issue(s_)
        for s_ in range(g.NST):
            outst = max(0, min(s_ + g.NBUF - 2, g.NST - 1) - (s_ + 1) + 1)
            e(f"s_waitcnt vmcnt({max(0, outst-1)*D})")
            e("s_barrier")
            if s_ + g.NBUF - 1 < g.NST:
                issue(s_ + g.NBUF - 1)
        e("s_branch k3_end")
    e("k3_c:")
    srd(e, 12, "s8", "s9", 2048 * 1280)
    srd(e, 32, "s10", "s11", 2048 * 1280)
    g.setup(e, "s24")
    sWM, sWN = g.send, g.send + 1
    e(f"s_lshr_b32 s{sWM}, s24, 1")
    e(f"s_and_b32 s{sWN}, s24, 1")
    sT = g.send + 2
    GV = g.vend
    XV = GV + 16
    vX = XV + 16
    T = vX + 4
    e(f"s_lshl_b32 s{sT}, s23, 2")
    e(f"s_lshl_b32 s{sT+1}, s{sWM}, 1")
    e(f"s_add_u32 s{sT}, s{sT}, s{sT+1}")
    e(f"s_mul_i32 s{sT+1}, s{sT}, 20")
    e(f"s_lshl_b32 s{sT+2}, s25, 1")
    e(f"s_add_u32 s{sT+1}, s{sT+1}, s{sT+2}")
    e(f"s_add_u32 s{sT+1}, s{sT+1}, s{sWN}")
    e(f"s_lshl_b32 s{sT+1}, s{sT+1}, 11")
    e(f"s_add_u32 s{sT+1}, s{sT+1}, {G_OFF}")
    e(f"s_add_u32 s{sT+2}, s{sT+1}, {20*2048}")
    e(f"v_and_b32 v{T}, 31, v0")
    e(f"v_mul_u32_u24 v{vX}, 1280, v{T}")
    e(f"v_lshrrev_b32 v{T+1}, 5, v0")
    e(f"v_lshl_add_u32 v{vX}, v{T+1}, 4, v{vX}")
    e(f"s_mul_i32 s{sT+3}, s{sT}, {32*1280}")
    e(f"s_add_u32 s{sT+3}, s{sT+3}, s28")
    e(f"s_lshl_b32 s{sT+4}, s{sWN}, 6")
    e(f"s_add_u32 s{sT+3}, s{sT+3}, s{sT+4}")
    e(f"s_add_u32 s{sT+4}, s{sT+3}, {32*1280}")
    for i in range(32):
        e(f"v_mov_b32 v{g.acc+i}, 0")

    def late_loads():
        for tm in range(2):
            for half in range(2):
                r = GV + tm * 8 + half * 4
                e(f"buffer_load_dwordx4 v[{r}:{r+3}], v{g.vDA}, s[36:39], s{sT+1+tm} offen offset:{half*1024}")
        for tm in range(2):
            for pp in range(2):
                r = XV + (tm * 2 + pp) * 4
                e(f"buffer_load_dwordx4 v[{r}:{r+3}], v{vX}, s[12:15], s{sT+3+tm} offen offset:{pp*32}")
    g.main(e, 'n', 'm', late_loads)
    e("s_waitcnt vmcnt(0)")
    for tm in range(2):
        for pp in range(2):
            r = XV + (tm * 2 + pp) * 4
            e(f"v_permlane32_swap_b32 v{r}, v{r+2}")
            e(f"v_permlane32_swap_b32 v{r+1}, v{r+3}")
    for tm in range(2):
        for pp in range(2):
            ob = T + ((tm * 2 + pp) & 1) * 4
            for q in range(2):
                gg = pp * 2 + q
                a = g.accr(tm, 0) + 4 * gg
                gr = GV + tm * 8 + gg * 2
                xr = XV + (tm * 2 + pp) * 4 + q * 2
                t = T + 8
                e(f"v_cvt_pk_bf16_f32 v{t}, v{a}, v{a+1}")
                e(f"v_cvt_pk_bf16_f32 v{t+1}, v{a+2}, v{a+3}")
                for i in range(2):
                    e(f"v_lshlrev_b32 v{t+2+2*i}, 16, v{t+i}")
                    e(f"v_and_b32 v{t+3+2*i}, 0xffff0000, v{t+i}")
                    e(f"v_lshlrev_b32 v{t+6+2*i}, 16, v{gr+i}")
                    e(f"v_and_b32 v{t+7+2*i}, 0xffff0000, v{gr+i}")
                for i in range(4):
                    e(f"v_mul_f32 v{t+2+i}, v{t+2+i}, v{t+6+i}")
                e(f"v_cvt_pk_bf16_f32 v{t}, v{t+2}, v{t+3}")
                e(f"v_cvt_pk_bf16_f32 v{t+1}, v{t+4}, v{t+5}")
                for i in range(2):
                    e(f"v_lshlrev_b32 v{t+2+2*i}, 16, v{t+i}")
                    e(f"v_and_b32 v{t+3+2*i}, 0xffff0000, v{t+i}")
                    e(f"v_lshlrev_b32 v{t+6+2*i}, 16, v{xr+i}")
                    e(f"v_and_b32 v{t+7+2*i}, 0xffff0000, v{xr+i}")
                for i in range(4):
                    e(f"v_add_f32 v{t+2+i}, v{t+2+i}, v{t+6+i}")
                e(f"v_cvt_pk_bf16_f32 v{ob+2*q}, v{t+2}, v{t+3}")
                e(f"v_cvt_pk_bf16_f32 v{ob+2*q+1}, v{t+4}, v{t+5}")
            e("s_nop 1")
            e(f"v_permlane32_swap_b32 v{ob}, v{ob+2}")
            e(f"v_permlane32_swap_b32 v{ob+1}, v{ob+3}")
            e(f"buffer_store_dwordx4 v[{ob}:{ob+3}], v{vX}, s[32:35], s{sT+3+tm} offen offset:{pp*32}")
    e("k3_end:")
    stamp(e, 4)
    e("s_waitcnt vmcnt(0)")
    stamp(e, 5)
    stamp_rt(e, 11)
    stamp_store(e, 3, "s24", 36)
    e("k3_done:")
    e("s_endpgm")
    return kd("out_kernel", T + 20, 96), g.lds_bytes


def main():
    e = Em()
    kds = []
    k1kd, k1lds = gen_k1(e)
    kds.append(k1kd)
    k2kd, k2lds = gen_k2(e)
    kds.append(k2kd)
    k3kd, k3lds = gen_k3(e)
    kds.append(k3kd)
    launches = [
        f"; @launch kernel=gemm1_kernel grid=(256,1,1) block=(1024,1,1) lds={k1lds}",
        f"; @launch kernel=attn_kernel grid=(416,1,1) block=(512,1,1) lds={k2lds}",
        f"; @launch kernel=out_kernel grid=(160,1,1) block=(384,1,1) lds={k3lds}",
    ]
    head = "\n".join(launches) + "\n" + '.amdgcn_target "amdgcn-amd-amdhsa--gfx950"\n.text\n'
    tail = '.section .rodata,"a"\n.p2align 6\n' + ".p2align 6\n".join(kds)
    out = head + e.text() + tail
    path = sys.argv[1] if len(sys.argv) > 1 else f"cdna_kernels/{NAME}.s"
    open(path, "w").write(out)
    print("wrote", path, len(out))


if __name__ == "__main__":
    main()
```

```python
import sys, math, struct
from layout import *

NAME = "recurrent_scan__softmax_full_mha__mixer_channel_mlp__prompt"
WS_BYTES = 268435456


def f32bits(x):
    return struct.unpack("<I", struct.pack("<f", x))[0]


class Em:
    def __init__(self):
        self.l = []

    def __call__(self, s):
        for line in s.split("\n"):
            line = line.strip()
            if not line:
                continue
            if line.endswith(":") or line.startswith("."):
                self.l.append(line)
            else:
                self.l.append("    " + line)

    def text(self):
        return "\n".join(self.l) + "\n"


def srd(e, s, lo, hi, nbytes):
    e(f"s_mov_b32 s{s}, {lo}")
    e(f"s_and_b32 s{s+1}, {hi}, 0xffff")
    e(f"s_mov_b32 s{s+2}, {nbytes}")
    e(f"s_mov_b32 s{s+3}, 0x00020000")


def csel(e, dst, a, b):
    e(f"s_mov_b32 {dst}, {b}")
    e(f"s_cselect_b32 {dst}, {a}, {dst}")


import os
STAMP = int(os.environ.get("STAMP", "0"))
STAMP_OFF = 64 << 20


def stamp(e, i):
    if STAMP != 1:
        return
    e(f"s_memtime s[86:87]")
    e("s_waitcnt lgkmcnt(0)")
    e(f"s_mov_b32 s{70+i}, s86")


def stamp_rt(e, i):
    if not STAMP:
        return
    e(f"s_memrealtime s[86:87]")
    e("s_waitcnt lgkmcnt(0)")
    e(f"s_mov_b32 s{70+i}, s86")


def stamp_store(e, kidx, sWave, srdws, n=12):
    if not STAMP:
        return
    if STAMP == 2:
        e(f"s_cmp_lg_u32 {sWave}, 0")
        e(f"s_cbranch_scc1 dbg_skip{kidx}")
        e("s_and_b32 s88, s2, 15")
        e(f"s_cmp_lg_u32 s88, 5")
        e(f"s_cbranch_scc1 dbg_skip{kidx}")
        e("s_load_dwordx2 s[88:89], s[0:1], 72")
        e("s_waitcnt lgkmcnt(0)")
        e(f"s_add_u32 s88, s88, {512*(3-kidx)}")
        e("s_addc_u32 s89, s89, 0")
        e("s_and_b32 s89, s89, 0xffff")
        e("s_mov_b32 s90, 256")
        e("s_mov_b32 s91, 0x00020000")
        e("v_mov_b32 v1, 0")
        e("s_not_b32 s80, s80")
        e("v_mov_b32 v2, s80")
        e("v_mov_b32 v3, s81")
        e("s_mov_b64 exec, 1")
        e(f"buffer_atomic_umax v2, v1, s[88:91], 0 offen offset:{8*kidx}")
        e(f"buffer_atomic_umax v3, v1, s[88:91], 0 offen offset:{8*kidx+4}")
        e("s_waitcnt vmcnt(0)")
        e(f"dbg_skip{kidx}:")
        return
    e("s_getreg_b32 s78, hwreg(HW_REG_XCC_ID)")
    e("s_getreg_b32 s79, hwreg(HW_REG_HW_ID)")
    e(f"s_lshl_b32 s86, s2, 4")
    e(f"s_add_u32 s86, s86, {sWave}")
    e(f"s_lshl_b32 s86, s86, 6")
    e(f"s_add_u32 s86, s86, {STAMP_OFF + kidx * 0x100000}")
    e("v_mov_b32 v1, 0")
    for i in range(n):
        e(f"v_mov_b32 v2, s{70+i}")
        e(f"buffer_store_dword v2, v1, s[{srdws}:{srdws+3}], s86 offen offset:{4*i}")


def kernel_head(e, name):
    e(f".p2align 8")
    e(f".globl {name}")
    e(f".type {name},@function")
    e(f"{name}:")


def kd(name, vgpr, sgpr=96):
    acc = (vgpr + 3) // 4 * 4
    return f""".amdhsa_kernel {name}
  .amdhsa_next_free_vgpr {vgpr}
  .amdhsa_next_free_sgpr {sgpr}
  .amdhsa_accum_offset {acc}
  .amdhsa_group_segment_fixed_size 0
  .amdhsa_kernarg_size 88
  .amdhsa_user_sgpr_count 2
  .amdhsa_user_sgpr_kernarg_segment_ptr 1
  .amdhsa_system_sgpr_workgroup_id_x 1
.end_amdhsa_kernel
"""


def wave_sum(e, v, sdst):
    for sh in (1, 2, 4, 8):
        e("s_nop 1")
        e(f"v_add_f32_dpp v{v}, v{v}, v{v} row_shr:{sh} row_mask:0xf bank_mask:0xf bound_ctrl:0")
    e("s_nop 1")
    e(f"v_add_f32_dpp v{v}, v{v}, v{v} row_bcast:15 row_mask:0xa bank_mask:0xf")
    e("s_nop 1")
    e(f"v_add_f32_dpp v{v}, v{v}, v{v} row_bcast:31 row_mask:0xc bank_mask:0xf")
    e("s_nop 1")
    e(f"v_readlane_b32 s{sdst}, v{v}, 63")
    e("s_nop 1")


def bf16r(e, v, t):
    e(f"v_cvt_pk_bf16_f32 v{t}, v{v}, v{v}")
    e(f"v_lshlrev_b32 v{v}, 16, v{t}")


def gen_ln(e):
    kernel_head(e, "ln_kernel")
    e("""
    s_cmp_ge_u32 s2, 768
    s_cbranch_scc1 ln_done
    s_cmp_ge_u32 s2, 256
    s_cbranch_scc1 ln_main
    """)
    e("""
    s_load_dwordx2 s[4:5], s[0:1], 8
    s_load_dwordx2 s[6:7], s[0:1], 32
    s_load_dwordx2 s[8:9], s[0:1], 48
    s_load_dwordx2 s[10:11], s[0:1], 16
    v_lshrrev_b32 v1, 6, v0
    v_and_b32 v0, 63, v0
    v_lshlrev_b32 v2, 4, v0
    v_readfirstlane_b32 s20, v1
    s_and_b32 s21, s2, 7
    s_lshr_b32 s22, s2, 3
    s_lshr_b32 s23, s21, 2
    s_and_b32 s24, s21, 1
    s_waitcnt lgkmcnt(0)
    s_cmp_eq_u32 s23, 0
    s_cselect_b32 s12, s4, s6
    s_cselect_b32 s13, s5, s7
    """)
    csel(e, "s25", 3840, 3456)
    csel(e, "s14", 640*3840, 640*3456)
    csel(e, "s26", 2048, 1792)
    e("s_and_b32 s13, s13, 0xffff")
    e("s_mov_b32 s15, 0x00020000")
    e("s_mul_i32 s27, s22, 20")
    e("s_mul_i32 s28, s20, 5")
    e("s_add_u32 s27, s27, s28")
    e("s_mul_i32 s27, s27, s25")
    e("s_mul_i32 s28, s24, s26")
    e("s_add_u32 s27, s27, s28")
    for r in range(5):
        e(f"buffer_load_dwordx4 v[{4+8*r}:{7+8*r}], v2, s[12:15], s27 offen")
        e(f"buffer_load_dwordx4 v[{8+8*r}:{11+8*r}], v2, s[12:15], s27 offen offset:1024")
        e("s_add_u32 s27, s27, s25")
    srd(e, 16, "s8", "s9", 1728 * 1280)
    srd(e, 28, "s10", "s11", 640 * 1280)
    e("s_lshl_b32 s27, s2, 2")
    e("s_add_u32 s27, s27, s20")
    e("s_lshl_b32 s27, s27, 10")
    e("buffer_load_dwordx4 v[44:47], v2, s[28:31], s27 offen")
    e("buffer_load_dwordx4 v[4:7], v2, s[16:19], s27 offen")
    e("s_add_u32 s27, s27, 0x100000")
    e("buffer_load_dwordx4 v[8:11], v2, s[16:19], s27 offen")
    e("s_add_u32 s27, s27, 0x100000")
    e("buffer_load_dwordx4 v[12:15], v2, s[16:19], s27 offen")
    e("s_waitcnt vmcnt(0)")
    e("s_endpgm")
    e("""
    ln_main:
    s_sub_u32 s2, s2, 256
    s_load_dwordx2 s[4:5], s[0:1], 0
    s_load_dwordx2 s[6:7], s[0:1], 80
    v_lshrrev_b32 v1, 6, v0
    v_and_b32 v0, 63, v0
    v_lshlrev_b32 v2, 4, v0
    v_readfirstlane_b32 s20, v1
    v_lshlrev_b32 v3, 2, v0
    s_lshl_b32 s21, s2, 2
    s_nop 1
    s_add_u32 s21, s21, s20
    s_mul_i32 s22, s21, 1280
    s_waitcnt lgkmcnt(0)
    """)
    srd(e, 8, "s4", "s5", 2048 * 1280)
    srd(e, 12, "s6", "s7", WS_BYTES)
    stamp_rt(e, 10)
    stamp(e, 0)
    e("""
    buffer_load_dwordx4 v[4:7], v2, s[8:11], s22 offen
    buffer_load_dword v8, v3, s[8:11], s22 offen offset:1024
    s_lshr_b32 s23, s21, 5
    s_and_b32 s24, s21, 31
    s_lshl_b32 s23, s23, 10
    s_lshl_b32 s24, s24, 4
    s_add_u32 s23, s23, s24
    """)
    e(f"s_add_u32 s25, s23, {Y_OFF}")
    e(f"s_add_u32 s23, s23, {XN_OFF}")
    e("""
    v_lshrrev_b32 v40, 1, v0
    v_lshlrev_b32 v40, 16, v40
    v_and_b32 v42, 1, v0
    v_lshlrev_b32 v42, 9, v42
    v_add_u32 v40, v40, v42
    v_lshrrev_b32 v41, 3, v0
    v_add_u32 v41, 32, v41
    v_lshlrev_b32 v41, 16, v41
    v_bfe_u32 v42, v0, 2, 1
    v_lshlrev_b32 v42, 9, v42
    v_add_u32 v41, v41, v42
    v_and_b32 v42, 3, v0
    v_lshlrev_b32 v42, 2, v42
    v_add_u32 v41, v41, v42
    """)
    e(f"v_mov_b32 v38, 0x{f32bits(1.0/640.0):08x}")
    e(f"v_mov_b32 v39, 0x{f32bits(1e-5):08x}")
    e("s_waitcnt vmcnt(0)")
    F = list(range(10, 20))
    E_ = list(range(20, 30))
    P = [4, 5, 6, 7, 8]

    def unpack():
        for i in range(5):
            e(f"v_lshlrev_b32 v{F[2*i]}, 16, v{P[i]}")
            e(f"v_and_b32 v{F[2*i+1]}, 0xffff0000, v{P[i]}")

    def ln(soff):
        e(f"v_add_f32 v30, v{F[0]}, v{F[1]}")
        e(f"v_add_f32 v31, v{F[2]}, v{F[3]}")
        e(f"v_add_f32 v32, v{F[4]}, v{F[5]}")
        e(f"v_add_f32 v33, v{F[6]}, v{F[7]}")
        e(f"v_add_f32 v34, v{F[8]}, v{F[9]}")
        e("v_add_f32 v30, v30, v31")
        e("v_add_f32 v32, v32, v33")
        e("v_add_f32 v30, v30, v34")
        e("v_add_f32 v30, v30, v32")
        wave_sum(e, 30, 26)
        e("v_mul_f32 v31, s26, v38")
        for i in range(10):
            e(f"v_sub_f32 v{E_[i]}, v{F[i]}, v31")
        e(f"v_mul_f32 v30, v{E_[0]}, v{E_[0]}")
        e(f"v_mul_f32 v32, v{E_[1]}, v{E_[1]}")
        for i in range(2, 10, 2):
            e(f"v_fmac_f32 v30, v{E_[i]}, v{E_[i]}")
            e(f"v_fmac_f32 v32, v{E_[i+1]}, v{E_[i+1]}")
        e("v_add_f32 v30, v30, v32")
        wave_sum(e, 30, 26)
        e("v_mul_f32 v32, s26, v38")
        bf16r(e, 31, 33)
        bf16r(e, 32, 33)
        e("v_add_f32 v32, v32, v39")
        bf16r(e, 32, 33)
        e("v_sqrt_f32 v32, v32")
        e("s_nop 0")
        bf16r(e, 32, 33)
        e("v_rcp_f32 v32, v32")
        for i in range(10):
            e(f"v_sub_f32 v{E_[i]}, v{F[i]}, v31")
        for i in range(5):
            e(f"v_cvt_pk_bf16_f32 v{P[i]}, v{E_[2*i]}, v{E_[2*i+1]}")
        unpack()
        for i in range(10):
            e(f"v_mul_f32 v{F[i]}, v{F[i]}, v32")
        for i in range(5):
            e(f"v_cvt_pk_bf16_f32 v{P[i]}, v{F[2*i]}, v{F[2*i+1]}")
        e(f"buffer_store_dwordx4 v[4:7], v40, s[12:15], {soff} offen")
        e(f"buffer_store_dword v8, v41, s[12:15], {soff} offen")

    unpack()
    ln("s23")
    unpack()
    e("s_nop 1")
    ln("s25")
    if STAMP:
        for i in range(1, 5):
            stamp(e, i)
        e("s_waitcnt vmcnt(0)")
        stamp(e, 5)
        stamp_rt(e, 11)
        stamp_store(e, 0, "s20", 12)
    e("ln_done:")
    e("s_endpgm")
    return kd("ln_kernel", 48, 96)


class Gemm:
    def __init__(self, pfx, NWM, NWN, TM, TN, KGS, NBUF, KG, korder, NL, vbase, sbase, lds_base=0):
        self.pfx = pfx
        self.NWM, self.NWN, self.TM, self.TN = NWM, NWN, TM, TN
        self.KGS, self.NBUF, self.KG, self.korder, self.NL = KGS, NBUF, KG, korder, NL
        self.NW = NWM * NWN
        self.BM = NWM * TM * 32
        self.BN = NWN * TN * 32
        self.NT = self.BM // 32
        self.pitch = self.BN * 2
        self.ASB = self.NT * KGS * 1024
        self.BSB = KGS * 16 * self.pitch
        self.SB = self.ASB + self.BSB
        self.lds_base = lds_base
        self.lds_bytes = self.SB * NBUF
        assert KG % KGS == 0
        self.NST = KG // KGS
        self.rpi = 1024 // self.pitch
        ops = []
        for kg in range(KGS):
            for tg in range(0, self.NT, 4):
                for i in range(min(4, self.NT - tg)):
                    ops.append(('A', kg * self.NT * 1024 + tg * 1024, kg * 65536 + tg * 1024, i * 1024))
        for i in range(self.BSB // 1024):
            ops.append(('B', self.ASB + i * 1024, i, 0))
        assert len(ops) % NL == 0, (len(ops), NL)
        self.D = len(ops) // NL
        self.lops = [ops[k * self.D:(k + 1) * self.D] for k in range(NL)]
        assert (NBUF - 1) * self.D <= 63
        v = vbase
        self.acc = v; v += TM * TN * 16
        self.fr = []
        for p in range(2):
            a = [v + 4 * j for j in range(TM)]; v += 4 * TM
            b = [v + 4 * j for j in range(TN)]; v += 4 * TN
            self.fr.append((a, b))
        self.vA0 = v; v += 1
        self.vB0 = [v + j for j in range(TN)]; v += TN
        self.vA = v; v += 1
        self.vB = [v + j for j in range(TN)]; v += TN
        self.vDA = v; v += 1
        self.vDB = v; v += 1
        self.vDB2 = v; v += 1
        self.vt = v; v += 4
        self.vend = (v + 3) // 4 * 4
        s = sbase
        self.sRd = s; s += 1
        self.sWr = s; s += 1
        self.sAo = s; s += 1
        self.sBo = s; s += 1
        self.sBinc = s; s += 1
        self.sBstep = s; s += 1
        self.sCnt = s; s += 1
        self.sIss = s; s += 1
        self.st = s; s += 4
        self.send = s

    def accr(self, tm, tn):
        return self.acc + (tm * self.TN + tn) * 16

    def loader_setup(self, e, sLdw, sA0):
        t = self.vt
        ppr = self.pitch // 16
        lgp = int(math.log2(ppr))
        e(f"v_lshlrev_b32 v{self.vDA}, 4, v0")
        e(f"v_lshrrev_b32 v{t}, {lgp}, v0")
        e(f"v_and_b32 v{t+1}, {ppr-1}, v0")
        e(f"v_lshrrev_b32 v{t+2}, 2, v{t+1}")
        if self.pitch == 256:
            e(f"v_and_b32 v{t+3}, 3, v{t}")
        else:
            e(f"v_bfe_u32 v{t+3}, v{t}, 1, 1")
        e(f"v_xor_b32 v{t+2}, v{t+2}, v{t+3}")
        e(f"v_and_b32 v{t+1}, 3, v{t+1}")
        e(f"v_lshlrev_b32 v{t+1}, 4, v{t+1}")
        e(f"v_lshl_add_u32 v{t+1}, v{t+2}, 6, v{t+1}")
        e(f"v_mul_lo_u32 v{t+2}, v{t}, {sLdw}")
        e(f"v_add_u32 v{self.vDB}, v{t+2}, v{t+1}")
        e(f"s_mul_i32 s{self.sBinc}, {sLdw}, {16*self.KGS}")
        e(f"s_mul_i32 s{self.sBstep}, {sLdw}, {self.rpi}")
        e(f"s_mov_b32 s{self.sAo}, {sA0}")
        e(f"s_mov_b32 s{self.sBo}, 0")
        e(f"s_mov_b32 s{self.sIss}, 0")
        e(f"s_mov_b32 s{self.sWr}, {self.lds_base}")

    def issue(self, e, k, SA, SBd):
        st = self.st
        rep = int(os.environ.get('REP', '1'))
        e(f"s_cmp_lt_u32 s{self.sIss}, {self.NST}")
        e(f"s_cselect_b32 s{st+1}, s{self.sAo}, 0x7ff00000")
        e(f"s_cselect_b32 s{st+2}, s{self.sBo}, 0x7ff00000")
        cur = None
        lastb = 0
        for kind, lo, gd, io in self.lops[k]:
            if kind == 'A':
                if cur != ('A', lo):
                    e(f"s_add_u32 m0, s{self.sWr}, {lo}")
                    e(f"s_add_u32 s{st}, s{st+1}, {gd}")
                    cur = ('A', lo)
                off = f" offset:{io}" if io else ""
                e(f"buffer_load_dwordx4 v{self.vDA}, s[{SA}:{SA+3}], s{st} offen{off} lds")
            else:
                e(f"s_add_u32 m0, s{self.sWr}, {lo}")
                if gd != lastb:
                    if gd - lastb == 1:
                        e(f"s_add_u32 s{st+2}, s{st+2}, s{self.sBstep}")
                    else:
                        e(f"s_mul_i32 s{st+3}, s{self.sBstep}, {gd-lastb}")
                        e(f"s_add_u32 s{st+2}, s{st+2}, s{st+3}")
                    lastb = gd
                else:
                    e("s_nop 0")
                e(f"buffer_load_dwordx4 v{self.vDB}, s[{SBd}:{SBd+3}], s{st+2} offen lds")
                cur = None
        e(f"s_add_u32 s{self.sAo}, s{self.sAo}, {self.KGS*65536}")
        e(f"s_add_u32 s{self.sBo}, s{self.sBo}, s{self.sBinc}")
        e(f"s_add_u32 s{self.sIss}, s{self.sIss}, 1")
        e(f"s_add_u32 s{self.sWr}, s{self.sWr}, {self.SB}")
        e(f"s_cmp_eq_u32 s{self.sWr}, {self.lds_base + self.SB*self.NBUF}")
        e(f"s_cselect_b32 s{self.sWr}, {self.lds_base}, s{self.sWr}")

    def loader(self, e, k, SA, SBd, endlabel):
        L = f"{self.pfx}_ld{k}_loop"
        self.issue(e, k, SA, SBd)
        self.issue(e, k, SA, SBd)
        e(f"s_waitcnt vmcnt({self.D})")
        e("s_barrier")
        for s_ in range(2, self.NBUF - 1):
            self.issue(e, k, SA, SBd)
        e(f"s_mov_b32 s{self.sCnt}, {self.NST}")
        e(f"{L}:")
        e(f"s_waitcnt vmcnt({(self.NBUF-3)*self.D})")
        e("s_barrier")
        if not os.environ.get("NODMA"):
            self.issue(e, k, SA, SBd)
        e(f"s_sub_u32 s{self.sCnt}, s{self.sCnt}, 1")
        e(f"s_cmp_lg_u32 s{self.sCnt}, 0")
        e(f"s_cbranch_scc1 {L}")
        e(f"s_branch {endlabel}")

    def setup(self, e, sWave):
        t = self.vt
        TM, TN, KGS = self.TM, self.TN, self.KGS
        st = self.st
        lg = int(math.log2(self.NWN))
        e(f"s_lshr_b32 s{st}, {sWave}, {lg}")
        e(f"s_and_b32 s{st+1}, {sWave}, {self.NWN-1}")
        e(f"v_lshlrev_b32 v{self.vDA}, 4, v0")
        e(f"s_mul_i32 s{st}, s{st}, {TM*1024}")
        e(f"s_add_u32 s{st}, s{st}, {self.lds_base}")
        e(f"v_add_u32 v{self.vA0}, s{st}, v{self.vDA}")
        e(f"v_bfe_u32 v{t}, v0, 2, 2")
        e(f"v_lshrrev_b32 v{t+1}, 5, v0")
        hmul = 8 if self.korder == 'nat' else 4
        e(f"v_mad_u32_u24 v{t+1}, v{t+1}, {hmul}, v{t}")
        e(f"v_mul_u32_u24 v{t+1}, {self.pitch}, v{t+1}")
        e(f"v_bfe_u32 v{t+2}, v0, 4, 1")
        e(f"v_lshl_add_u32 v{t+1}, v{t+2}, 5, v{t+1}")
        e(f"v_and_b32 v{t+2}, 3, v0")
        e(f"v_lshl_add_u32 v{t+1}, v{t+2}, 3, v{t+1}")
        e(f"v_add_u32 v{t+1}, {self.lds_base + self.ASB}, v{t+1}")
        if self.pitch == 128:
            e(f"v_lshrrev_b32 v{t}, 1, v{t}")
        for j in range(TN):
            e(f"s_mul_i32 s{st}, s{st+1}, {TN}")
            e(f"s_add_u32 s{st}, s{st}, {j}")
            e(f"v_xor_b32 v{t+2}, s{st}, v{t}")
            e(f"v_lshl_add_u32 v{self.vB0[j]}, v{t+2}, 6, v{t+1}")
        e(f"s_mov_b32 s{self.sRd}, 0")

    def reads(self, e, p, kg):
        a, b = self.fr[p]
        ra = [f"ds_read_b128 v[{a[j]}:{a[j]+3}], v{self.vA} offset:{kg*self.NT*1024 + j*1024}" for j in range(self.TM)]
        tmul = 4 if self.korder == 'nat' else 8
        rb = []
        for j in range(self.TN):
            for t in range(2):
                rb.append(f"ds_read_b64_tr_b16 v[{b[j]+2*t}:{b[j]+2*t+1}], v{self.vB[j]} offset:{(kg*16 + t*tmul)*self.pitch}")
        return ra[:1] + rb + ra[1:]

    def nreads(self):
        return self.TM + 2 * self.TN

    def mfmas(self, p, orient):
        a, b = self.fr[p]
        out = []
        for tm in range(self.TM):
            for tn in range(self.TN):
                d = self.accr(tm, tn)
                if orient == 'n':
                    s0, s1 = b[tn], a[tm]
                else:
                    s0, s1 = a[tm], b[tn]
                out.append(f"v_mfma_f32_32x32x16_bf16 v[{d}:{d+15}], v[{s0}:{s0+3}], v[{s1}:{s1+3}], v[{d}:{d+15}]")
        return out

    def set_bases(self, e):
        e(f"v_add_u32 v{self.vA}, s{self.sRd}, v{self.vA0}")
        for j in range(self.TN):
            e(f"v_add_u32 v{self.vB[j]}, s{self.sRd}, v{self.vB0[j]}")

    def adv_rd(self, e):
        e(f"s_add_u32 s{self.sRd}, s{self.sRd}, {self.SB}")
        e(f"s_cmp_eq_u32 s{self.sRd}, {self.SB*self.NBUF}")
        e(f"s_cselect_b32 s{self.sRd}, 0, s{self.sRd}")

    def main(self, e, orient, tag, after_first=None):
        L = f"{self.pfx}_{tag}_loop"
        self.set_bases(e)
        e(f"s_mov_b32 s{self.sCnt}, {self.NST}")
        stamp(e, 1)
        e("s_barrier")
        stamp(e, 2)
        for r in self.reads(e, 0, 0):
            e(r)
        if after_first:
            after_first()
        e(f"{L}:")
        e("s_barrier")
        nr = self.nreads()
        for kg in range(self.KGS):
            p = kg & 1
            last = kg == self.KGS - 1
            rd = self.reads(e, p ^ 1, 0 if last else kg + 1)
            mf = self.mfmas(p, orient)
            need = []
            for tm in range(self.TM):
                for tn in range(self.TN):
                    nb = 1 + 2 * (tn + 1)
                    na = 1 if tm == 0 else 1 + 2 * self.TN + tm
                    need.append(max(nb, na))
            nm = len(mf)
            gaps = max(1, nm - 2) if nm > 2 else 1
            per = (nr + gaps - 1) // gaps
            issued = 0
            have = 0
            for i in range(nm):
                if need[i] > have:
                    if not os.environ.get("NOLDS"):
                        e(f"s_waitcnt lgkmcnt({nr - need[i] + issued})")
                    have = need[i]
                if not os.environ.get("NOMFMA"):
                    e(mf[i])
                if i == 0 and last:
                    self.adv_rd(e)
                    self.set_bases(e)
                for r in rd[issued:issued + per]:
                    if not os.environ.get("NOLDS"):
                        e(r)
                issued = min(nr, issued + per)
            assert issued == nr
        e(f"s_sub_u32 s{self.sCnt}, s{self.sCnt}, 1")
        e(f"s_cmp_lg_u32 s{self.sCnt}, 0")
        e(f"s_cbranch_scc1 {L}")
        e("s_waitcnt lgkmcnt(0)")
        e("s_nop 15")
        stamp(e, 3)


def load_bias_init(e, g, srdB, sN0, tmp):
    e(f"v_lshrrev_b32 v{g.vt}, 5, v0")
    e(f"v_lshlrev_b32 v{g.vt}, 3, v{g.vt}")
    for tn in range(g.TN):
        for gg in range(4):
            r = tmp + (tn * 4 + gg) * 2
            e(f"buffer_load_dwordx2 v[{r}:{r+1}], v{g.vt}, s[{srdB}:{srdB+3}], {sN0} offen offset:{(tn*32+gg*8)*2}")


def finish_bias_init(e, g, tmp):
    for tn in range(g.TN):
        for gg in range(4):
            r = tmp + (tn * 4 + gg) * 2
            for tm in range(g.TM):
                d = g.accr(tm, tn) + gg * 4
                e(f"v_lshlrev_b32 v{d}, 16, v{r}")
                e(f"v_and_b32 v{d+1}, 0xffff0000, v{r}")
                e(f"v_lshlrev_b32 v{d+2}, 16, v{r+1}")
                e(f"v_and_b32 v{d+3}, 0xffff0000, v{r+1}")


K1_KGS = 2
K1_NBUF = 6


F_SB = 49152
F_ASB = 32768
F_NBUF = 3
F_NST = 10
F_MU = F_SB * F_NBUF
F_RS = F_MU + 1024
F_CS = F_RS + 1024
F_BI = F_CS + 512
F_FLAG = F_BI + 256
F_PT = F_FLAG + 64
F_LDS = F_PT + 2560
NSIG = 8 + 15
SPIN_MAX = 64


def ln_finalize(e, aS, aQ, o, t1, m, v, den1, mb):
    e(f"v_mul_f32 v{m}, 0x{f32bits(1.0/640.0):08x}, v{aS}")
    e(f"v_mul_f32 v{v}, 0x{f32bits(1.0/640.0):08x}, v{aQ}")
    e(f"v_fma_f32 v{v}, -v{m}, v{m}, v{v}")
    e(f"v_max_f32 v{v}, 0, v{v}")
    e(f"v_mov_b32 v{mb}, v{m}")
    bf16r(e, mb, t1)
    e(f"v_mov_b32 v{den1}, v{v}")
    bf16r(e, den1, t1)
    e(f"v_add_f32 v{den1}, 0x{f32bits(1e-5):08x}, v{den1}")
    bf16r(e, den1, t1)
    e(f"v_sqrt_f32 v{den1}, v{den1}")
    e("s_nop 0")
    bf16r(e, den1, t1)
    e(f"v_rcp_f32 v{o+1}, v{den1}")
    e(f"v_mov_b32 v{o}, v{mb}")
    m2, d2 = o + 4, o + 5
    e(f"v_sub_f32 v{m2}, v{m}, v{mb}")
    e(f"v_mul_f32 v{m2}, v{m2}, v{o+1}")
    bf16r(e, m2, t1)
    e(f"v_mul_f32 v{d2}, v{v}, v{o+1}")
    e(f"v_mul_f32 v{d2}, v{d2}, v{o+1}")
    bf16r(e, d2, t1)
    e(f"v_add_f32 v{d2}, 0x{f32bits(1e-5):08x}, v{d2}")
    bf16r(e, d2, t1)
    e(f"v_sqrt_f32 v{d2}, v{d2}")
    e("s_nop 0")
    bf16r(e, d2, t1)
    e(f"v_rcp_f32 v{d2}, v{d2}")
    e(f"v_fma_f32 v{o+2}, v{m2}, v{den1}, v{mb}")
    e(f"v_mul_f32 v{o+3}, v{o+1}, v{d2}")


def row_sums(e, A, aS, aQ):
    e(f"v_mov_b32 v{aS}, 0")
    e(f"v_mov_b32 v{aQ}, 0")
    for i in range(20):
        e(f"v_dot2_f32_bf16 v{aS}, v{A+i}, s57, v{aS}")
        e(f"v_dot2_f32_bf16 v{aQ}, v{A+i}, v{A+i}, v{aQ}")
    e("s_nop 2")
    for sh in (8, 4, 2, 1):
        e(f"v_add_f32_dpp v{aS}, v{aS}, v{aS} row_ror:{sh} row_mask:0xf bank_mask:0xf")
        e(f"v_add_f32_dpp v{aQ}, v{aQ}, v{aQ} row_ror:{sh} row_mask:0xf bank_mask:0xf")
        e("s_nop 0")


def class_combine(e, aC, A, n=8):
    for op in ("v_permlane32_swap_b32", "v_permlane16_swap_b32"):
        for i in range(n):
            e(f"v_mov_b32 v{A+i}, v{aC+i}")
        e("s_nop 1")
        for i in range(n):
            e(f"{op} v{aC+i}, v{A+i}")
        e("s_nop 1")
        for i in range(n):
            e(f"v_add_f32 v{aC+i}, v{aC+i}, v{A+i}")


def row_stats_fb(e, sMt, sWave, R):
    A = R
    vO, aS, aQ, t1, m, v, den1, mb = R + 40, R + 41, R + 42, R + 43, R + 44, R + 45, R + 46, R + 47
    e(f"v_lshrrev_b32 v{vO}, 4, v0")
    e(f"v_mul_u32_u24 v{vO}, 1280, v{vO}")
    e(f"v_and_b32 v{t1}, 15, v0")
    e(f"v_lshl_add_u32 v{vO}, v{t1}, 4, v{vO}")
    e(f"s_lshl_b32 s54, {sMt}, 8")
    e(f"s_lshl_b32 s55, {sWave}, 4")
    e("s_add_u32 s54, s54, s55")
    e("s_mul_i32 s55, s54, 1280")
    e("s_mov_b32 s57, 0x3f803f80")
    e(f"s_lshl_b32 s56, {sWave}, 6")
    e("s_mov_b32 s54, 4")
    e("k1_fbr:")
    for i in range(5):
        e(f"buffer_load_dwordx4 v[{A+4*i}:{A+4*i+3}], v{vO}, s[12:15], s55 offen offset:{i*256}")
    e(f"s_add_u32 s55, s55, {4*1280}")
    e("s_waitcnt vmcnt(0)")
    row_sums(e, A, aS, aQ)
    ln_finalize(e, aS, aQ, A, t1, m, v, den1, mb)
    e("s_cmp_eq_u32 s26, 0")
    e("s_cbranch_scc1 k1_fbq")
    e(f"v_mov_b32 v{A}, v{A+2}")
    e(f"v_mov_b32 v{A+1}, v{A+3}")
    e("k1_fbq:")
    e(f"v_lshrrev_b32 v{t1}, 4, v0")
    e(f"v_lshlrev_b32 v{t1}, 2, v{t1}")
    e(f"v_add_u32 v{t1}, s56, v{t1}")
    e(f"v_add_u32 v{t1}, {F_MU}, v{t1}")
    e(f"ds_write_b32 v{t1}, v{A}")
    e(f"ds_write_b32 v{t1}, v{A+1} offset:1024")
    e("s_waitcnt lgkmcnt(0)")
    e("s_add_u32 s56, s56, 16")
    e("s_sub_u32 s54, s54, 1")
    e("s_cmp_lg_u32 s54, 0")
    e("s_cbranch_scc1 k1_fbr")


def col_stats_fb(e, sWave, R):
    A = R
    aC = R + 40
    vO, t1 = R + 38, R + 39
    e("""
    s_cmp_eq_u32 s26, 0
    s_cselect_b32 s16, s6, s8
    s_cselect_b32 s17, s7, s9
    """)
    csel(e, "s55", 3840, 3456)
    csel(e, "s18", 640*3840, 640*3456)
    e("s_and_b32 s17, s17, 0xffff")
    e("s_mov_b32 s19, 0x00020000")
    e(f"s_mul_i32 s57, {sWave}, 40")
    e("s_mul_i32 s57, s57, s55")
    e("s_add_u32 s56, s28, s57")
    e("s_lshl_b32 s57, s55, 2")
    e(f"v_lshrrev_b32 v{vO}, 4, v0")
    e(f"v_mul_lo_u32 v{vO}, v{vO}, s55")
    e(f"v_and_b32 v{t1}, 15, v0")
    e(f"v_lshl_add_u32 v{vO}, v{t1}, 4, v{vO}")
    e("s_mov_b32 s58, 0x00003f80")
    e("s_mov_b32 s59, 0x3f800000")
    for i in range(8):
        e(f"v_mov_b32 v{aC+i}, 0")
    e("s_mov_b32 s54, 10")
    e("k1_fbc:")
    e(f"buffer_load_dwordx4 v[{A}:{A+3}], v{vO}, s[16:19], s56 offen")
    e("s_add_u32 s56, s56, s57")
    e("s_waitcnt vmcnt(0)")
    for j in range(4):
        e(f"v_dot2_f32_bf16 v{aC+2*j}, v{A+j}, s58, v{aC+2*j}")
        e(f"v_dot2_f32_bf16 v{aC+2*j+1}, v{A+j}, s59, v{aC+2*j+1}")
    e("s_sub_u32 s54, s54, 1")
    e("s_cmp_lg_u32 s54, 0")
    e("s_cbranch_scc1 k1_fbc")
    e("s_nop 2")
    class_combine(e, aC, A)
    e(f"s_lshl_b32 s54, {sWave}, 9")
    e(f"v_lshlrev_b32 v{t1}, 5, v{t1}")
    e(f"v_add_u32 v{t1}, s54, v{t1}")
    e(f"ds_write_b128 v{t1}, v[{aC}:{aC+3}]")
    e(f"ds_write_b128 v{t1}, v[{aC+4}:{aC+7}] offset:16")
    e("s_waitcnt lgkmcnt(0)")
    e("s_barrier")
    e(f"s_cmp_ge_u32 {sWave}, 2")
    e("s_cbranch_scc1 k1_fbs")
    e(f"s_lshl_b32 s57, {sWave}, 8")
    e(f"v_lshlrev_b32 v{t1}, 2, v0")
    e(f"v_add_u32 v{vO}, s57, v{t1}")
    for j in range(16):
        e(f"ds_read_b32 v{A+j}, v{vO} offset:{j*512}")
    e("s_waitcnt lgkmcnt(0)")
    for j in range(1, 16):
        e(f"v_add_f32 v{A}, v{A}, v{A+j}")
    e(f"v_add_u32 v{vO}, {F_CS}, v{vO}")
    e(f"ds_write_b32 v{vO}, v{A}")
    e("s_waitcnt lgkmcnt(0)")
    e("k1_fbs:")


def fetch_issue(e):
    e("s_lshl_b32 s54, s23, 8")
    e("s_lshl_b32 s55, s30, 6")
    e("s_add_u32 s54, s54, s55")
    e("s_lshl_b32 s54, s54, 5")
    e("s_lshl_b32 s55, s26, 4")
    e("s_add_u32 s54, s54, s55")
    e(f"s_add_u32 s54, s54, {ST_OFF}")
    e("v_lshlrev_b32 v73, 5, v0")
    e("buffer_load_dwordx4 v[76:79], v73, s[36:39], s54 offen sc0 sc1")
    e("s_lshl_b32 s31, s35, 13")
    e("s_lshl_b32 s55, s30, 8")
    e("s_add_u32 s31, s31, s55")
    e(f"s_add_u32 s31, s31, {CS_OFF}")
    e("v_and_b32 v74, 15, v0")
    e("v_lshlrev_b32 v74, 4, v74")
    e("v_lshrrev_b32 v75, 4, v0")
    e("v_lshl_add_u32 v75, v75, 11, v74")
    e("buffer_load_dwordx4 v[80:83], v75, s[36:39], s31 offen sc0 sc1")
    e("buffer_load_dwordx4 v[84:87], v75, s[36:39], s31 offen offset:1024 sc0 sc1")


def fetch_check(e):
    e("v_cmp_ne_u32 vcc, s48, v78")
    e("v_cmp_ne_u32 s[54:55], s48, v82")
    e("v_cmp_ne_u32 s[56:57], s48, v86")
    e("s_nop 3")
    e("s_or_b64 s[54:55], s[54:55], vcc")
    e("s_or_b64 s[54:55], s[54:55], s[56:57]")
    e("s_cmp_eq_u32 s48, 0")
    e("s_cselect_b32 s54, 1, s54")
    e("s_cmp_eq_u64 s[54:55], 0")
    e("s_cselect_b32 s50, 1, 0")


def fetch_commit(e):
    e("s_lshl_b32 s54, s30, 8")
    e("v_lshlrev_b32 v72, 2, v0")
    e("v_add_u32 v72, s54, v72")
    e(f"v_add_u32 v72, {F_MU}, v72")
    e("ds_write_b32 v72, v76")
    e("ds_write_b32 v72, v77 offset:1024")
    e("v_add_f32 v80, v80, v84")
    e("v_add_f32 v81, v81, v85")
    class_combine(e, 80, 84, 2)
    e("s_lshl_b32 s54, s30, 7")
    e("v_and_b32 v74, 15, v0")
    e("v_lshlrev_b32 v74, 3, v74")
    e("v_add_u32 v74, s54, v74")
    e(f"v_add_u32 v74, {F_CS}, v74")
    e("ds_write_b64 v74, v[80:81]")
    e("s_waitcnt lgkmcnt(0)")


def gen_k1(e):
    kernel_head(e, "gemm1_kernel")
    e("""
    s_cmp_ge_u32 s2, 256
    s_cbranch_scc1 k1_done
    s_load_dwordx2 s[4:5], s[0:1], 80
    s_load_dwordx2 s[6:7], s[0:1], 8
    s_load_dwordx2 s[8:9], s[0:1], 32
    s_load_dwordx2 s[10:11], s[0:1], 40
    s_load_dwordx2 s[60:61], s[0:1], 0
    s_load_dwordx2 s[62:63], s[0:1], 72
    v_lshrrev_b32 v1, 6, v0
    v_and_b32 v0, 63, v0
    s_and_b32 s20, s2, 7
    v_readfirstlane_b32 s24, v1
    s_lshr_b32 s21, s2, 3
    s_and_b32 s22, s21, 3
    s_lshr_b32 s21, s21, 2
    s_lshr_b32 s26, s20, 2
    s_bfe_u32 s23, s20, 0x10001
    s_lshl_b32 s23, s23, 2
    s_add_u32 s23, s23, s22
    s_and_b32 s27, s20, 1
    """)
    e("""
    s_cmp_eq_u32 s26, 0
    s_cselect_b32 s25, 8, 7
    s_mul_i32 s25, s25, s27
    s_add_u32 s25, s25, s21
    s_lshl_b32 s28, s25, 8
    s_waitcnt lgkmcnt(0)
    """)
    srd(e, 36, "s4", "s5", WS_BYTES)
    srd(e, 12, "s60", "s61", 2048 * 1280)
    srd(e, 64, "s62", "s63", 256)
    e("s_xor_b32 s56, s24, 12")
    e("s_or_b32 s56, s56, s2")
    e("s_cmp_lg_u32 s56, 0")
    e("s_cbranch_scc1 k1_nn")
    e("s_memrealtime s[56:57]")
    e("v_mov_b32 v5, 0")
    e("s_waitcnt lgkmcnt(0)")
    e("s_or_b32 s56, s56, 1")
    e("v_mov_b32 v7, s56")
    e("s_mov_b64 exec, 1")
    e("buffer_store_dword v7, v5, s[64:67], 0 offen sc0 sc1")
    e("s_mov_b64 exec, -1")
    e("k1_nn:")
    stamp_rt(e, 10)
    stamp(e, 0)
    e("""
    s_cmp_eq_u32 s26, 0
    s_cselect_b32 s31, 15, 14
    s_cselect_b32 s32, 8, 7
    s_cmp_ge_u32 s25, s31
    s_cbranch_scc1 k1_pf
    s_cmp_ge_u32 s21, s32
    s_cbranch_scc1 k1_pf
    s_cmp_eq_u32 s26, 0
    s_cselect_b32 s35, 0, 15
    s_add_u32 s35, s35, s25
    s_branch k1_gemm
    """)
    e("k1_pf:")
    e("""
    s_load_dwordx2 s[40:41], s[0:1], 48
    s_load_dwordx2 s[42:43], s[0:1], 16
    s_lshr_b32 s30, s20, 1
    s_sub_u32 s31, s20, 2
    s_cmp_lt_u32 s20, 4
    s_cselect_b32 s30, s30, s31
    s_lshl_b32 s30, s30, 2
    s_add_u32 s30, s30, s22
    s_lshl_b32 s30, s30, 4
    s_add_u32 s30, s30, s24
    v_lshlrev_b32 v2, 4, v0
    s_waitcnt lgkmcnt(0)
    """)
    srd(e, 16, "s40", "s41", 1728 * 1280)
    srd(e, 44, "s42", "s43", 640 * 1280)
    e("s_lshl_b32 s31, s30, 10")
    for i in range(6):
        e(f"buffer_load_dwordx4 v[{4+4*i}:{7+4*i}], v2, s[16:19], s31 offen")
        e("s_waitcnt vmcnt(0)")
        if i < 3:
            e(f"buffer_load_dwordx4 v[{28+4*i}:{31+4*i}], v2, s[44:47], s31 offen")
            e("s_waitcnt vmcnt(0)")
        e(f"s_add_u32 s31, s31, {384*1024}")
    e("s_waitcnt vmcnt(0)")
    e("s_branch k1_done")
    e("k1_gemm:")
    e("s_cmp_lt_u32 s24, 8")
    e("s_cbranch_scc1 k1_compute")
    vDAe, vDAo, vDB = 2, 3, 4
    T = 56
    e("""
    s_cmp_eq_u32 s26, 0
    s_cselect_b32 s32, s6, s8
    s_cselect_b32 s33, s7, s9
    """)
    csel(e, "s29", 3840, 3456)
    csel(e, "s34", 640*3840, 640*3456)
    e("""
    s_add_u32 s16, s32, s28
    s_addc_u32 s17, s33, 0
    s_and_b32 s17, s17, 0xffff
    s_sub_u32 s18, s34, s28
    s_mov_b32 s19, 0x00020000
    s_lshl_b32 s45, s29, 2
    s_and_b32 s30, s24, 3
    s_cmp_ge_u32 s24, 12
    s_cbranch_scc1 k1_sw
    """)
    e(f"v_lshrrev_b32 v{T}, 3, v0")
    e(f"v_mul_u32_u24 v{T}, 1280, v{T}")
    e(f"v_and_b32 v{T+1}, 7, v0")
    e(f"v_lshrrev_b32 v{T+2}, 4, v0")
    e(f"v_xor_b32 v{T+3}, v{T+1}, v{T+2}")
    e(f"v_lshl_add_u32 v{vDAe}, v{T+3}, 4, v{T}")
    e(f"v_xor_b32 v{T+3}, 4, v{T+3}")
    e(f"v_lshl_add_u32 v{vDAo}, v{T+3}, 4, v{T}")
    e(f"v_lshrrev_b32 v{T}, 4, v0")
    e(f"v_bfe_u32 v{T+1}, v0, 2, 2")
    e(f"v_xor_b32 v{T+1}, v{T+1}, v{T}")
    e(f"v_and_b32 v{T+2}, 3, v0")
    e(f"v_lshlrev_b32 v{T+2}, 4, v{T+2}")
    e(f"v_lshl_add_u32 v{T+2}, v{T+1}, 6, v{T+2}")
    e(f"v_mul_lo_u32 v{T+3}, v{T}, s29")
    e(f"v_add_u32 v{vDB}, v{T+3}, v{T+2}")
    e("s_lshl_b32 s40, s23, 8")
    e("s_lshl_b32 s31, s30, 6")
    e("s_add_u32 s40, s40, s31")
    e("s_mul_i32 s40, s40, 1280")
    e("s_lshl_b32 s41, s30, 4")
    e("s_mul_i32 s41, s41, s29")
    e("s_lshl_b32 s44, s29, 6")
    e("s_lshl_b32 s46, s30, 13")
    e("s_lshl_b32 s47, s30, 12")
    e(f"s_add_u32 s47, s47, {F_ASB}")
    e("s_mov_b32 s42, 0")

    def issue():
        e("s_mov_b32 s50, s40")
        e("s_mov_b32 s51, s41")
        e("s_add_u32 s52, s42, s46")
        e("s_add_u32 s53, s42, s47")
        for i in range(8):
            e(f"s_add_u32 m0, s52, {i*1024}")
            e(f"s_add_u32 s50, s50, {8*1280}" if i else "s_nop 0")
            e(f"buffer_load_dwordx4 v{vDAo if i & 1 else vDAe}, s[12:15], s50 offen lds")
        for i in range(4):
            e(f"s_add_u32 m0, s53, {i*1024}")
            e("s_add_u32 s51, s51, s45" if i else "s_nop 0")
            e(f"buffer_load_dwordx4 v{vDB}, s[16:19], s51 offen lds")
        e("s_add_u32 s40, s40, 128")
        e("s_add_u32 s41, s41, s44")
        e(f"s_add_u32 s42, s42, {F_SB}")
        e(f"s_cmp_eq_u32 s42, {F_SB*F_NBUF}")
        e("s_cselect_b32 s42, 0, s42")
    D = 12
    issue()
    issue()
    e(f"s_waitcnt vmcnt({D})")
    e("s_barrier")
    e(f"s_mov_b32 s49, {F_NST-2}")
    e("k1_hl:")
    issue()
    e(f"s_waitcnt vmcnt({D})")
    e("s_barrier")
    e("s_sub_u32 s49, s49, 1")
    e("s_cmp_lg_u32 s49, 0")
    e("s_cbranch_scc1 k1_hl")
    e("s_waitcnt vmcnt(0)")
    e("s_barrier")
    e("s_barrier")
    e("s_branch k1_sync")

    e("k1_sw:")
    A = 16
    C = 84
    aC = 40
    vO, aS, aQ, t1, m, v, den1, mb = 48, 49, 50, 51, 52, 53, 54, 55
    e("v_mov_b32 v5, 0")
    e(f"v_mov_b32 v6, {F_FLAG}")
    e("ds_write_b32 v6, v5")
    e("ds_write_b32 v6, v5 offset:4")
    e("s_waitcnt lgkmcnt(0)")
    e("s_barrier")
    e("s_mul_i32 s54, s23, 80")
    e("s_mul_i32 s56, s30, 20")
    e("s_add_u32 s54, s54, s56")
    e("s_mul_i32 s54, s54, s29")
    e(f"v_lshrrev_b32 v{vO}, 4, v0")
    e(f"v_mul_lo_u32 v{m}, v{vO}, s29")
    e(f"v_and_b32 v{t1}, 15, v0")
    e(f"v_lshl_add_u32 v{m}, v{t1}, 4, v{m}")
    for i in range(5):
        e(f"buffer_load_dwordx4 v[{C+4*i}:{C+4*i+3}], v{m}, s[16:19], s54 offen")
        e("s_add_u32 s54, s54, s45")
    e("s_mul_i32 s54, s35, 9")
    e("s_lshl_b32 s55, s30, 2")
    e("s_add_u32 s54, s54, s55")
    e("s_lshl_b32 s55, s23, 8")
    e("s_add_u32 s55, s55, s54")
    e("s_mul_i32 s56, s55, 1280")
    e(f"v_mul_u32_u24 v{vO}, 1280, v{vO}")
    e(f"v_lshl_add_u32 v{vO}, v{t1}, 4, v{vO}")
    for i in range(5):
        e(f"buffer_load_dwordx4 v[{A+4*i}:{A+4*i+3}], v{vO}, s[12:15], s56 offen offset:{i*256}")
    e("s_cmp_lg_u32 s30, 3")
    e("s_cbranch_scc1 k1_nb")
    srd(e, 56, "s10", "s11", 1728 * 2)
    e(f"v_lshlrev_b32 v{T+3}, 4, v0")
    e(f"s_mov_b32 m0, {F_BI}")
    e("s_mov_b64 exec, 0xffff")
    e(f"buffer_load_dwordx4 v{T+3}, s[56:59], s28 offen lds")
    e("s_mov_b64 exec, -1")
    e("k1_nb:")
    e("buffer_load_dword v7, v5, s[64:67], 0 offen sc0 sc1")
    e("s_barrier")
    stamp(e, 0)
    e("s_waitcnt vmcnt(0)")
    e("v_readfirstlane_b32 s48, v7")
    e("buffer_load_dword v7, v5, s[64:67], 0 offen sc0 sc1")
    e("s_mov_b32 s58, 0x00003f80")
    e("s_mov_b32 s59, 0x3f800000")
    for i in range(8):
        e(f"v_mov_b32 v{aC+i}, 0")
    for i in range(5):
        for j in range(4):
            e(f"v_dot2_f32_bf16 v{aC+2*j}, v{C+4*i+j}, s58, v{aC+2*j}")
            e(f"v_dot2_f32_bf16 v{aC+2*j+1}, v{C+4*i+j}, s59, v{aC+2*j+1}")
    e("s_barrier")
    e("s_nop 2")
    class_combine(e, aC, C)
    e("s_lshl_b32 s56, s30, 9")
    e(f"v_lshlrev_b32 v{t1}, 5, v{t1}")
    e(f"v_add_u32 v{t1}, s56, v{t1}")
    e(f"v_add_u32 v{t1}, {F_PT}, v{t1}")
    e(f"ds_write_b128 v{t1}, v[{aC}:{aC+3}]")
    e(f"ds_write_b128 v{t1}, v[{aC+4}:{aC+7}] offset:16")
    e("s_waitcnt lgkmcnt(0)")
    e("s_barrier")
    stamp(e, 1)
    e("s_mov_b32 s57, 0x3f803f80")
    e("s_cmp_eq_u32 s30, 3")
    e("s_cbranch_scc1 k1_s3a")
    row_sums(e, A, aS, aQ)
    e("k1_s3a:")
    e("s_barrier")
    e("s_waitcnt vmcnt(0)")
    e("v_readfirstlane_b32 s56, v7")
    e("s_nop 3")
    e("s_cmp_eq_u32 s48, 0")
    e("s_cselect_b32 s48, s56, s48")
    e("s_cmp_eq_u32 s30, 3")
    e("s_cbranch_scc1 k1_s3")
    ln_finalize(e, aS, aQ, A, t1, m, v, den1, mb)
    e(f"v_and_b32 v{m}, 15, v0")
    e(f"v_cmp_eq_u32 vcc, 1, v{m}")
    e(f"v_lshrrev_b32 v{t1}, 4, v0")
    e(f"v_add_u32 v{v}, s54, v{t1}")
    e(f"v_cndmask_b32 v{A}, v{A}, v{A+2}, vcc")
    e(f"v_cndmask_b32 v{A+1}, v{A+1}, v{A+3}, vcc")
    e(f"v_mov_b32 v{A+2}, s48")
    e(f"v_mov_b32 v{A+3}, s48")
    e(f"v_cmp_gt_u32 vcc, 256, v{v}")
    e("s_lshl_b32 s56, s30, 2")
    e(f"v_add_u32 v{v}, s56, v{t1}")
    e(f"v_cmp_gt_u32 s[58:59], 9, v{v}")
    e(f"v_lshlrev_b32 v{t1}, 5, v{t1}")
    e(f"v_lshl_add_u32 v{t1}, v{m}, 4, v{t1}")
    e("s_lshl_b32 s56, s55, 5")
    e(f"s_add_u32 s56, s56, {ST_OFF}")
    e("s_and_b64 s[58:59], s[58:59], vcc")
    e("s_and_b32 s58, s58, 0x00030003")
    e("s_and_b32 s59, s59, 0x00030003")
    e("s_mov_b64 exec, s[58:59]")
    e("s_cbranch_execz k1_lr0")
    e(f"buffer_store_dwordx4 v[{A}:{A+3}], v{t1}, s[36:39], s56 offen sc0 sc1")
    e("k1_lr0:")
    e("s_mov_b64 exec, -1")
    e("s_branch k1_lj")
    e("k1_s3:")
    e(f"v_lshlrev_b32 v{t1}, 3, v0")
    e(f"v_add_u32 v{vO}, {F_PT}, v{t1}")
    for j in range(4):
        e(f"ds_read_b64 v[{A+2*j}:{A+2*j+1}], v{vO} offset:{j*512}")
    e("s_lshl_b32 s56, s35, 3")
    e("s_add_u32 s56, s56, s23")
    e("s_lshl_b32 s56, s56, 10")
    e(f"s_add_u32 s56, s56, {CS_OFF}")
    e(f"v_lshlrev_b32 v{t1}, 4, v0")
    e("s_waitcnt lgkmcnt(0)")
    for j in range(1, 4):
        e(f"v_add_f32 v{A}, v{A}, v{A+2*j}")
        e(f"v_add_f32 v{A+1}, v{A+1}, v{A+2*j+1}")
    e(f"v_mov_b32 v{A+2}, s48")
    e(f"v_mov_b32 v{A+3}, s48")
    e(f"buffer_store_dwordx4 v[{A}:{A+3}], v{t1}, s[36:39], s56 offen sc0 sc1")
    e("k1_lj:")
    e("s_barrier")
    stamp(e, 2)
    e("s_barrier")
    e("s_barrier")
    fetch_issue(e)
    e("s_barrier")
    stamp(e, 3)
    e("s_waitcnt vmcnt(0)")
    fetch_check(e)
    if os.environ.get("FORCEFB") or os.environ.get("FORCESLOW"):
        e("s_cmp_eq_u32 s50, 12345")
    e("s_cbranch_scc1 k1_rdy1")
    fetch_issue(e)
    e("s_barrier")
    e("s_waitcnt vmcnt(0)")
    fetch_check(e)
    if os.environ.get("FORCEFB") or os.environ.get("FORCESLOW"):
        e("s_cmp_eq_u32 s50, 12345")
    e("s_cbranch_scc1 k1_rdy2")
    e("v_mov_b32 v5, 1")
    e("ds_write_b32 v6, v5")
    e("s_waitcnt lgkmcnt(0)")
    e("s_branch k1_t9")
    e("k1_rdy1:")
    fetch_commit(e)
    e("s_barrier")
    e("s_branch k1_t9")
    e("k1_rdy2:")
    fetch_commit(e)
    e("k1_t9:")
    e("s_barrier")
    e("s_branch k1_sync")

    e("k1_compute:")
    ACC = 8
    FR_ = [([72, 76], [80, 84]), ([88, 92], [96, 100])]
    vA0 = [104, 105, 106, 107]
    vB0 = [108, 109]
    vA = [110, 111, 112, 113]
    vB = [114, 115]
    vL = 116
    T = 72
    T0 = 117
    sRd, sCnt, sWM, sWN, sRole = 40, 41, 42, 43, 44
    ROLE = {'mlp': 1, 'qk': 2, 'v': 3}
    sT = 46

    def accr(tm, tn):
        return ACC + (tm * 2 + tn) * 16
    e(f"s_lshr_b32 s{sWM}, s24, 1")
    e(f"s_and_b32 s{sWN}, s24, 1")
    e(f"v_lshlrev_b32 v{vL}, 4, v0")
    e(f"v_lshrrev_b32 v{T}, 5, v0")
    e(f"v_and_b32 v{T+1}, 31, v0")
    e(f"v_bfe_u32 v{T+2}, v0, 1, 3")
    e(f"s_lshl_b32 s{sT}, s{sWM}, 13")
    e(f"v_lshlrev_b32 v{T+3}, 7, v{T+1}")
    e(f"v_add_u32 v{T+3}, s{sT}, v{T+3}")
    for kg in range(4):
        e(f"v_add_u32 v{T+4}, {2*kg}, v{T}")
        e(f"v_xor_b32 v{T+4}, v{T+4}, v{T+2}")
        e(f"v_lshl_add_u32 v{vA0[kg]}, v{T+4}, 4, v{T+3}")
    e(f"v_bfe_u32 v{T+1}, v0, 2, 2")
    e(f"v_mad_u32_u24 v{T+2}, v{T}, 8, v{T+1}")
    e(f"v_lshlrev_b32 v{T+2}, 8, v{T+2}")
    e(f"v_bfe_u32 v{T+3}, v0, 4, 1")
    e(f"v_lshl_add_u32 v{T+2}, v{T+3}, 5, v{T+2}")
    e(f"v_and_b32 v{T+3}, 3, v0")
    e(f"v_lshl_add_u32 v{T+2}, v{T+3}, 3, v{T+2}")
    e(f"v_add_u32 v{T+2}, {F_ASB}, v{T+2}")
    for j in range(2):
        e(f"s_lshl_b32 s{sT}, s{sWN}, 1")
        e(f"s_add_u32 s{sT}, s{sT}, {j}")
        e(f"v_xor_b32 v{T+3}, s{sT}, v{T+1}")
        e(f"v_lshl_add_u32 v{vB0[j]}, v{T+3}, 6, v{T+2}")
    for i in range(64):
        e(f"v_mov_b32 v{ACC+i}, 0")
    e(f"s_mov_b32 s{sRd}, 0")

    def set_bases():
        for kg in range(4):
            e(f"v_add_u32 v{vA[kg]}, s{sRd}, v{vA0[kg]}")
        for j in range(2):
            e(f"v_add_u32 v{vB[j]}, s{sRd}, v{vB0[j]}")

    def reads(p, kg):
        a, b = FR_[p]
        ra = [f"ds_read_b128 v[{a[j]}:{a[j]+3}], v{vA[kg]} offset:{j*4096}" for j in range(2)]
        rb = []
        for j in range(2):
            for t in range(2):
                rb.append(f"ds_read_b64_tr_b16 v[{b[j]+2*t}:{b[j]+2*t+1}], v{vB[j]} offset:{(kg*16 + t*4)*256}")
        return ra[:1] + rb + ra[1:]

    def mfmas(p, orient):
        a, b = FR_[p]
        out = []
        for tm in range(2):
            for tn in range(2):
                d = accr(tm, tn)
                s0, s1 = (b[tn], a[tm]) if orient == 'n' else (a[tm], b[tn])
                out.append(f"v_mfma_f32_32x32x16_bf16 v[{d}:{d+15}], v[{s0}:{s0+3}], v[{s1}:{s1+3}], v[{d}:{d+15}]")
        return out

    def main(orient, tag):
        L = f"k1_{tag}_loop"
        set_bases()
        e(f"s_mov_b32 s{sCnt}, {F_NST}")
        stamp(e, 1)
        e("s_barrier")
        stamp(e, 2)
        for r in reads(0, 0):
            e(r)
        e(f"{L}:")
        for kg in range(4):
            p = kg & 1
            mf = mfmas(p, orient)
            if kg < 3:
                rd = reads(p ^ 1, kg + 1)
                e("s_waitcnt lgkmcnt(3)")
                e(mf[0])
                for r in rd[:3]:
                    e(r)
                e("s_waitcnt lgkmcnt(4)")
                e(mf[1])
                for r in rd[3:]:
                    e(r)
                e("s_waitcnt lgkmcnt(6)")
                e(mf[2])
                e(mf[3])
            else:
                e(f"s_add_u32 s{sRd}, s{sRd}, {F_SB}")
                e(f"s_cmp_eq_u32 s{sRd}, {F_SB*F_NBUF}")
                e(f"s_cselect_b32 s{sRd}, 0, s{sRd}")
                e("s_waitcnt lgkmcnt(0)")
                e("s_barrier")
                e(mf[0])
                set_bases()
                rd = reads(p ^ 1, 0)
                for r in rd[:3]:
                    e(r)
                e(mf[1])
                for r in rd[3:]:
                    e(r)
                e(mf[2])
                e(mf[3])
        e(f"s_sub_u32 s{sCnt}, s{sCnt}, 1")
        e(f"s_cmp_lg_u32 s{sCnt}, 0")
        e(f"s_cbranch_scc1 {L}")
        e("s_waitcnt lgkmcnt(0)")
        stamp(e, 3)
        e(f"s_mov_b32 s{sRole}, {ROLE[tag]}")
        e("s_nop 15")
        e("s_branch k1_sync")
        e(f"k1_ret_{tag}:")

    MU, CSr, AD = 104, 72, 108

    def ln_fix_n(scale_sgpr):
        e(f"v_and_b32 v{AD}, 31, v0")
        e(f"s_lshl_b32 s{sT}, s{sWM}, 8")
        e(f"v_lshlrev_b32 v{AD}, 2, v{AD}")
        e(f"v_add_u32 v{AD}, s{sT}, v{AD}")
        e(f"v_add_u32 v{AD}, {F_MU}, v{AD}")
        e(f"ds_read_b32 v{MU}, v{AD}")
        e(f"ds_read_b32 v{MU+1}, v{AD} offset:128")
        e(f"ds_read_b32 v{MU+2}, v{AD} offset:1024")
        e(f"ds_read_b32 v{MU+3}, v{AD} offset:1152")
        e(f"v_lshrrev_b32 v{AD+1}, 5, v0")
        e(f"v_lshlrev_b32 v{AD+1}, 4, v{AD+1}")
        e(f"s_lshl_b32 s{sT}, s{sWN}, 8")
        e(f"v_add_u32 v{AD+1}, s{sT}, v{AD+1}")
        e(f"v_add_u32 v{AD+1}, {F_CS}, v{AD+1}")
        for tn in range(2):
            for gg in range(4):
                e(f"ds_read_b128 v[{CSr+16*tn+4*gg}:{CSr+16*tn+4*gg+3}], v{AD+1} offset:{(tn*32+gg*8)*4}")
        for tn in range(2):
            e(f"s_waitcnt lgkmcnt({4 if tn == 0 else 0})")
            if tn == 0 and scale_sgpr:
                e(f"v_mul_f32 v{MU+2}, {scale_sgpr}, v{MU+2}")
                e(f"v_mul_f32 v{MU+3}, {scale_sgpr}, v{MU+3}")
            for tm in range(2):
                a = accr(tm, tn)
                for i in range(16):
                    e(f"v_fma_f32 v{a+i}, -v{MU+tm}, v{CSr+16*tn+i}, v{a+i}")

    e("s_cmp_eq_u32 s26, 0")
    e("s_cbranch_scc1 k1_qkv")
    main('n', 'mlp')
    e(f"s_lshl_b32 s{sT}, s{sWN}, 6")
    e(f"s_lshr_b32 s{sT+1}, s28, 1")
    e(f"s_add_u32 s{sT+6}, s{sT}, s{sT+1}")
    e(f"s_cmp_ge_u32 s{sT+6}, 1728")
    e("s_cbranch_scc1 k1_end")
    ln_fix_n(None)
    BI = 88
    e(f"v_lshrrev_b32 v{AD}, 5, v0")
    e(f"v_lshlrev_b32 v{AD}, 3, v{AD}")
    e(f"s_lshl_b32 s{sT}, s{sWN}, 7")
    e(f"v_add_u32 v{AD}, s{sT}, v{AD}")
    e(f"v_add_u32 v{AD}, {F_BI}, v{AD}")
    for tn in range(2):
        for gg in range(4):
            r = BI + (tn * 4 + gg) * 2
            e(f"ds_read_b64 v[{r}:{r+1}], v{AD} offset:{(tn*32+gg*8)*2}")
    e("s_waitcnt lgkmcnt(0)")
    for tn in range(2):
        for gg in range(4):
            r = BI + (tn * 4 + gg) * 2
            e(f"v_lshlrev_b32 v{T}, 16, v{r}")
            e(f"v_and_b32 v{T+1}, 0xffff0000, v{r}")
            e(f"v_lshlrev_b32 v{T+2}, 16, v{r+1}")
            e(f"v_and_b32 v{T+3}, 0xffff0000, v{r+1}")
            for tm in range(2):
                a = accr(tm, tn) + gg * 4
                for i in range(4):
                    e(f"v_fma_f32 v{a+i}, v{a+i}, v{MU+2+tm}, v{T+i}")
    e(f"s_lshl_b32 s{sT+1}, s23, 3")
    e(f"s_lshl_b32 s{sT+7}, s{sWM}, 1")
    e(f"s_add_u32 s{sT+1}, s{sT+1}, s{sT+7}")
    e(f"s_lshr_b32 s{sT}, s{sT+6}, 4")
    e(f"s_lshl_b32 s{sT}, s{sT}, 6")
    e(f"s_add_u32 s{sT}, s{sT}, s{sT+1}")
    e(f"s_lshl_b32 s{sT}, s{sT}, 10")
    e(f"s_add_u32 s{sT}, s{sT}, {H_OFF}")
    for i in range(1, 4):
        e(f"s_add_u32 s{sT+i}, s{sT}, {65536*i}")
    c0 = -2.0 * math.sqrt(2.0 / math.pi) * 1.4426950408889634
    c1 = c0 * 0.044715
    tmpv = 110
    e(f"v_mov_b32 v{tmpv}, 0x{f32bits(c0):08x}")
    e(f"v_mov_b32 v{tmpv+1}, 0x{f32bits(c1):08x}")
    for tm in range(2):
        for tn in range(2):
            a = accr(tm, tn)
            for half in range(2):
                t = 72 + 8 * ((tm * 4 + tn * 2 + half) & 1)
                pk = 88 + 4 * ((tm * 4 + tn * 2 + half) & 1)
                r0 = a + half * 8
                for i in range(8):
                    e(f"v_mul_f32 v{t+i}, v{r0+i}, v{r0+i}")
                for i in range(8):
                    e(f"v_fma_f32 v{t+i}, v{t+i}, v{tmpv+1}, v{tmpv}")
                for i in range(8):
                    e(f"v_mul_f32 v{t+i}, v{t+i}, v{r0+i}")
                for i in range(8):
                    e(f"v_exp_f32 v{t+i}, v{t+i}")
                for i in range(8):
                    e(f"v_add_f32 v{t+i}, 1.0, v{t+i}")
                for i in range(8):
                    e(f"v_rcp_f32 v{t+i}, v{t+i}")
                for i in range(8):
                    e(f"v_mul_f32 v{t+i}, v{t+i}, v{r0+i}")
                for i in range(4):
                    e(f"v_cvt_pk_bf16_f32 v{pk+i}, v{t+2*i}, v{t+2*i+1}")
                so = sT + tn * 2 + half
                e(f"buffer_store_dwordx4 v[{pk}:{pk+3}], v{vL}, s[36:39], s{so} offen offset:{tm*1024}")
    e("s_branch k1_end")
    e("k1_qkv:")
    e("s_cmp_ge_u32 s25, 10")
    e("s_cbranch_scc1 k1_v")
    main('n', 'qk')
    qs = (20 ** -0.5) * 1.4426950408889634
    e("s_cmp_lt_u32 s25, 5")
    e(f"s_cselect_b32 s{sT+5}, 0x{f32bits(qs):08x}, 1.0")
    ln_fix_n(f"s{sT+5}")
    e("s_cmp_lt_u32 s25, 5")
    csel(e, f"s{sT+1}", 1280, 2560)
    csel(e, f"s{sT+6}", QF_OFF, KV_OFF)
    e(f"s_cselect_b32 s{sT+7}, 0, 5")
    e(f"s_sub_u32 s{sT+7}, s25, s{sT+7}")
    e(f"s_lshl_b32 s{sT+7}, s{sT+7}, 5")
    e(f"s_lshl_b32 s{sT+2}, s{sWN}, 4")
    e(f"s_add_u32 s{sT+7}, s{sT+7}, s{sT+2}")
    e(f"s_lshl_b32 s{sT+2}, s23, 3")
    e(f"s_lshl_b32 s{sT+3}, s{sWM}, 1")
    e(f"s_add_u32 s{sT+2}, s{sT+2}, s{sT+3}")
    e(f"s_mul_i32 s{sT+2}, s{sT+2}, s{sT+1}")
    e(f"s_add_u32 s{sT+2}, s{sT+2}, s{sT+6}")
    e(f"s_add_u32 s{sT+3}, s{sT+2}, s{sT+1}")
    e(f"s_lshl_b32 s{sT+4}, s{sT+1}, 6")
    t = T
    e(f"v_lshrrev_b32 v{t}, 5, v0")
    e(f"v_add_u32 v{t}, s{sT+7}, v{t}")
    e(f"v_and_b32 v{t+1}, 31, v0")
    e(f"v_lshlrev_b32 v{t+2}, 4, v{t+1}")
    e(f"v_lshlrev_b32 v{t+3}, 3, v{t+1}")
    for tn in range(2):
        for gg in range(4):
            c, hd, j, ad = t + 4, t + 5, t + 6, t + 7
            e(f"v_add_u32 v{c}, {8*tn+2*gg}, v{t}")
            e(f"v_mul_u32_u24 v{hd}, 205, v{c}")
            e(f"v_lshrrev_b32 v{hd}, 10, v{hd}")
            e(f"v_mul_u32_u24 v{j}, 5, v{hd}")
            e(f"v_sub_u32 v{j}, v{c}, v{j}")
            e(f"v_cmp_eq_u32 vcc, 4, v{j}")
            e(f"v_mul_lo_u32 v{ad}, v{hd}, s{sT+4}")
            e(f"v_lshrrev_b32 v{c}, 1, v{j}")
            e(f"v_lshl_add_u32 v{ad}, v{c}, 9, v{ad}")
            e(f"v_and_b32 v{c}, 1, v{j}")
            e(f"v_lshl_add_u32 v{ad}, v{c}, 3, v{ad}")
            e(f"v_cndmask_b32 v{c}, v{t+2}, v{t+3}, vcc")
            e(f"v_add_u32 v{ad}, v{ad}, v{c}")
            for tm in range(2):
                a = accr(tm, tn) + gg * 4
                pk = t + 8 + 2 * tm
                for i in range(4):
                    e(f"v_mul_f32 v{a+i}, v{a+i}, v{MU+2+tm}")
                e(f"v_cvt_pk_bf16_f32 v{pk}, v{a}, v{a+1}")
                e(f"v_cvt_pk_bf16_f32 v{pk+1}, v{a+2}, v{a+3}")
                e(f"buffer_store_dwordx2 v[{pk}:{pk+1}], v{ad}, s[36:39], s{sT+2+tm} offen")
    e("s_branch k1_end")
    e("k1_v:")
    main('t', 'v')
    e("s_waitcnt vmcnt(0)")
    e(f"v_and_b32 v{AD}, 31, v0")
    e(f"v_lshlrev_b32 v{AD}, 2, v{AD}")
    e(f"s_lshl_b32 s{sT}, s{sWN}, 8")
    e(f"v_add_u32 v{AD}, s{sT}, v{AD}")
    e(f"v_add_u32 v{AD}, {F_CS}, v{AD}")
    e(f"ds_read_b32 v104, v{AD}")
    e(f"ds_read_b32 v105, v{AD} offset:128")
    e(f"v_lshrrev_b32 v{AD+1}, 5, v0")
    e(f"v_lshlrev_b32 v{AD+1}, 4, v{AD+1}")
    e(f"s_lshl_b32 s{sT}, s{sWM}, 8")
    e(f"v_add_u32 v{AD+1}, s{sT}, v{AD+1}")
    e(f"v_add_u32 v{AD+1}, {F_MU}, v{AD+1}")
    for tm in range(2):
        MUr, RSr = 72, 88
        for gg in range(4):
            e(f"ds_read_b128 v[{MUr+4*gg}:{MUr+4*gg+3}], v{AD+1} offset:{(tm*32+gg*8)*4}")
            e(f"ds_read_b128 v[{RSr+4*gg}:{RSr+4*gg+3}], v{AD+1} offset:{1024+(tm*32+gg*8)*4}")
        e("s_waitcnt lgkmcnt(0)")
        for tn in range(2):
            a = accr(tm, tn)
            for i in range(16):
                e(f"v_fma_f32 v{a+i}, -v{MUr+i}, v{104+tn}, v{a+i}")
            for i in range(16):
                e(f"v_mul_f32 v{a+i}, v{a+i}, v{RSr+i}")
    e(f"s_sub_u32 s{sT}, s25, 10")
    e(f"s_lshl_b32 s{sT}, s{sT}, 7")
    e(f"s_lshl_b32 s{sT+1}, s{sWN}, 6")
    e(f"s_add_u32 s{sT}, s{sT}, s{sT+1}")
    e(f"s_lshl_b32 s{sT+2}, s23, 3")
    e(f"s_lshl_b32 s{sT+3}, s{sWM}, 1")
    e(f"s_add_u32 s{sT+2}, s{sT+2}, s{sT+3}")
    e(f"s_mul_i32 s{sT+2}, s{sT+2}, 2560")
    e(f"s_add_u32 s{sT+2}, s{sT+2}, {KV_OFF + 1280}")
    e(f"s_mov_b32 s{sT+4}, {64*2560}")
    t = T
    e(f"v_and_b32 v{t}, 31, v0")
    e(f"v_add_u32 v{t}, s{sT}, v{t}")
    e(f"v_lshrrev_b32 v{t+1}, 5, v0")
    e(f"v_mul_u32_u24 v{t+1}, 320, v{t+1}")
    for tn in range(2):
        c, hd, d, ad = t + 4, t + 5, t + 6, t + 7
        e(f"v_add_u32 v{c}, {32*tn}, v{t}")
        e(f"v_mul_u32_u24 v{hd}, 3277, v{c}")
        e(f"v_lshrrev_b32 v{hd}, 16, v{hd}")
        e(f"v_mul_u32_u24 v{d}, 20, v{hd}")
        e(f"v_sub_u32 v{d}, v{c}, v{d}")
        e(f"v_mul_lo_u32 v{ad}, v{hd}, s{sT+4}")
        e(f"v_lshl_add_u32 v{ad}, v{d}, 4, v{ad}")
        e(f"v_add_u32 v{ad}, v{ad}, v{t+1}")
        for tm in range(2):
            a = accr(tm, tn)
            for half in range(2):
                pk = t + 8 + 4 * ((tm * 2 + half) & 1)
                for i in range(4):
                    e(f"v_cvt_pk_bf16_f32 v{pk+i}, v{a+half*8+2*i}, v{a+half*8+2*i+1}")
                e(f"buffer_store_dwordx4 v[{pk}:{pk+3}], v{ad}, s[36:39], s{sT+2} offen offset:{tm*2560+half*640}")
    e("s_branch k1_end")
    e("k1_sync:")
    e(f"v_mov_b32 v117, {F_FLAG}")
    e("ds_read_b32 v118, v117")
    e("s_waitcnt lgkmcnt(0)")
    e("v_readfirstlane_b32 s54, v118")
    e("s_nop 3")
    e("s_cmp_eq_u32 s54, 0")
    e("s_cbranch_scc1 k1_go")
    e("s_cmp_lt_u32 s24, 12")
    e("s_cbranch_scc1 k1_np")
    e(f"s_mov_b32 s49, {SPIN_MAX}")
    e("k1_poll:")
    fetch_issue(e)
    e("s_waitcnt vmcnt(0)")
    e("s_sub_u32 s49, s49, 1")
    fetch_check(e)
    if os.environ.get("FORCEFB"):
        e("s_cmp_eq_u32 s50, 12345")
    e("s_cbranch_scc1 k1_got")
    e("s_sleep 8")
    e("s_cmp_lg_u32 s49, 0")
    e("s_cbranch_scc1 k1_poll")
    e("v_mov_b32 v73, 1")
    e("ds_write_b32 v117, v73 offset:4")
    e("s_waitcnt lgkmcnt(0)")
    e("s_branch k1_np")
    e("k1_got:")
    fetch_commit(e)
    e("k1_np:")
    e("s_barrier")
    e("ds_read_b32 v118, v117 offset:4")
    e("s_waitcnt lgkmcnt(0)")
    e("v_readfirstlane_b32 s54, v118")
    e("s_nop 3")
    e("s_cmp_eq_u32 s54, 0")
    e("s_cbranch_scc1 k1_go")
    row_stats_fb(e, "s23", "s24", 72)
    col_stats_fb(e, "s24", 72)
    e("s_barrier")
    e("k1_go:")
    e("s_cmp_ge_u32 s24, 8")
    e("s_cbranch_scc1 k1_end")
    e(f"v_lshlrev_b32 v{vL}, 4, v0")
    e(f"s_cmp_eq_u32 s{sRole}, 1")
    e("s_cbranch_scc1 k1_ret_mlp")
    e(f"s_cmp_eq_u32 s{sRole}, 2")
    e("s_cbranch_scc1 k1_ret_qk")
    e("s_branch k1_ret_v")
    e("k1_end:")
    stamp(e, 4)
    e("s_waitcnt vmcnt(0)")
    stamp(e, 5)
    stamp_rt(e, 11)
    stamp_store(e, 1, "s24", 36)
    e("k1_done:")
    e("s_endpgm")
    return kd("gemm1_kernel", 120, 96), F_LDS


AT_STAGE = 8 * 2560
K2_KGS = 2
K2_NBUF = 5


def gen_k2(e):
    kernel_head(e, "attn_kernel")
    e("""
    s_cmp_ge_u32 s2, 416
    s_cbranch_scc1 k2_done
    s_load_dwordx2 s[4:5], s[0:1], 80
    s_load_dwordx2 s[6:7], s[0:1], 48
    s_load_dwordx2 s[8:9], s[0:1], 56
    v_lshrrev_b32 v1, 6, v0
    v_and_b32 v0, 63, v0
    s_and_b32 s20, s2, 7
    v_readfirstlane_b32 s24, v1
    s_cmp_ge_u32 s2, 256
    s_cbranch_scc1 k2_mlp
    """)
    Q1, Q2 = 4, 8
    KF = [(12, 16), (20, 24)]
    VF = [(28, 32), (36, 40)]
    SS = [44, 60]
    PP = [76, 84]
    O = 92
    vK, vKh, vV, vKn, vKhn = 108, 109, 110, 111, 112
    vK0, vKh0, vV0 = 113, 114, 115
    vInc, vIncW, vMask, vD2 = 116, 117, 118, 119
    T = 120
    CA = 3 * AT_STAGE
    e("""
    s_lshr_b32 s21, s2, 3
    s_lshr_b32 s22, s21, 3
    s_lshl_b32 s23, s20, 2
    s_add_u32 s22, s22, s23
    s_and_b32 s23, s21, 7
    """)
    e("s_waitcnt lgkmcnt(0)")
    srd(e, 36, "s4", "s5", WS_BYTES)
    stamp_rt(e, 10)
    stamp(e, 0)
    e(f"s_mul_i32 s25, s22, {64*2560}")
    e(f"s_add_u32 s25, s25, {KV_OFF}")
    e("s_add_u32 s12, s4, s25")
    e("s_addc_u32 s13, s5, 0")
    e("s_and_b32 s13, s13, 0xffff")
    e(f"s_mov_b32 s14, {64*2560}")
    e("s_mov_b32 s15, 0x00020000")
    e(f"v_lshlrev_b32 v{vK0}, 4, v0")
    e("s_cmp_lt_u32 s24, 4")
    e("s_mul_i32 s26, s24, 3072")
    e("s_lshl_b32 s27, s24, 11")
    e("s_add_u32 s27, s27, 4096")
    e("s_cmp_lt_u32 s24, 4")
    e("s_cselect_b32 s26, s26, s27")
    e("s_mov_b32 s30, s26")
    e("s_mov_b32 s31, s26")

    def dma(tag):
        e("s_mov_b32 m0, s31")
        e("s_cmp_lt_u32 s24, 4")
        e(f"buffer_load_dwordx4 v{vK0}, s[12:15], s30 offen lds")
        e(f"buffer_load_dwordx4 v{vK0}, s[12:15], s30 offen offset:1024 lds")
        e(f"s_cbranch_scc0 k2_dm{tag}")
        e(f"buffer_load_dwordx4 v{vK0}, s[12:15], s30 offen offset:2048 lds")
        e(f"k2_dm{tag}:")
        e(f"s_add_u32 s31, s31, {AT_STAGE}")
        e(f"s_add_u32 s30, s30, {AT_STAGE}")
        e(f"s_cmp_ge_u32 s31, {3*AT_STAGE}")
        e("s_cselect_b32 s31, s26, s31")
    e(f"v_and_b32 v{T}, 31, v0")
    e(f"v_lshlrev_b32 v{vKh0}, 3, v{T}")
    e(f"v_add_u32 v{vKh0}, 1024, v{vKh0}")
    e("s_lshl_b32 s32, s23, 3")
    e("s_add_u32 s32, s32, s24")
    e("s_lshl_b32 s33, s22, 6")
    e("s_add_u32 s33, s33, s32")
    e("s_mul_i32 s33, s33, 1280")
    e(f"s_add_u32 s33, s33, {QF_OFF}")
    for i in range(4):
        e(f"v_mov_b32 v{Q2+i}, 0")
    dma("p0")
    e(f"buffer_load_dwordx4 v[{Q1}:{Q1+3}], v{vK0}, s[36:39], s33 offen")
    e("s_mov_b32 exec_hi, 0")
    e(f"buffer_load_dwordx2 v[{Q2}:{Q2+1}], v{vKh0}, s[36:39], s33 offen")
    e("s_mov_b64 exec, -1")
    e(f"v_lshrrev_b32 v{T+1}, 5, v0")
    e(f"v_mad_u32_u24 v{vV0}, v{T+1}, 20, v{T}")
    e(f"v_lshlrev_b32 v{vV0}, 4, v{vV0}")
    e(f"v_add_u32 v{vV0}, 1280, v{vV0}")
    e("s_mov_b32 s28, 0x000fffff")
    e("s_mov_b32 s29, 0x000fffff")
    X = SS[0]
    e(f"v_and_b32 v{T+2}, 1, v0")
    e(f"v_cmp_eq_u32 vcc, 0, v{T+2}")
    e(f"v_mov_b32 v{T+3}, 0x3f803f80")
    e(f"v_bfe_u32 v{T+4}, v0, 1, 1")
    e(f"v_mul_u32_u24 v{T+4}, 640, v{T+4}")
    e(f"v_lshl_add_u32 v{T+4}, v{T+2}, 4, v{T+4}")
    for i in range(4):
        e(f"v_cndmask_b32 v{X+i}, 0, v{T+3}, vcc")
    e(f"ds_write_b128 v{T+4}, v[{X}:{X+3}] offset:{CA}")
    e(f"v_cmp_gt_u32 vcc, 20, v{T}")
    e(f"v_cmp_eq_u32 s[40:41], 20, v{T}")
    e(f"v_mov_b32 v{T+5}, {CA+16}")
    e(f"v_mov_b32 v{T+6}, {CA}")
    e(f"v_cndmask_b32 v{T+5}, v{T+5}, v{T+6}, s[40:41]")
    e(f"v_cndmask_b32 v{vV}, v{T+5}, v{vV0}, vcc")
    e(f"v_cndmask_b32 v{vMask}, 0, 1, vcc")
    e(f"v_mul_u32_u24 v{vInc}, 2560, v{vMask}")
    for lo, hi in KF:
        for i in range(4):
            e(f"v_mov_b32 v{hi+i}, 0")
    for a, b in VF:
        for r in (a, b):
            for i in range(4):
                e(f"v_mov_b32 v{r+i}, 0")
    for i in range(8):
        e(f"v_mov_b32 v{PP[1]+i}, 0")
    for i in range(16):
        e(f"v_mov_b32 v{O+i}, 0")
    e(f"v_mov_b32 v{vKn}, v{vK0}")
    e(f"v_mov_b32 v{vKhn}, v{vKh0}")
    e(f"s_mov_b32 s34, {AT_STAGE}")
    e("s_mov_b32 s35, 8")

    def rdK(t, p):
        lo, hi = KF[p]
        a, b = (vK, vKh) if t < 8 else (vKn, vKhn)
        o = (t % 8) * 2560
        return [f"ds_read_b128 v[{lo}:{lo+3}], v{a} offset:{o}",
                f"ds_read_b64 v[{hi}:{hi+1}], v{b} offset:{o}"]

    def rdV(p):
        v0_, v1_ = VF[p]
        return [f"ds_read_b128 v[{v0_}:{v0_+3}], v{vV}",
                f"ds_read_b128 v[{v1_}:{v1_+3}], v{vV} offset:640"]

    def mS(S, p):
        lo, hi = KF[p]
        return [f"v_mfma_f32_32x32x16_bf16 v[{S}:{S+15}], v[{lo}:{lo+3}], v[{Q1}:{Q1+3}], 0",
                f"v_mfma_f32_32x32x16_bf16 v[{S}:{S+15}], v[{hi}:{hi+3}], v[{Q2}:{Q2+3}], v[{S}:{S+15}]"]

    def mPV(p, P):
        v0_, v1_ = VF[p]
        return [f"v_mfma_f32_32x32x16_bf16 v[{O}:{O+15}], v[{v0_}:{v0_+3}], v[{P}:{P+3}], v[{O}:{O+15}]",
                f"v_mfma_f32_32x32x16_bf16 v[{O}:{O+15}], v[{v1_}:{v1_+3}], v[{P+4}:{P+7}], v[{O}:{O+15}]"]

    stamp(e, 1)
    e("s_waitcnt vmcnt(0) lgkmcnt(0)")
    e("s_barrier")
    stamp(e, 2)
    dma("p1")
    for r in rdK(8, 0) + rdK(9, 1):
        e(r)
    e("s_waitcnt lgkmcnt(0)")
    for m in mS(SS[0], 0):
        e(m)
    e("s_nop 7")
    e("k2_stage:")
    e("s_waitcnt vmcnt(0)")
    e("s_barrier")
    dma("l")
    e(f"v_mov_b32 v{vK}, v{vKn}")
    e(f"v_mov_b32 v{vKh}, v{vKhn}")
    e(f"v_add_u32 v{vKn}, s34, v{vK0}")
    e(f"v_add_u32 v{vKhn}, s34, v{vKh0}")
    e("s_cmp_eq_u32 s34, 0")
    csel(e, "s27", 2560 - 3 * AT_STAGE, 2560)
    e(f"v_mul_lo_u32 v{vIncW}, v{vMask}, s27")
    e(f"s_add_u32 s34, s34, {AT_STAGE}")
    e(f"s_cmp_eq_u32 s34, {3*AT_STAGE}")
    e("s_cselect_b32 s34, 0, s34")

    def phase(S, P, mf, extra):
        ex = list(extra)
        for q in range(4):
            e(mf[q])
            for i in range(4):
                e(f"v_exp_f32 v{S+4*q+i}, v{S+4*q+i}")
                if ex and i in (0, 2):
                    x = ex.pop(0)
                    if x:
                        e(x)
            e(f"v_cvt_pk_bf16_f32 v{P+2*q}, v{S+4*q}, v{S+4*q+1}")
            e(f"v_cvt_pk_bf16_f32 v{P+2*q+1}, v{S+4*q+2}, v{S+4*q+3}")
        assert not ex

    for t in range(8):
        p = t & 1
        inc = vIncW if t == 7 else vInc
        X_ = os.environ.get("ATX", "")
        ex = rdV(p) + rdK(t + 2, p) + [f"v_add_u32 v{vV}, v{vV}, v{inc}", None, None, "s_waitcnt lgkmcnt(0)"]
        if "nolds" in X_:
            ex = []
        if "nowait" in X_:
            ex = ex[:-1]
        if "nopsonly" in X_:
            ex = ["s_nop 0"] * 4 + ex[4:]
        if "onlyk" in X_:
            ex = ["s_nop 0"] * 2 + ex[2:]
        if "onlyv" in X_:
            ex = ex[:2] + ["s_nop 0"] * 2 + ex[4:]
        if "late" in X_:
            pass
        PR = os.environ.get("PRIO", "none")
        if PR != "none" and (t == 0 or PR[t] != PR[t-1]):
            e(f"s_setprio {PR[t]}")
        mf = mS(SS[p ^ 1], p ^ 1) + mPV(p ^ 1, PP[p ^ 1])
        if "nopv" in X_:
            mf = mf[:2] + ["s_nop 0", "s_nop 0"]
        if "nos" in X_:
            mf = ["s_nop 0", "s_nop 0"] + mf[2:]
        if "pvq" in X_:
            mf = mf[:2] + [f"v_mfma_f32_32x32x16_bf16 v[{O}:{O+15}], v[{VF[0][0]}:{VF[0][0]+3}], v[{Q1}:{Q1+3}], v[{O}:{O+15}]"] * 2
        if "sacc" in X_:
            mf = [f"v_mfma_f32_32x32x16_bf16 v[{O}:{O+15}], v[{KF[0][0]}:{KF[0][0]+3}], v[{Q1}:{Q1+3}], v[{O}:{O+15}]"] * 2 + mf[2:]
        phase(SS[p], PP[p], mf, ex)
    e("s_sub_u32 s35, s35, 1")
    e("s_cmp_lg_u32 s35, 0")
    e("s_cbranch_scc1 k2_stage")
    for m in mPV(1, PP[1]):
        e(m)
    e("s_waitcnt lgkmcnt(0) vmcnt(0)")
    e("s_nop 15")
    stamp(e, 3)
    L = T
    lo_lim = f32bits(2.0 ** -80)
    hi_lim = f32bits(2.0 ** 100)

    def bcast_l(dst, tmp):
        e(f"v_mov_b32 v{tmp}, v{O+8}")
        e(f"v_mov_b32 v{dst}, v{O+8}")
        e("s_nop 1")
        e(f"v_permlane32_swap_b32 v{tmp}, v{dst}")

    e(f"v_mov_b32 v{T+4}, 0")
    bcast_l(L, T + 2)
    for i in range(12):
        e(f"v_fma_f32 v{T+4}, v{O+i}, 0, v{T+4}")
    e(f"s_mov_b32 s40, 0x{lo_lim:08x}")
    e(f"s_mov_b32 s41, 0x{hi_lim:08x}")
    e(f"v_cmp_u_f32 s[42:43], v{T+4}, v{T+4}")
    e(f"v_cmp_nle_f32 s[44:45], s40, v{L}")
    e(f"v_cmp_nge_f32 s[46:47], s41, v{L}")
    e("s_nop 3")
    e("s_or_b64 s[42:43], s[42:43], s[44:45]")
    e("s_or_b64 s[42:43], s[42:43], s[46:47]")
    e("s_cmp_eq_u64 s[42:43], 0")
    e("s_cbranch_scc1 k2_epi")
    v0_, v1_ = VF[0]
    Sa, Pa = SS[0], PP[0]
    e(f"v_and_b32 v{T+2}, 31, v0")
    e(f"v_cmp_eq_u32 vcc, 20, v{T+2}")
    e(f"v_mov_b32 v{T+3}, 0x3f803f80")
    e("s_nop 0")
    for r in (v0_, v1_):
        for i in range(4):
            e(f"v_cndmask_b32 v{r+i}, 0, v{T+3}, vcc")
    lo, hi = KF[0]
    M = T + 6
    e(f"v_mov_b32 v{M}, 0xff800000")
    e("s_mov_b32 s40, 0")
    e(f"k2_fb1:")
    e(f"buffer_load_dwordx4 v[{lo}:{lo+3}], v{vK0}, s[12:15], s40 offen")
    e(f"buffer_load_dwordx2 v[{hi}:{hi+1}], v{vKh0}, s[12:15], s40 offen")
    e("s_waitcnt vmcnt(0)")
    for m in mS(Sa, 0):
        e(m)
    e("s_nop 15")
    e("s_nop 3")
    for i in range(8):
        e(f"v_max3_f32 v{M}, v{Sa+2*i}, v{Sa+2*i+1}, v{M}")
    e("s_add_u32 s40, s40, 2560")
    e(f"s_cmp_lt_u32 s40, {64*2560}")
    e(f"s_cbranch_scc1 k2_fb1")
    e(f"v_mov_b32 v{M+1}, v{M}")
    e("s_nop 1")
    e(f"v_permlane32_swap_b32 v{M}, v{M+1}")
    e("s_nop 1")
    e(f"v_max_f32 v{M}, v{M}, v{M+1}")
    for i in range(16):
        e(f"v_mov_b32 v{O+i}, 0")
    e("s_mov_b32 s40, 0")
    e(f"k2_fb2:")
    e(f"buffer_load_dwordx4 v[{lo}:{lo+3}], v{vK0}, s[12:15], s40 offen")
    e(f"buffer_load_dwordx2 v[{hi}:{hi+1}], v{vKh0}, s[12:15], s40 offen")
    e("s_mov_b64 exec, s[28:29]")
    e(f"buffer_load_dwordx4 v[{v0_}:{v0_+3}], v{vV0}, s[12:15], s40 offen")
    e(f"buffer_load_dwordx4 v[{v1_}:{v1_+3}], v{vV0}, s[12:15], s40 offen offset:640")
    e("s_mov_b64 exec, -1")
    e("s_waitcnt vmcnt(0)")
    for m in mS(Sa, 0):
        e(m)
    e("s_nop 15")
    e("s_nop 3")
    for i in range(16):
        e(f"v_sub_f32 v{Sa+i}, v{Sa+i}, v{M}")
    for i in range(16):
        e(f"v_exp_f32 v{Sa+i}, v{Sa+i}")
    e("s_nop 0")
    for i in range(8):
        e(f"v_cvt_pk_bf16_f32 v{Pa+i}, v{Sa+2*i}, v{Sa+2*i+1}")
    e("s_nop 1")
    for m in mPV(0, Pa):
        e(m)
    e("s_add_u32 s40, s40, 2560")
    e(f"s_cmp_lt_u32 s40, {64*2560}")
    e("s_nop 7")
    e(f"s_cbranch_scc1 k2_fb2")
    e("s_nop 15")
    bcast_l(L, T + 2)
    e("k2_epi:")
    e("s_lshl_b32 s41, s22, 6")
    e("s_add_u32 s41, s41, s32")
    e("s_lshl_b32 s41, s41, 10")
    e(f"s_add_u32 s41, s41, {O_OFF}")
    e("s_lshr_b32 s43, s22, 2")
    e("s_add_u32 s43, s43, 32")
    e("s_lshl_b32 s43, s43, 6")
    e("s_add_u32 s43, s43, s32")
    e("s_lshl_b32 s43, s43, 10")
    e("s_bfe_u32 s44, s22, 0x10001")
    e("s_lshl_b32 s44, s44, 9")
    e("s_add_u32 s43, s43, s44")
    e("s_and_b32 s44, s22, 1")
    e("s_lshl_b32 s44, s44, 3")
    e("s_add_u32 s43, s43, s44")
    e(f"s_add_u32 s43, s43, {O_OFF}")
    e(f"v_rcp_f32 v{L}, v{L}")
    e("s_nop 0")
    pk = PP[0]
    for i in range(12):
        e(f"v_mul_f32 v{O+i}, v{O+i}, v{L}")
    for i in range(6):
        e(f"v_cvt_pk_bf16_f32 v{pk+i}, v{O+2*i}, v{O+2*i+1}")
    e(f"buffer_store_dwordx4 v[{pk}:{pk+3}], v{vK0}, s[36:39], s41 offen")
    e("s_mov_b32 exec_hi, 0")
    e(f"buffer_store_dwordx2 v[{pk+4}:{pk+5}], v{vK0}, s[36:39], s43 offen")
    e("s_mov_b64 exec, -1")
    e("s_branch k2_end")

    e("k2_mlp:")
    if os.environ.get("PRIO", "none") != "none":
        e("s_setprio 3")
    g = Gemm("k2", NWM=2, NWN=2, TM=2, TN=1, KGS=K2_KGS, NBUF=K2_NBUF, KG=108, korder='d', NL=1, vbase=8, sbase=40)
    e("""
    s_sub_u32 s21, s2, 256
    s_lshr_b32 s21, s21, 3
    s_cmp_ge_u32 s21, 10
    s_cselect_b32 s22, 1, 0
    s_cselect_b32 s23, 10, 0
    s_sub_u32 s25, s21, s23
    s_lshl_b32 s23, s20, 1
    s_add_u32 s23, s23, s22
    s_lshl_b32 s28, s25, 7
    s_mov_b32 s29, 1280
    s_waitcnt lgkmcnt(0)
    """)
    srd(e, 36, "s4", "s5", WS_BYTES)
    stamp_rt(e, 10)
    stamp(e, 0)
    e("s_cmp_lt_u32 s24, 4")
    e("s_cbranch_scc1 k2_mc")
    e("s_cmp_gt_u32 s24, 4")
    e("s_cbranch_scc1 k2_done")
    e("""
    s_add_u32 s16, s6, s28
    s_addc_u32 s17, s7, 0
    s_and_b32 s17, s17, 0xffff
    """)
    e(f"s_sub_u32 s18, {1728*1280}, s28")
    e("s_mov_b32 s19, 0x00020000")
    e(f"s_add_u32 s12, s4, {H_OFF}")
    e("s_addc_u32 s13, s5, 0")
    e("s_and_b32 s13, s13, 0xffff")
    e(f"s_mov_b32 s14, {108*65536}")
    e("s_mov_b32 s15, 0x00020000")
    e("s_lshl_b32 s34, s23, 12")
    g.loader_setup(e, "s29", "s34")
    g.loader(e, 0, 12, 16, "k2_end")
    e("k2_mc:")
    g.setup(e, "s24")
    sWM, sWN = g.send, g.send + 1
    e(f"s_lshr_b32 s{sWM}, s24, 1")
    e(f"s_and_b32 s{sWN}, s24, 1")
    sT = (g.send + 2 + 3) // 4 * 4 + 2
    tmpv = g.vend
    srd(e, sT + 2, "s8", "s9", 640 * 2)
    e(f"s_lshl_b32 s{sT}, s{sWN}, 6")
    e(f"s_add_u32 s{sT}, s{sT}, s28")
    load_bias_init(e, g, sT + 2, f"s{sT}", tmpv)
    e(f"s_waitcnt vmcnt(0)")
    finish_bias_init(e, g, tmpv)
    g.main(e, 'n', 'm')
    e(f"s_lshl_b32 s{sT}, s23, 2")
    e(f"s_lshl_b32 s{sT+1}, s{sWM}, 1")
    e(f"s_add_u32 s{sT}, s{sT}, s{sT+1}")
    e(f"s_mul_i32 s{sT}, s{sT}, 20")
    e(f"s_lshl_b32 s{sT+1}, s25, 1")
    e(f"s_add_u32 s{sT}, s{sT}, s{sT+1}")
    e(f"s_add_u32 s{sT}, s{sT}, s{sWN}")
    e(f"s_lshl_b32 s{sT}, s{sT}, 11")
    e(f"s_add_u32 s{sT}, s{sT}, {G_OFF}")
    e(f"s_add_u32 s{sT+1}, s{sT}, {20*2048}")
    e(f"v_mov_b32 v{tmpv}, 0x{f32bits(-1.4426950408889634):08x}")
    for tm in range(2):
        a = g.accr(tm, 0)
        for half in range(2):
            t = tmpv + 4 + 8 * half
            pk = tmpv + 20 + 4 * half
            r0 = a + half * 8
            for i in range(8):
                e(f"v_mul_f32 v{t+i}, v{r0+i}, v{tmpv}")
            for i in range(8):
                e(f"v_exp_f32 v{t+i}, v{t+i}")
            for i in range(8):
                e(f"v_add_f32 v{t+i}, 1.0, v{t+i}")
            for i in range(8):
                e(f"v_rcp_f32 v{t+i}, v{t+i}")
            for i in range(8):
                e(f"v_mul_f32 v{t+i}, v{t+i}, v{r0+i}")
            for i in range(4):
                e(f"v_cvt_pk_bf16_f32 v{pk+i}, v{t+2*i}, v{t+2*i+1}")
            e(f"buffer_store_dwordx4 v[{pk}:{pk+3}], v{g.vDA}, s[36:39], s{sT+tm} offen offset:{half*1024}")
    e("k2_end:")
    stamp(e, 4)
    e("s_waitcnt vmcnt(0)")
    stamp(e, 5)
    stamp_rt(e, 11)
    stamp_store(e, 2, "s24", 36)
    e("k2_done:")
    e("s_endpgm")
    nv = max(T + 8, tmpv + 28)
    assert nv <= 128, nv
    return kd("attn_kernel", nv, 96), max(CA + 640 + 32, g.lds_bytes)


K3_NBUF = 11


def gen_k3(e):
    kernel_head(e, "out_kernel")
    g = Gemm("k3", NWM=2, NWN=2, TM=2, TN=1, KGS=2, NBUF=K3_NBUF, KG=40, korder='d', NL=2, vbase=8, sbase=48)
    e("""
    s_cmp_ge_u32 s2, 160
    s_cbranch_scc1 k3_done
    s_load_dwordx2 s[4:5], s[0:1], 80
    s_load_dwordx2 s[6:7], s[0:1], 16
    s_load_dwordx2 s[8:9], s[0:1], 0
    s_load_dwordx2 s[10:11], s[0:1], 64
    v_lshrrev_b32 v1, 6, v0
    v_and_b32 v0, 63, v0
    s_and_b32 s20, s2, 7
    v_readfirstlane_b32 s24, v1
    s_lshr_b32 s21, s2, 3
    s_cmp_ge_u32 s21, 10
    s_cselect_b32 s22, 1, 0
    s_cselect_b32 s23, 10, 0
    s_sub_u32 s25, s21, s23
    s_lshl_b32 s23, s20, 1
    s_add_u32 s23, s23, s22
    s_lshl_b32 s28, s25, 7
    s_mov_b32 s29, 1280
    s_waitcnt lgkmcnt(0)
    """)
    srd(e, 36, "s4", "s5", WS_BYTES)
    stamp_rt(e, 10)
    stamp(e, 0)
    e("s_cmp_lt_u32 s24, 4")
    e("s_cbranch_scc1 k3_c")
    e("""
    s_add_u32 s16, s6, s28
    s_addc_u32 s17, s7, 0
    s_and_b32 s17, s17, 0xffff
    """)
    e(f"s_sub_u32 s18, {640*1280}, s28")
    e("s_mov_b32 s19, 0x00020000")
    e(f"s_add_u32 s12, s4, {O_OFF}")
    e("s_addc_u32 s13, s5, 0")
    e("s_and_b32 s13, s13, 0xffff")
    e(f"s_mov_b32 s14, {FR}")
    e("s_mov_b32 s15, 0x00020000")
    e("s_lshl_b32 s34, s23, 12")
    g.loader_setup(e, "s29", "s34")
    t = g.vt
    e(f"v_lshrrev_b32 v{t+2}, 2, v{t}")
    e(f"v_mul_u32_u24 v{t+2}, 40, v{t+2}")
    e(f"v_and_b32 v{t+3}, 3, v{t}")
    e(f"v_add_u32 v{t+2}, v{t+2}, v{t+3}")
    e(f"v_mul_u32_u24 v{t+2}, 1280, v{t+2}")
    e(f"v_add_u32 v{g.vDB2}, v{t+2}, v{t+1}")
    e("s_cmp_eq_u32 s24, 5")
    e("s_cbranch_scc1 k3_ld1")
    D = 6
    for kgl in range(2):
        if kgl == 1:
            e("k3_ld1:")

        def issue(st_):
            buf = (st_ % g.NBUF) * g.SB
            kg = st_ * 2 + kgl
            e(f"s_mov_b32 m0, {buf + kgl*4096}")
            e(f"s_add_u32 s{g.st}, s34, {kg*65536}")
            for i in range(4):
                off = f" offset:{i*1024}" if i else ""
                e(f"buffer_load_dwordx4 v{g.vDA}, s[12:15], s{g.st} offen{off} lds")
            for tt in range(2):
                e(f"s_mov_b32 m0, {buf + g.ASB + (kgl*2+tt)*1024}")
                if kg < 32:
                    e(f"s_mov_b32 s{g.st}, {(20*kg + 8*tt)*1280}")
                    e(f"buffer_load_dwordx4 v{g.vDB}, s[16:19], s{g.st} offen lds")
                else:
                    G = kg - 32
                    e(f"s_mov_b32 s{g.st}, {((4*G + tt)*20 + 16)*1280}")
                    e(f"buffer_load_dwordx4 v{g.vDB2}, s[16:19], s{g.st} offen lds")
        npre = 4
        for s_ in range(npre):
            issue(s_)
        e(f"s_waitcnt vmcnt({(npre-1)*D})")
        e("s_barrier")
        for s_ in range(npre, g.NBUF - 1):
            issue(s_)
        for s_ in range(g.NST):
            outst = max(0, min(s_ + g.NBUF - 2, g.NST - 1) - (s_ + 1) + 1)
            e(f"s_waitcnt vmcnt({max(0, outst-1)*D})")
            e("s_barrier")
            if s_ + g.NBUF - 1 < g.NST:
                issue(s_ + g.NBUF - 1)
        e("s_branch k3_end")
    e("k3_c:")
    srd(e, 12, "s8", "s9", 2048 * 1280)
    srd(e, 32, "s10", "s11", 2048 * 1280)
    g.setup(e, "s24")
    sWM, sWN = g.send, g.send + 1
    e(f"s_lshr_b32 s{sWM}, s24, 1")
    e(f"s_and_b32 s{sWN}, s24, 1")
    sT = g.send + 2
    GV = g.vend
    XV = GV + 16
    vX = XV + 16
    T = vX + 4
    e(f"s_lshl_b32 s{sT}, s23, 2")
    e(f"s_lshl_b32 s{sT+1}, s{sWM}, 1")
    e(f"s_add_u32 s{sT}, s{sT}, s{sT+1}")
    e(f"s_mul_i32 s{sT+1}, s{sT}, 20")
    e(f"s_lshl_b32 s{sT+2}, s25, 1")
    e(f"s_add_u32 s{sT+1}, s{sT+1}, s{sT+2}")
    e(f"s_add_u32 s{sT+1}, s{sT+1}, s{sWN}")
    e(f"s_lshl_b32 s{sT+1}, s{sT+1}, 11")
    e(f"s_add_u32 s{sT+1}, s{sT+1}, {G_OFF}")
    e(f"s_add_u32 s{sT+2}, s{sT+1}, {20*2048}")
    e(f"v_and_b32 v{T}, 31, v0")
    e(f"v_mul_u32_u24 v{vX}, 1280, v{T}")
    e(f"v_lshrrev_b32 v{T+1}, 5, v0")
    e(f"v_lshl_add_u32 v{vX}, v{T+1}, 4, v{vX}")
    e(f"s_mul_i32 s{sT+3}, s{sT}, {32*1280}")
    e(f"s_add_u32 s{sT+3}, s{sT+3}, s28")
    e(f"s_lshl_b32 s{sT+4}, s{sWN}, 6")
    e(f"s_add_u32 s{sT+3}, s{sT+3}, s{sT+4}")
    e(f"s_add_u32 s{sT+4}, s{sT+3}, {32*1280}")
    for i in range(32):
        e(f"v_mov_b32 v{g.acc+i}, 0")

    def late_loads():
        for tm in range(2):
            for half in range(2):
                r = GV + tm * 8 + half * 4
                e(f"buffer_load_dwordx4 v[{r}:{r+3}], v{g.vDA}, s[36:39], s{sT+1+tm} offen offset:{half*1024}")
        for tm in range(2):
            for pp in range(2):
                r = XV + (tm * 2 + pp) * 4
                e(f"buffer_load_dwordx4 v[{r}:{r+3}], v{vX}, s[12:15], s{sT+3+tm} offen offset:{pp*32}")
    g.main(e, 'n', 'm', late_loads)
    e("s_waitcnt vmcnt(0)")
    for tm in range(2):
        for pp in range(2):
            r = XV + (tm * 2 + pp) * 4
            e(f"v_permlane32_swap_b32 v{r}, v{r+2}")
            e(f"v_permlane32_swap_b32 v{r+1}, v{r+3}")
    for tm in range(2):
        for pp in range(2):
            ob = T + ((tm * 2 + pp) & 1) * 4
            for q in range(2):
                gg = pp * 2 + q
                a = g.accr(tm, 0) + 4 * gg
                gr = GV + tm * 8 + gg * 2
                xr = XV + (tm * 2 + pp) * 4 + q * 2
                t = T + 8
                e(f"v_cvt_pk_bf16_f32 v{t}, v{a}, v{a+1}")
                e(f"v_cvt_pk_bf16_f32 v{t+1}, v{a+2}, v{a+3}")
                for i in range(2):
                    e(f"v_lshlrev_b32 v{t+2+2*i}, 16, v{t+i}")
                    e(f"v_and_b32 v{t+3+2*i}, 0xffff0000, v{t+i}")
                    e(f"v_lshlrev_b32 v{t+6+2*i}, 16, v{gr+i}")
                    e(f"v_and_b32 v{t+7+2*i}, 0xffff0000, v{gr+i}")
                for i in range(4):
                    e(f"v_mul_f32 v{t+2+i}, v{t+2+i}, v{t+6+i}")
                e(f"v_cvt_pk_bf16_f32 v{t}, v{t+2}, v{t+3}")
                e(f"v_cvt_pk_bf16_f32 v{t+1}, v{t+4}, v{t+5}")
                for i in range(2):
                    e(f"v_lshlrev_b32 v{t+2+2*i}, 16, v{t+i}")
                    e(f"v_and_b32 v{t+3+2*i}, 0xffff0000, v{t+i}")
                    e(f"v_lshlrev_b32 v{t+6+2*i}, 16, v{xr+i}")
                    e(f"v_and_b32 v{t+7+2*i}, 0xffff0000, v{xr+i}")
                for i in range(4):
                    e(f"v_add_f32 v{t+2+i}, v{t+2+i}, v{t+6+i}")
                e(f"v_cvt_pk_bf16_f32 v{ob+2*q}, v{t+2}, v{t+3}")
                e(f"v_cvt_pk_bf16_f32 v{ob+2*q+1}, v{t+4}, v{t+5}")
            e("s_nop 1")
            e(f"v_permlane32_swap_b32 v{ob}, v{ob+2}")
            e(f"v_permlane32_swap_b32 v{ob+1}, v{ob+3}")
            e(f"buffer_store_dwordx4 v[{ob}:{ob+3}], v{vX}, s[32:35], s{sT+3+tm} offen offset:{pp*32}")
    e("k3_end:")
    stamp(e, 4)
    e("s_waitcnt vmcnt(0)")
    stamp(e, 5)
    stamp_rt(e, 11)
    stamp_store(e, 3, "s24", 36)
    e("k3_done:")
    e("s_endpgm")
    return kd("out_kernel", T + 20, 96), g.lds_bytes


def main():
    e = Em()
    kds = []
    k1kd, k1lds = gen_k1(e)
    kds.append(k1kd)
    k2kd, k2lds = gen_k2(e)
    kds.append(k2kd)
    k3kd, k3lds = gen_k3(e)
    kds.append(k3kd)
    launches = [
        f"; @launch kernel=gemm1_kernel grid=(256,1,1) block=(1024,1,1) lds={k1lds}",
        f"; @launch kernel=attn_kernel grid=(416,1,1) block=(512,1,1) lds={k2lds}",
        f"; @launch kernel=out_kernel grid=(160,1,1) block=(384,1,1) lds={k3lds}",
    ]
    head = "\n".join(launches) + "\n" + '.amdgcn_target "amdgcn-amd-amdhsa--gfx950"\n.text\n'
    tail = '.section .rodata,"a"\n.p2align 6\n' + ".p2align 6\n".join(kds)
    out = head + e.text() + tail
    path = sys.argv[1] if len(sys.argv) > 1 else f"cdna_kernels/{NAME}.s"
    open(path, "w").write(out)
    print("wrote", path, len(out))


if __name__ == "__main__":
    main()
```

```python
import sys, math, struct
from layout import *

NAME = "recurrent_scan__softmax_full_mha__mixer_channel_mlp__prompt"
WS_BYTES = 268435456


def f32bits(x):
    return struct.unpack("<I", struct.pack("<f", x))[0]


class Em:
    def __init__(self):
        self.l = []

    def __call__(self, s):
        for line in s.split("\n"):
            line = line.strip()
            if not line:
                continue
            if line.endswith(":") or line.startswith("."):
                self.l.append(line)
            else:
                self.l.append("    " + line)

    def text(self):
        return "\n".join(self.l) + "\n"


def srd(e, s, lo, hi, nbytes):
    e(f"s_mov_b32 s{s}, {lo}")
    e(f"s_and_b32 s{s+1}, {hi}, 0xffff")
    e(f"s_mov_b32 s{s+2}, {nbytes}")
    e(f"s_mov_b32 s{s+3}, 0x00020000")


def csel(e, dst, a, b):
    e(f"s_mov_b32 {dst}, {b}")
    e(f"s_cselect_b32 {dst}, {a}, {dst}")


import os
STAMP = int(os.environ.get("STAMP", "0"))
STAMP_OFF = 64 << 20


def stamp(e, i):
    if STAMP != 1:
        return
    e(f"s_memtime s[86:87]")
    e("s_waitcnt lgkmcnt(0)")
    e(f"s_mov_b32 s{70+i}, s86")


def stamp_rt(e, i):
    if not STAMP:
        return
    e(f"s_memrealtime s[86:87]")
    e("s_waitcnt lgkmcnt(0)")
    e(f"s_mov_b32 s{70+i}, s86")


def stamp_store(e, kidx, sWave, srdws, n=12):
    if not STAMP:
        return
    if STAMP == 2:
        e(f"s_cmp_lg_u32 {sWave}, 0")
        e(f"s_cbranch_scc1 dbg_skip{kidx}")
        e("s_and_b32 s88, s2, 15")
        e(f"s_cmp_lg_u32 s88, 5")
        e(f"s_cbranch_scc1 dbg_skip{kidx}")
        e("s_load_dwordx2 s[88:89], s[0:1], 72")
        e("s_waitcnt lgkmcnt(0)")
        e(f"s_add_u32 s88, s88, {512*(3-kidx)}")
        e("s_addc_u32 s89, s89, 0")
        e("s_and_b32 s89, s89, 0xffff")
        e("s_mov_b32 s90, 256")
        e("s_mov_b32 s91, 0x00020000")
        e("v_mov_b32 v1, 0")
        e("s_not_b32 s80, s80")
        e("v_mov_b32 v2, s80")
        e("v_mov_b32 v3, s81")
        e("s_mov_b64 exec, 1")
        e(f"buffer_atomic_umax v2, v1, s[88:91], 0 offen offset:{8*kidx}")
        e(f"buffer_atomic_umax v3, v1, s[88:91], 0 offen offset:{8*kidx+4}")
        e("s_waitcnt vmcnt(0)")
        e(f"dbg_skip{kidx}:")
        return
    e("s_getreg_b32 s78, hwreg(HW_REG_XCC_ID)")
    e("s_getreg_b32 s79, hwreg(HW_REG_HW_ID)")
    e(f"s_lshl_b32 s86, s2, 4")
    e(f"s_add_u32 s86, s86, {sWave}")
    e(f"s_lshl_b32 s86, s86, 6")
    e(f"s_add_u32 s86, s86, {STAMP_OFF + kidx * 0x100000}")
    e("v_mov_b32 v1, 0")
    for i in range(n):
        e(f"v_mov_b32 v2, s{70+i}")
        e(f"buffer_store_dword v2, v1, s[{srdws}:{srdws+3}], s86 offen offset:{4*i}")


def kernel_head(e, name):
    e(f".p2align 8")
    e(f".globl {name}")
    e(f".type {name},@function")
    e(f"{name}:")


def kd(name, vgpr, sgpr=96):
    acc = (vgpr + 3) // 4 * 4
    return f""".amdhsa_kernel {name}
  .amdhsa_next_free_vgpr {vgpr}
  .amdhsa_next_free_sgpr {sgpr}
  .amdhsa_accum_offset {acc}
  .amdhsa_group_segment_fixed_size 0
  .amdhsa_kernarg_size 88
  .amdhsa_user_sgpr_count 2
  .amdhsa_user_sgpr_kernarg_segment_ptr 1
  .amdhsa_system_sgpr_workgroup_id_x 1
.end_amdhsa_kernel
"""


def wave_sum(e, v, sdst):
    for sh in (1, 2, 4, 8):
        e("s_nop 1")
        e(f"v_add_f32_dpp v{v}, v{v}, v{v} row_shr:{sh} row_mask:0xf bank_mask:0xf bound_ctrl:0")
    e("s_nop 1")
    e(f"v_add_f32_dpp v{v}, v{v}, v{v} row_bcast:15 row_mask:0xa bank_mask:0xf")
    e("s_nop 1")
    e(f"v_add_f32_dpp v{v}, v{v}, v{v} row_bcast:31 row_mask:0xc bank_mask:0xf")
    e("s_nop 1")
    e(f"v_readlane_b32 s{sdst}, v{v}, 63")
    e("s_nop 1")


def bf16r(e, v, t):
    e(f"v_cvt_pk_bf16_f32 v{t}, v{v}, v{v}")
    e(f"v_lshlrev_b32 v{v}, 16, v{t}")


def gen_ln(e):
    kernel_head(e, "ln_kernel")
    e("""
    s_cmp_ge_u32 s2, 768
    s_cbranch_scc1 ln_done
    s_cmp_ge_u32 s2, 256
    s_cbranch_scc1 ln_main
    """)
    e("""
    s_load_dwordx2 s[4:5], s[0:1], 8
    s_load_dwordx2 s[6:7], s[0:1], 32
    s_load_dwordx2 s[8:9], s[0:1], 48
    s_load_dwordx2 s[10:11], s[0:1], 16
    v_lshrrev_b32 v1, 6, v0
    v_and_b32 v0, 63, v0
    v_lshlrev_b32 v2, 4, v0
    v_readfirstlane_b32 s20, v1
    s_and_b32 s21, s2, 7
    s_lshr_b32 s22, s2, 3
    s_lshr_b32 s23, s21, 2
    s_and_b32 s24, s21, 1
    s_waitcnt lgkmcnt(0)
    s_cmp_eq_u32 s23, 0
    s_cselect_b32 s12, s4, s6
    s_cselect_b32 s13, s5, s7
    """)
    csel(e, "s25", 3840, 3456)
    csel(e, "s14", 640*3840, 640*3456)
    csel(e, "s26", 2048, 1792)
    e("s_and_b32 s13, s13, 0xffff")
    e("s_mov_b32 s15, 0x00020000")
    e("s_mul_i32 s27, s22, 20")
    e("s_mul_i32 s28, s20, 5")
    e("s_add_u32 s27, s27, s28")
    e("s_mul_i32 s27, s27, s25")
    e("s_mul_i32 s28, s24, s26")
    e("s_add_u32 s27, s27, s28")
    for r in range(5):
        e(f"buffer_load_dwordx4 v[{4+8*r}:{7+8*r}], v2, s[12:15], s27 offen")
        e(f"buffer_load_dwordx4 v[{8+8*r}:{11+8*r}], v2, s[12:15], s27 offen offset:1024")
        e("s_add_u32 s27, s27, s25")
    srd(e, 16, "s8", "s9", 1728 * 1280)
    srd(e, 28, "s10", "s11", 640 * 1280)
    e("s_lshl_b32 s27, s2, 2")
    e("s_add_u32 s27, s27, s20")
    e("s_lshl_b32 s27, s27, 10")
    e("buffer_load_dwordx4 v[44:47], v2, s[28:31], s27 offen")
    e("buffer_load_dwordx4 v[4:7], v2, s[16:19], s27 offen")
    e("s_add_u32 s27, s27, 0x100000")
    e("buffer_load_dwordx4 v[8:11], v2, s[16:19], s27 offen")
    e("s_add_u32 s27, s27, 0x100000")
    e("buffer_load_dwordx4 v[12:15], v2, s[16:19], s27 offen")
    e("s_waitcnt vmcnt(0)")
    e("s_endpgm")
    e("""
    ln_main:
    s_sub_u32 s2, s2, 256
    s_load_dwordx2 s[4:5], s[0:1], 0
    s_load_dwordx2 s[6:7], s[0:1], 80
    v_lshrrev_b32 v1, 6, v0
    v_and_b32 v0, 63, v0
    v_lshlrev_b32 v2, 4, v0
    v_readfirstlane_b32 s20, v1
    v_lshlrev_b32 v3, 2, v0
    s_lshl_b32 s21, s2, 2
    s_nop 1
    s_add_u32 s21, s21, s20
    s_mul_i32 s22, s21, 1280
    s_waitcnt lgkmcnt(0)
    """)
    srd(e, 8, "s4", "s5", 2048 * 1280)
    srd(e, 12, "s6", "s7", WS_BYTES)
    stamp_rt(e, 10)
    stamp(e, 0)
    e("""
    buffer_load_dwordx4 v[4:7], v2, s[8:11], s22 offen
    buffer_load_dword v8, v3, s[8:11], s22 offen offset:1024
    s_lshr_b32 s23, s21, 5
    s_and_b32 s24, s21, 31
    s_lshl_b32 s23, s23, 10
    s_lshl_b32 s24, s24, 4
    s_add_u32 s23, s23, s24
    """)
    e(f"s_add_u32 s25, s23, {Y_OFF}")
    e(f"s_add_u32 s23, s23, {XN_OFF}")
    e("""
    v_lshrrev_b32 v40, 1, v0
    v_lshlrev_b32 v40, 16, v40
    v_and_b32 v42, 1, v0
    v_lshlrev_b32 v42, 9, v42
    v_add_u32 v40, v40, v42
    v_lshrrev_b32 v41, 3, v0
    v_add_u32 v41, 32, v41
    v_lshlrev_b32 v41, 16, v41
    v_bfe_u32 v42, v0, 2, 1
    v_lshlrev_b32 v42, 9, v42
    v_add_u32 v41, v41, v42
    v_and_b32 v42, 3, v0
    v_lshlrev_b32 v42, 2, v42
    v_add_u32 v41, v41, v42
    """)
    e(f"v_mov_b32 v38, 0x{f32bits(1.0/640.0):08x}")
    e(f"v_mov_b32 v39, 0x{f32bits(1e-5):08x}")
    e("s_waitcnt vmcnt(0)")
    F = list(range(10, 20))
    E_ = list(range(20, 30))
    P = [4, 5, 6, 7, 8]

    def unpack():
        for i in range(5):
            e(f"v_lshlrev_b32 v{F[2*i]}, 16, v{P[i]}")
            e(f"v_and_b32 v{F[2*i+1]}, 0xffff0000, v{P[i]}")

    def ln(soff):
        e(f"v_add_f32 v30, v{F[0]}, v{F[1]}")
        e(f"v_add_f32 v31, v{F[2]}, v{F[3]}")
        e(f"v_add_f32 v32, v{F[4]}, v{F[5]}")
        e(f"v_add_f32 v33, v{F[6]}, v{F[7]}")
        e(f"v_add_f32 v34, v{F[8]}, v{F[9]}")
        e("v_add_f32 v30, v30, v31")
        e("v_add_f32 v32, v32, v33")
        e("v_add_f32 v30, v30, v34")
        e("v_add_f32 v30, v30, v32")
        wave_sum(e, 30, 26)
        e("v_mul_f32 v31, s26, v38")
        for i in range(10):
            e(f"v_sub_f32 v{E_[i]}, v{F[i]}, v31")
        e(f"v_mul_f32 v30, v{E_[0]}, v{E_[0]}")
        e(f"v_mul_f32 v32, v{E_[1]}, v{E_[1]}")
        for i in range(2, 10, 2):
            e(f"v_fmac_f32 v30, v{E_[i]}, v{E_[i]}")
            e(f"v_fmac_f32 v32, v{E_[i+1]}, v{E_[i+1]}")
        e("v_add_f32 v30, v30, v32")
        wave_sum(e, 30, 26)
        e("v_mul_f32 v32, s26, v38")
        bf16r(e, 31, 33)
        bf16r(e, 32, 33)
        e("v_add_f32 v32, v32, v39")
        bf16r(e, 32, 33)
        e("v_sqrt_f32 v32, v32")
        e("s_nop 0")
        bf16r(e, 32, 33)
        e("v_rcp_f32 v32, v32")
        for i in range(10):
            e(f"v_sub_f32 v{E_[i]}, v{F[i]}, v31")
        for i in range(5):
            e(f"v_cvt_pk_bf16_f32 v{P[i]}, v{E_[2*i]}, v{E_[2*i+1]}")
        unpack()
        for i in range(10):
            e(f"v_mul_f32 v{F[i]}, v{F[i]}, v32")
        for i in range(5):
            e(f"v_cvt_pk_bf16_f32 v{P[i]}, v{F[2*i]}, v{F[2*i+1]}")
        e(f"buffer_store_dwordx4 v[4:7], v40, s[12:15], {soff} offen")
        e(f"buffer_store_dword v8, v41, s[12:15], {soff} offen")

    unpack()
    ln("s23")
    unpack()
    e("s_nop 1")
    ln("s25")
    if STAMP:
        for i in range(1, 5):
            stamp(e, i)
        e("s_waitcnt vmcnt(0)")
        stamp(e, 5)
        stamp_rt(e, 11)
        stamp_store(e, 0, "s20", 12)
    e("ln_done:")
    e("s_endpgm")
    return kd("ln_kernel", 48, 96)


class Gemm:
    def __init__(self, pfx, NWM, NWN, TM, TN, KGS, NBUF, KG, korder, NL, vbase, sbase, lds_base=0):
        self.pfx = pfx
        self.NWM, self.NWN, self.TM, self.TN = NWM, NWN, TM, TN
        self.KGS, self.NBUF, self.KG, self.korder, self.NL = KGS, NBUF, KG, korder, NL
        self.NW = NWM * NWN
        self.BM = NWM * TM * 32
        self.BN = NWN * TN * 32
        self.NT = self.BM // 32
        self.pitch = self.BN * 2
        self.ASB = self.NT * KGS * 1024
        self.BSB = KGS * 16 * self.pitch
        self.SB = self.ASB + self.BSB
        self.lds_base = lds_base
        self.lds_bytes = self.SB * NBUF
        assert KG % KGS == 0
        self.NST = KG // KGS
        self.rpi = 1024 // self.pitch
        ops = []
        for kg in range(KGS):
            for tg in range(0, self.NT, 4):
                for i in range(min(4, self.NT - tg)):
                    ops.append(('A', kg * self.NT * 1024 + tg * 1024, kg * 65536 + tg * 1024, i * 1024))
        for i in range(self.BSB // 1024):
            ops.append(('B', self.ASB + i * 1024, i, 0))
        assert len(ops) % NL == 0, (len(ops), NL)
        self.D = len(ops) // NL
        self.lops = [ops[k * self.D:(k + 1) * self.D] for k in range(NL)]
        assert (NBUF - 1) * self.D <= 63
        v = vbase
        self.acc = v; v += TM * TN * 16
        self.fr = []
        for p in range(2):
            a = [v + 4 * j for j in range(TM)]; v += 4 * TM
            b = [v + 4 * j for j in range(TN)]; v += 4 * TN
            self.fr.append((a, b))
        self.vA0 = v; v += 1
        self.vB0 = [v + j for j in range(TN)]; v += TN
        self.vA = v; v += 1
        self.vB = [v + j for j in range(TN)]; v += TN
        self.vDA = v; v += 1
        self.vDB = v; v += 1
        self.vDB2 = v; v += 1
        self.vt = v; v += 4
        self.vend = (v + 3) // 4 * 4
        s = sbase
        self.sRd = s; s += 1
        self.sWr = s; s += 1
        self.sAo = s; s += 1
        self.sBo = s; s += 1
        self.sBinc = s; s += 1
        self.sBstep = s; s += 1
        self.sCnt = s; s += 1
        self.sIss = s; s += 1
        self.st = s; s += 4
        self.send = s

    def accr(self, tm, tn):
        return self.acc + (tm * self.TN + tn) * 16

    def loader_setup(self, e, sLdw, sA0):
        t = self.vt
        ppr = self.pitch // 16
        lgp = int(math.log2(ppr))
        e(f"v_lshlrev_b32 v{self.vDA}, 4, v0")
        e(f"v_lshrrev_b32 v{t}, {lgp}, v0")
        e(f"v_and_b32 v{t+1}, {ppr-1}, v0")
        e(f"v_lshrrev_b32 v{t+2}, 2, v{t+1}")
        if self.pitch == 256:
            e(f"v_and_b32 v{t+3}, 3, v{t}")
        else:
            e(f"v_bfe_u32 v{t+3}, v{t}, 1, 1")
        e(f"v_xor_b32 v{t+2}, v{t+2}, v{t+3}")
        e(f"v_and_b32 v{t+1}, 3, v{t+1}")
        e(f"v_lshlrev_b32 v{t+1}, 4, v{t+1}")
        e(f"v_lshl_add_u32 v{t+1}, v{t+2}, 6, v{t+1}")
        e(f"v_mul_lo_u32 v{t+2}, v{t}, {sLdw}")
        e(f"v_add_u32 v{self.vDB}, v{t+2}, v{t+1}")
        e(f"s_mul_i32 s{self.sBinc}, {sLdw}, {16*self.KGS}")
        e(f"s_mul_i32 s{self.sBstep}, {sLdw}, {self.rpi}")
        e(f"s_mov_b32 s{self.sAo}, {sA0}")
        e(f"s_mov_b32 s{self.sBo}, 0")
        e(f"s_mov_b32 s{self.sIss}, 0")
        e(f"s_mov_b32 s{self.sWr}, {self.lds_base}")

    def issue(self, e, k, SA, SBd):
        st = self.st
        rep = int(os.environ.get('REP', '1'))
        e(f"s_cmp_lt_u32 s{self.sIss}, {self.NST}")
        e(f"s_cselect_b32 s{st+1}, s{self.sAo}, 0x7ff00000")
        e(f"s_cselect_b32 s{st+2}, s{self.sBo}, 0x7ff00000")
        cur = None
        lastb = 0
        for kind, lo, gd, io in self.lops[k]:
            if kind == 'A':
                if cur != ('A', lo):
                    e(f"s_add_u32 m0, s{self.sWr}, {lo}")
                    e(f"s_add_u32 s{st}, s{st+1}, {gd}")
                    cur = ('A', lo)
                off = f" offset:{io}" if io else ""
                e(f"buffer_load_dwordx4 v{self.vDA}, s[{SA}:{SA+3}], s{st} offen{off} lds")
            else:
                e(f"s_add_u32 m0, s{self.sWr}, {lo}")
                if gd != lastb:
                    if gd - lastb == 1:
                        e(f"s_add_u32 s{st+2}, s{st+2}, s{self.sBstep}")
                    else:
                        e(f"s_mul_i32 s{st+3}, s{self.sBstep}, {gd-lastb}")
                        e(f"s_add_u32 s{st+2}, s{st+2}, s{st+3}")
                    lastb = gd
                else:
                    e("s_nop 0")
                e(f"buffer_load_dwordx4 v{self.vDB}, s[{SBd}:{SBd+3}], s{st+2} offen lds")
                cur = None
        e(f"s_add_u32 s{self.sAo}, s{self.sAo}, {self.KGS*65536}")
        e(f"s_add_u32 s{self.sBo}, s{self.sBo}, s{self.sBinc}")
        e(f"s_add_u32 s{self.sIss}, s{self.sIss}, 1")
        e(f"s_add_u32 s{self.sWr}, s{self.sWr}, {self.SB}")
        e(f"s_cmp_eq_u32 s{self.sWr}, {self.lds_base + self.SB*self.NBUF}")
        e(f"s_cselect_b32 s{self.sWr}, {self.lds_base}, s{self.sWr}")

    def loader(self, e, k, SA, SBd, endlabel):
        L = f"{self.pfx}_ld{k}_loop"
        self.issue(e, k, SA, SBd)
        self.issue(e, k, SA, SBd)
        e(f"s_waitcnt vmcnt({self.D})")
        e("s_barrier")
        for s_ in range(2, self.NBUF - 1):
            self.issue(e, k, SA, SBd)
        e(f"s_mov_b32 s{self.sCnt}, {self.NST}")
        e(f"{L}:")
        e(f"s_waitcnt vmcnt({(self.NBUF-3)*self.D})")
        e("s_barrier")
        if not os.environ.get("NODMA"):
            self.issue(e, k, SA, SBd)
        e(f"s_sub_u32 s{self.sCnt}, s{self.sCnt}, 1")
        e(f"s_cmp_lg_u32 s{self.sCnt}, 0")
        e(f"s_cbranch_scc1 {L}")
        e(f"s_branch {endlabel}")

    def setup(self, e, sWave):
        t = self.vt
        TM, TN, KGS = self.TM, self.TN, self.KGS
        st = self.st
        lg = int(math.log2(self.NWN))
        e(f"s_lshr_b32 s{st}, {sWave}, {lg}")
        e(f"s_and_b32 s{st+1}, {sWave}, {self.NWN-1}")
        e(f"v_lshlrev_b32 v{self.vDA}, 4, v0")
        e(f"s_mul_i32 s{st}, s{st}, {TM*1024}")
        e(f"s_add_u32 s{st}, s{st}, {self.lds_base}")
        e(f"v_add_u32 v{self.vA0}, s{st}, v{self.vDA}")
        e(f"v_bfe_u32 v{t}, v0, 2, 2")
        e(f"v_lshrrev_b32 v{t+1}, 5, v0")
        hmul = 8 if self.korder == 'nat' else 4
        e(f"v_mad_u32_u24 v{t+1}, v{t+1}, {hmul}, v{t}")
        e(f"v_mul_u32_u24 v{t+1}, {self.pitch}, v{t+1}")
        e(f"v_bfe_u32 v{t+2}, v0, 4, 1")
        e(f"v_lshl_add_u32 v{t+1}, v{t+2}, 5, v{t+1}")
        e(f"v_and_b32 v{t+2}, 3, v0")
        e(f"v_lshl_add_u32 v{t+1}, v{t+2}, 3, v{t+1}")
        e(f"v_add_u32 v{t+1}, {self.lds_base + self.ASB}, v{t+1}")
        if self.pitch == 128:
            e(f"v_lshrrev_b32 v{t}, 1, v{t}")
        for j in range(TN):
            e(f"s_mul_i32 s{st}, s{st+1}, {TN}")
            e(f"s_add_u32 s{st}, s{st}, {j}")
            e(f"v_xor_b32 v{t+2}, s{st}, v{t}")
            e(f"v_lshl_add_u32 v{self.vB0[j]}, v{t+2}, 6, v{t+1}")
        e(f"s_mov_b32 s{self.sRd}, 0")

    def reads(self, e, p, kg):
        a, b = self.fr[p]
        ra = [f"ds_read_b128 v[{a[j]}:{a[j]+3}], v{self.vA} offset:{kg*self.NT*1024 + j*1024}" for j in range(self.TM)]
        tmul = 4 if self.korder == 'nat' else 8
        rb = []
        for j in range(self.TN):
            for t in range(2):
                rb.append(f"ds_read_b64_tr_b16 v[{b[j]+2*t}:{b[j]+2*t+1}], v{self.vB[j]} offset:{(kg*16 + t*tmul)*self.pitch}")
        return ra[:1] + rb + ra[1:]

    def nreads(self):
        return self.TM + 2 * self.TN

    def mfmas(self, p, orient):
        a, b = self.fr[p]
        out = []
        for tm in range(self.TM):
            for tn in range(self.TN):
                d = self.accr(tm, tn)
                if orient == 'n':
                    s0, s1 = b[tn], a[tm]
                else:
                    s0, s1 = a[tm], b[tn]
                out.append(f"v_mfma_f32_32x32x16_bf16 v[{d}:{d+15}], v[{s0}:{s0+3}], v[{s1}:{s1+3}], v[{d}:{d+15}]")
        return out

    def set_bases(self, e):
        e(f"v_add_u32 v{self.vA}, s{self.sRd}, v{self.vA0}")
        for j in range(self.TN):
            e(f"v_add_u32 v{self.vB[j]}, s{self.sRd}, v{self.vB0[j]}")

    def adv_rd(self, e):
        e(f"s_add_u32 s{self.sRd}, s{self.sRd}, {self.SB}")
        e(f"s_cmp_eq_u32 s{self.sRd}, {self.SB*self.NBUF}")
        e(f"s_cselect_b32 s{self.sRd}, 0, s{self.sRd}")

    def main(self, e, orient, tag, after_first=None):
        L = f"{self.pfx}_{tag}_loop"
        self.set_bases(e)
        e(f"s_mov_b32 s{self.sCnt}, {self.NST}")
        stamp(e, 1)
        e("s_barrier")
        stamp(e, 2)
        for r in self.reads(e, 0, 0):
            e(r)
        if after_first:
            after_first()
        e(f"{L}:")
        e("s_barrier")
        nr = self.nreads()
        for kg in range(self.KGS):
            p = kg & 1
            last = kg == self.KGS - 1
            rd = self.reads(e, p ^ 1, 0 if last else kg + 1)
            mf = self.mfmas(p, orient)
            need = []
            for tm in range(self.TM):
                for tn in range(self.TN):
                    nb = 1 + 2 * (tn + 1)
                    na = 1 if tm == 0 else 1 + 2 * self.TN + tm
                    need.append(max(nb, na))
            nm = len(mf)
            gaps = max(1, nm - 2) if nm > 2 else 1
            per = (nr + gaps - 1) // gaps
            issued = 0
            have = 0
            for i in range(nm):
                if need[i] > have:
                    if not os.environ.get("NOLDS"):
                        e(f"s_waitcnt lgkmcnt({nr - need[i] + issued})")
                    have = need[i]
                if not os.environ.get("NOMFMA"):
                    e(mf[i])
                if i == 0 and last:
                    self.adv_rd(e)
                    self.set_bases(e)
                for r in rd[issued:issued + per]:
                    if not os.environ.get("NOLDS"):
                        e(r)
                issued = min(nr, issued + per)
            assert issued == nr
        e(f"s_sub_u32 s{self.sCnt}, s{self.sCnt}, 1")
        e(f"s_cmp_lg_u32 s{self.sCnt}, 0")
        e(f"s_cbranch_scc1 {L}")
        e("s_waitcnt lgkmcnt(0)")
        e("s_nop 15")
        stamp(e, 3)


def load_bias_init(e, g, srdB, sN0, tmp):
    e(f"v_lshrrev_b32 v{g.vt}, 5, v0")
    e(f"v_lshlrev_b32 v{g.vt}, 3, v{g.vt}")
    for tn in range(g.TN):
        for gg in range(4):
            r = tmp + (tn * 4 + gg) * 2
            e(f"buffer_load_dwordx2 v[{r}:{r+1}], v{g.vt}, s[{srdB}:{srdB+3}], {sN0} offen offset:{(tn*32+gg*8)*2}")


def finish_bias_init(e, g, tmp):
    for tn in range(g.TN):
        for gg in range(4):
            r = tmp + (tn * 4 + gg) * 2
            for tm in range(g.TM):
                d = g.accr(tm, tn) + gg * 4
                e(f"v_lshlrev_b32 v{d}, 16, v{r}")
                e(f"v_and_b32 v{d+1}, 0xffff0000, v{r}")
                e(f"v_lshlrev_b32 v{d+2}, 16, v{r+1}")
                e(f"v_and_b32 v{d+3}, 0xffff0000, v{r+1}")


K1_KGS = 2
K1_NBUF = 6


F_SB = 49152
F_ASB = 32768
F_NBUF = 3
F_NST = 10
F_MU = F_SB * F_NBUF
F_RS = F_MU + 1024
F_CS = F_RS + 1024
F_BI = F_CS + 512
F_FLAG = F_BI + 256
F_PT = F_FLAG + 64
F_LDS = F_PT + 2560
NSIG = 8 + 15
SPIN_MAX = 64


def ln_finalize(e, aS, aQ, o, t1, m, v, den1, mb):
    e(f"v_mul_f32 v{m}, 0x{f32bits(1.0/640.0):08x}, v{aS}")
    e(f"v_mul_f32 v{v}, 0x{f32bits(1.0/640.0):08x}, v{aQ}")
    e(f"v_fma_f32 v{v}, -v{m}, v{m}, v{v}")
    e(f"v_max_f32 v{v}, 0, v{v}")
    e(f"v_mov_b32 v{mb}, v{m}")
    bf16r(e, mb, t1)
    e(f"v_mov_b32 v{den1}, v{v}")
    bf16r(e, den1, t1)
    e(f"v_add_f32 v{den1}, 0x{f32bits(1e-5):08x}, v{den1}")
    bf16r(e, den1, t1)
    e(f"v_sqrt_f32 v{den1}, v{den1}")
    e("s_nop 0")
    bf16r(e, den1, t1)
    e(f"v_rcp_f32 v{o+1}, v{den1}")
    e(f"v_mov_b32 v{o}, v{mb}")
    m2, d2 = o + 4, o + 5
    e(f"v_sub_f32 v{m2}, v{m}, v{mb}")
    e(f"v_mul_f32 v{m2}, v{m2}, v{o+1}")
    bf16r(e, m2, t1)
    e(f"v_mul_f32 v{d2}, v{v}, v{o+1}")
    e(f"v_mul_f32 v{d2}, v{d2}, v{o+1}")
    bf16r(e, d2, t1)
    e(f"v_add_f32 v{d2}, 0x{f32bits(1e-5):08x}, v{d2}")
    bf16r(e, d2, t1)
    e(f"v_sqrt_f32 v{d2}, v{d2}")
    e("s_nop 0")
    bf16r(e, d2, t1)
    e(f"v_rcp_f32 v{d2}, v{d2}")
    e(f"v_fma_f32 v{o+2}, v{m2}, v{den1}, v{mb}")
    e(f"v_mul_f32 v{o+3}, v{o+1}, v{d2}")


def row_sums(e, A, aS, aQ):
    e(f"v_mov_b32 v{aS}, 0")
    e(f"v_mov_b32 v{aQ}, 0")
    for i in range(20):
        e(f"v_dot2_f32_bf16 v{aS}, v{A+i}, s57, v{aS}")
        e(f"v_dot2_f32_bf16 v{aQ}, v{A+i}, v{A+i}, v{aQ}")
    e("s_nop 2")
    for sh in (8, 4, 2, 1):
        e(f"v_add_f32_dpp v{aS}, v{aS}, v{aS} row_ror:{sh} row_mask:0xf bank_mask:0xf")
        e(f"v_add_f32_dpp v{aQ}, v{aQ}, v{aQ} row_ror:{sh} row_mask:0xf bank_mask:0xf")
        e("s_nop 0")


def class_combine(e, aC, A, n=8):
    for op in ("v_permlane32_swap_b32", "v_permlane16_swap_b32"):
        for i in range(n):
            e(f"v_mov_b32 v{A+i}, v{aC+i}")
        e("s_nop 1")
        for i in range(n):
            e(f"{op} v{aC+i}, v{A+i}")
        e("s_nop 1")
        for i in range(n):
            e(f"v_add_f32 v{aC+i}, v{aC+i}, v{A+i}")


def row_stats_fb(e, sMt, sWave, R):
    A = R
    vO, aS, aQ, t1, m, v, den1, mb = R + 40, R + 41, R + 42, R + 43, R + 44, R + 45, R + 46, R + 47
    e(f"v_lshrrev_b32 v{vO}, 4, v0")
    e(f"v_mul_u32_u24 v{vO}, 1280, v{vO}")
    e(f"v_and_b32 v{t1}, 15, v0")
    e(f"v_lshl_add_u32 v{vO}, v{t1}, 4, v{vO}")
    e(f"s_lshl_b32 s54, {sMt}, 8")
    e(f"s_lshl_b32 s55, {sWave}, 4")
    e("s_add_u32 s54, s54, s55")
    e("s_mul_i32 s55, s54, 1280")
    e("s_mov_b32 s57, 0x3f803f80")
    e(f"s_lshl_b32 s56, {sWave}, 6")
    e("s_mov_b32 s54, 4")
    e("k1_fbr:")
    for i in range(5):
        e(f"buffer_load_dwordx4 v[{A+4*i}:{A+4*i+3}], v{vO}, s[12:15], s55 offen offset:{i*256}")
    e(f"s_add_u32 s55, s55, {4*1280}")
    e("s_waitcnt vmcnt(0)")
    row_sums(e, A, aS, aQ)
    ln_finalize(e, aS, aQ, A, t1, m, v, den1, mb)
    e("s_cmp_eq_u32 s26, 0")
    e("s_cbranch_scc1 k1_fbq")
    e(f"v_mov_b32 v{A}, v{A+2}")
    e(f"v_mov_b32 v{A+1}, v{A+3}")
    e("k1_fbq:")
    e(f"v_lshrrev_b32 v{t1}, 4, v0")
    e(f"v_lshlrev_b32 v{t1}, 2, v{t1}")
    e(f"v_add_u32 v{t1}, s56, v{t1}")
    e(f"v_add_u32 v{t1}, {F_MU}, v{t1}")
    e(f"ds_write_b32 v{t1}, v{A}")
    e(f"ds_write_b32 v{t1}, v{A+1} offset:1024")
    e("s_waitcnt lgkmcnt(0)")
    e("s_add_u32 s56, s56, 16")
    e("s_sub_u32 s54, s54, 1")
    e("s_cmp_lg_u32 s54, 0")
    e("s_cbranch_scc1 k1_fbr")


def col_stats_fb(e, sWave, R):
    A = R
    aC = R + 40
    vO, t1 = R + 38, R + 39
    e("""
    s_cmp_eq_u32 s26, 0
    s_cselect_b32 s16, s6, s8
    s_cselect_b32 s17, s7, s9
    """)
    csel(e, "s55", 3840, 3456)
    csel(e, "s18", 640*3840, 640*3456)
    e("s_and_b32 s17, s17, 0xffff")
    e("s_mov_b32 s19, 0x00020000")
    e(f"s_mul_i32 s57, {sWave}, 40")
    e("s_mul_i32 s57, s57, s55")
    e("s_add_u32 s56, s28, s57")
    e("s_lshl_b32 s57, s55, 2")
    e(f"v_lshrrev_b32 v{vO}, 4, v0")
    e(f"v_mul_lo_u32 v{vO}, v{vO}, s55")
    e(f"v_and_b32 v{t1}, 15, v0")
    e(f"v_lshl_add_u32 v{vO}, v{t1}, 4, v{vO}")
    e("s_mov_b32 s58, 0x00003f80")
    e("s_mov_b32 s59, 0x3f800000")
    for i in range(8):
        e(f"v_mov_b32 v{aC+i}, 0")
    e("s_mov_b32 s54, 10")
    e("k1_fbc:")
    e(f"buffer_load_dwordx4 v[{A}:{A+3}], v{vO}, s[16:19], s56 offen")
    e("s_add_u32 s56, s56, s57")
    e("s_waitcnt vmcnt(0)")
    for j in range(4):
        e(f"v_dot2_f32_bf16 v{aC+2*j}, v{A+j}, s58, v{aC+2*j}")
        e(f"v_dot2_f32_bf16 v{aC+2*j+1}, v{A+j}, s59, v{aC+2*j+1}")
    e("s_sub_u32 s54, s54, 1")
    e("s_cmp_lg_u32 s54, 0")
    e("s_cbranch_scc1 k1_fbc")
    e("s_nop 2")
    class_combine(e, aC, A)
    e(f"s_lshl_b32 s54, {sWave}, 9")
    e(f"v_lshlrev_b32 v{t1}, 5, v{t1}")
    e(f"v_add_u32 v{t1}, s54, v{t1}")
    e(f"ds_write_b128 v{t1}, v[{aC}:{aC+3}]")
    e(f"ds_write_b128 v{t1}, v[{aC+4}:{aC+7}] offset:16")
    e("s_waitcnt lgkmcnt(0)")
    e("s_barrier")
    e(f"s_cmp_ge_u32 {sWave}, 2")
    e("s_cbranch_scc1 k1_fbs")
    e(f"s_lshl_b32 s57, {sWave}, 8")
    e(f"v_lshlrev_b32 v{t1}, 2, v0")
    e(f"v_add_u32 v{vO}, s57, v{t1}")
    for j in range(16):
        e(f"ds_read_b32 v{A+j}, v{vO} offset:{j*512}")
    e("s_waitcnt lgkmcnt(0)")
    for j in range(1, 16):
        e(f"v_add_f32 v{A}, v{A}, v{A+j}")
    e(f"v_add_u32 v{vO}, {F_CS}, v{vO}")
    e(f"ds_write_b32 v{vO}, v{A}")
    e("s_waitcnt lgkmcnt(0)")
    e("k1_fbs:")


def fetch_issue(e):
    e("s_lshl_b32 s54, s23, 8")
    e("s_lshl_b32 s55, s30, 6")
    e("s_add_u32 s54, s54, s55")
    e("s_lshl_b32 s54, s54, 5")
    e("s_lshl_b32 s55, s26, 4")
    e("s_add_u32 s54, s54, s55")
    e(f"s_add_u32 s54, s54, {ST_OFF}")
    e("v_lshlrev_b32 v73, 5, v0")
    e("buffer_load_dwordx4 v[76:79], v73, s[36:39], s54 offen sc0 sc1")
    e("s_lshl_b32 s31, s35, 13")
    e("s_lshl_b32 s55, s30, 8")
    e("s_add_u32 s31, s31, s55")
    e(f"s_add_u32 s31, s31, {CS_OFF}")
    e("v_and_b32 v74, 15, v0")
    e("v_lshlrev_b32 v74, 4, v74")
    e("v_lshrrev_b32 v75, 4, v0")
    e("v_lshl_add_u32 v75, v75, 11, v74")
    e("buffer_load_dwordx4 v[80:83], v75, s[36:39], s31 offen sc0 sc1")
    e("buffer_load_dwordx4 v[84:87], v75, s[36:39], s31 offen offset:1024 sc0 sc1")


def fetch_check(e):
    e("v_cmp_ne_u32 vcc, s48, v78")
    e("v_cmp_ne_u32 s[54:55], s48, v82")
    e("v_cmp_ne_u32 s[56:57], s48, v86")
    e("s_nop 3")
    e("s_or_b64 s[54:55], s[54:55], vcc")
    e("s_or_b64 s[54:55], s[54:55], s[56:57]")
    e("s_cmp_eq_u32 s48, 0")
    e("s_cselect_b32 s54, 1, s54")
    e("s_cmp_eq_u64 s[54:55], 0")
    e("s_cselect_b32 s50, 1, 0")


def fetch_commit(e):
    e("s_lshl_b32 s54, s30, 8")
    e("v_lshlrev_b32 v72, 2, v0")
    e("v_add_u32 v72, s54, v72")
    e(f"v_add_u32 v72, {F_MU}, v72")
    e("ds_write_b32 v72, v76")
    e("ds_write_b32 v72, v77 offset:1024")
    e("v_add_f32 v80, v80, v84")
    e("v_add_f32 v81, v81, v85")
    class_combine(e, 80, 84, 2)
    e("s_lshl_b32 s54, s30, 7")
    e("v_and_b32 v74, 15, v0")
    e("v_lshlrev_b32 v74, 3, v74")
    e("v_add_u32 v74, s54, v74")
    e(f"v_add_u32 v74, {F_CS}, v74")
    e("ds_write_b64 v74, v[80:81]")
    e("s_waitcnt lgkmcnt(0)")


def gen_k1(e):
    kernel_head(e, "gemm1_kernel")
    e("""
    s_cmp_ge_u32 s2, 256
    s_cbranch_scc1 k1_done
    s_load_dwordx2 s[4:5], s[0:1], 80
    s_load_dwordx2 s[6:7], s[0:1], 8
    s_load_dwordx2 s[8:9], s[0:1], 32
    s_load_dwordx2 s[10:11], s[0:1], 40
    s_load_dwordx2 s[60:61], s[0:1], 0
    s_load_dwordx2 s[62:63], s[0:1], 72
    v_lshrrev_b32 v1, 6, v0
    v_and_b32 v0, 63, v0
    s_and_b32 s20, s2, 7
    v_readfirstlane_b32 s24, v1
    s_lshr_b32 s21, s2, 3
    s_and_b32 s22, s21, 3
    s_lshr_b32 s21, s21, 2
    s_lshr_b32 s26, s20, 2
    s_bfe_u32 s23, s20, 0x10001
    s_lshl_b32 s23, s23, 2
    s_add_u32 s23, s23, s22
    s_and_b32 s27, s20, 1
    """)
    e("""
    s_cmp_eq_u32 s26, 0
    s_cselect_b32 s25, 8, 7
    s_mul_i32 s25, s25, s27
    s_add_u32 s25, s25, s21
    s_lshl_b32 s28, s25, 8
    s_waitcnt lgkmcnt(0)
    """)
    srd(e, 36, "s4", "s5", WS_BYTES)
    srd(e, 12, "s60", "s61", 2048 * 1280)
    srd(e, 64, "s62", "s63", 256)
    e("s_xor_b32 s56, s24, 12")
    e("s_or_b32 s56, s56, s2")
    e("s_cmp_lg_u32 s56, 0")
    e("s_cbranch_scc1 k1_nn")
    e("s_memrealtime s[56:57]")
    e("v_mov_b32 v5, 0")
    e("s_waitcnt lgkmcnt(0)")
    e("s_or_b32 s56, s56, 1")
    e("v_mov_b32 v7, s56")
    e("s_mov_b64 exec, 1")
    e("buffer_store_dword v7, v5, s[64:67], 0 offen sc0 sc1")
    e("s_mov_b64 exec, -1")
    e("k1_nn:")
    stamp_rt(e, 10)
    stamp(e, 0)
    e("""
    s_cmp_eq_u32 s26, 0
    s_cselect_b32 s31, 15, 14
    s_cselect_b32 s32, 8, 7
    s_cmp_ge_u32 s25, s31
    s_cbranch_scc1 k1_pf
    s_cmp_ge_u32 s21, s32
    s_cbranch_scc1 k1_pf
    s_cmp_eq_u32 s26, 0
    s_cselect_b32 s35, 0, 15
    s_add_u32 s35, s35, s25
    s_branch k1_gemm
    """)
    e("k1_pf:")
    e("""
    s_load_dwordx2 s[40:41], s[0:1], 48
    s_load_dwordx2 s[42:43], s[0:1], 16
    s_lshr_b32 s30, s20, 1
    s_sub_u32 s31, s20, 2
    s_cmp_lt_u32 s20, 4
    s_cselect_b32 s30, s30, s31
    s_lshl_b32 s30, s30, 2
    s_add_u32 s30, s30, s22
    s_lshl_b32 s30, s30, 4
    s_add_u32 s30, s30, s24
    v_lshlrev_b32 v2, 4, v0
    s_waitcnt lgkmcnt(0)
    """)
    srd(e, 16, "s40", "s41", 1728 * 1280)
    srd(e, 44, "s42", "s43", 640 * 1280)
    e("s_lshl_b32 s31, s30, 10")
    for i in range(6):
        e(f"buffer_load_dwordx4 v[{4+4*i}:{7+4*i}], v2, s[16:19], s31 offen")
        e("s_waitcnt vmcnt(0)")
        if i < 3:
            e(f"buffer_load_dwordx4 v[{28+4*i}:{31+4*i}], v2, s[44:47], s31 offen")
            e("s_waitcnt vmcnt(0)")
        e(f"s_add_u32 s31, s31, {384*1024}")
    e("s_waitcnt vmcnt(0)")
    e("s_branch k1_done")
    e("k1_gemm:")
    e("s_cmp_lt_u32 s24, 8")
    e("s_cbranch_scc1 k1_compute")
    vDAe, vDAo, vDB = 2, 3, 4
    T = 56
    e("""
    s_cmp_eq_u32 s26, 0
    s_cselect_b32 s32, s6, s8
    s_cselect_b32 s33, s7, s9
    """)
    csel(e, "s29", 3840, 3456)
    csel(e, "s34", 640*3840, 640*3456)
    e("""
    s_add_u32 s16, s32, s28
    s_addc_u32 s17, s33, 0
    s_and_b32 s17, s17, 0xffff
    s_sub_u32 s18, s34, s28
    s_mov_b32 s19, 0x00020000
    s_lshl_b32 s45, s29, 2
    s_and_b32 s30, s24, 3
    s_cmp_ge_u32 s24, 12
    s_cbranch_scc1 k1_sw
    """)
    e(f"v_lshrrev_b32 v{T}, 3, v0")
    e(f"v_mul_u32_u24 v{T}, 1280, v{T}")
    e(f"v_and_b32 v{T+1}, 7, v0")
    e(f"v_lshrrev_b32 v{T+2}, 4, v0")
    e(f"v_xor_b32 v{T+3}, v{T+1}, v{T+2}")
    e(f"v_lshl_add_u32 v{vDAe}, v{T+3}, 4, v{T}")
    e(f"v_xor_b32 v{T+3}, 4, v{T+3}")
    e(f"v_lshl_add_u32 v{vDAo}, v{T+3}, 4, v{T}")
    e(f"v_lshrrev_b32 v{T}, 4, v0")
    e(f"v_bfe_u32 v{T+1}, v0, 2, 2")
    e(f"v_xor_b32 v{T+1}, v{T+1}, v{T}")
    e(f"v_and_b32 v{T+2}, 3, v0")
    e(f"v_lshlrev_b32 v{T+2}, 4, v{T+2}")
    e(f"v_lshl_add_u32 v{T+2}, v{T+1}, 6, v{T+2}")
    e(f"v_mul_lo_u32 v{T+3}, v{T}, s29")
    e(f"v_add_u32 v{vDB}, v{T+3}, v{T+2}")
    e("s_lshl_b32 s40, s23, 8")
    e("s_lshl_b32 s31, s30, 6")
    e("s_add_u32 s40, s40, s31")
    e("s_mul_i32 s40, s40, 1280")
    e("s_lshl_b32 s41, s30, 4")
    e("s_mul_i32 s41, s41, s29")
    e("s_lshl_b32 s44, s29, 6")
    e("s_lshl_b32 s46, s30, 13")
    e("s_lshl_b32 s47, s30, 12")
    e(f"s_add_u32 s47, s47, {F_ASB}")
    e("s_mov_b32 s42, 0")

    def issue():
        e("s_mov_b32 s50, s40")
        e("s_mov_b32 s51, s41")
        e("s_add_u32 s52, s42, s46")
        e("s_add_u32 s53, s42, s47")
        for i in range(8):
            e(f"s_add_u32 m0, s52, {i*1024}")
            e(f"s_add_u32 s50, s50, {8*1280}" if i else "s_nop 0")
            e(f"buffer_load_dwordx4 v{vDAo if i & 1 else vDAe}, s[12:15], s50 offen lds")
        for i in range(4):
            e(f"s_add_u32 m0, s53, {i*1024}")
            e("s_add_u32 s51, s51, s45" if i else "s_nop 0")
            e(f"buffer_load_dwordx4 v{vDB}, s[16:19], s51 offen lds")
        e("s_add_u32 s40, s40, 128")
        e("s_add_u32 s41, s41, s44")
        e(f"s_add_u32 s42, s42, {F_SB}")
        e(f"s_cmp_eq_u32 s42, {F_SB*F_NBUF}")
        e("s_cselect_b32 s42, 0, s42")
    D = 12
    issue()
    issue()
    e(f"s_waitcnt vmcnt({D})")
    e("s_barrier")
    e(f"s_mov_b32 s49, {F_NST-2}")
    e("k1_hl:")
    issue()
    e(f"s_waitcnt vmcnt({D})")
    e("s_barrier")
    e("s_sub_u32 s49, s49, 1")
    e("s_cmp_lg_u32 s49, 0")
    e("s_cbranch_scc1 k1_hl")
    e("s_waitcnt vmcnt(0)")
    e("s_barrier")
    e("s_barrier")
    e("s_branch k1_sync")

    e("k1_sw:")
    A = 16
    C = 84
    aC = 40
    vO, aS, aQ, t1, m, v, den1, mb = 48, 49, 50, 51, 52, 53, 54, 55
    e("v_mov_b32 v5, 0")
    e(f"v_mov_b32 v6, {F_FLAG}")
    e("ds_write_b32 v6, v5")
    e("ds_write_b32 v6, v5 offset:4")
    e("s_waitcnt lgkmcnt(0)")
    e("s_barrier")
    e("s_mul_i32 s54, s23, 80")
    e("s_mul_i32 s56, s30, 20")
    e("s_add_u32 s54, s54, s56")
    e("s_mul_i32 s54, s54, s29")
    e(f"v_lshrrev_b32 v{vO}, 4, v0")
    e(f"v_mul_lo_u32 v{m}, v{vO}, s29")
    e(f"v_and_b32 v{t1}, 15, v0")
    e(f"v_lshl_add_u32 v{m}, v{t1}, 4, v{m}")
    for i in range(5):
        e(f"buffer_load_dwordx4 v[{C+4*i}:{C+4*i+3}], v{m}, s[16:19], s54 offen")
        e("s_add_u32 s54, s54, s45")
    e("s_mul_i32 s54, s35, 9")
    e("s_lshl_b32 s55, s30, 2")
    e("s_add_u32 s54, s54, s55")
    e("s_lshl_b32 s55, s23, 8")
    e("s_add_u32 s55, s55, s54")
    e("s_mul_i32 s56, s55, 1280")
    e(f"v_mul_u32_u24 v{vO}, 1280, v{vO}")
    e(f"v_lshl_add_u32 v{vO}, v{t1}, 4, v{vO}")
    for i in range(5):
        e(f"buffer_load_dwordx4 v[{A+4*i}:{A+4*i+3}], v{vO}, s[12:15], s56 offen offset:{i*256}")
    e("s_cmp_lg_u32 s30, 3")
    e("s_cbranch_scc1 k1_nb")
    srd(e, 56, "s10", "s11", 1728 * 2)
    e(f"v_lshlrev_b32 v{T+3}, 4, v0")
    e(f"s_mov_b32 m0, {F_BI}")
    e("s_mov_b64 exec, 0xffff")
    e(f"buffer_load_dwordx4 v{T+3}, s[56:59], s28 offen lds")
    e("s_mov_b64 exec, -1")
    e("k1_nb:")
    e("buffer_load_dword v7, v5, s[64:67], 0 offen sc0 sc1")
    e("s_barrier")
    stamp(e, 0)
    e("s_waitcnt vmcnt(0)")
    e("v_readfirstlane_b32 s48, v7")
    e("buffer_load_dword v7, v5, s[64:67], 0 offen sc0 sc1")
    e("s_mov_b32 s58, 0x00003f80")
    e("s_mov_b32 s59, 0x3f800000")
    for i in range(8):
        e(f"v_mov_b32 v{aC+i}, 0")
    for i in range(5):
        for j in range(4):
            e(f"v_dot2_f32_bf16 v{aC+2*j}, v{C+4*i+j}, s58, v{aC+2*j}")
            e(f"v_dot2_f32_bf16 v{aC+2*j+1}, v{C+4*i+j}, s59, v{aC+2*j+1}")
    e("s_barrier")
    e("s_nop 2")
    class_combine(e, aC, C)
    e("s_lshl_b32 s56, s30, 9")
    e(f"v_lshlrev_b32 v{t1}, 5, v{t1}")
    e(f"v_add_u32 v{t1}, s56, v{t1}")
    e(f"v_add_u32 v{t1}, {F_PT}, v{t1}")
    e(f"ds_write_b128 v{t1}, v[{aC}:{aC+3}]")
    e(f"ds_write_b128 v{t1}, v[{aC+4}:{aC+7}] offset:16")
    e("s_waitcnt lgkmcnt(0)")
    e("s_barrier")
    stamp(e, 1)
    e("s_mov_b32 s57, 0x3f803f80")
    e("s_cmp_eq_u32 s30, 3")
    e("s_cbranch_scc1 k1_s3a")
    row_sums(e, A, aS, aQ)
    e("k1_s3a:")
    e("s_barrier")
    e("s_waitcnt vmcnt(0)")
    e("v_readfirstlane_b32 s56, v7")
    e("s_nop 3")
    e("s_cmp_eq_u32 s48, 0")
    e("s_cselect_b32 s48, s56, s48")
    e("s_cmp_eq_u32 s30, 3")
    e("s_cbranch_scc1 k1_s3")
    ln_finalize(e, aS, aQ, A, t1, m, v, den1, mb)
    e(f"v_and_b32 v{m}, 15, v0")
    e(f"v_cmp_eq_u32 vcc, 1, v{m}")
    e(f"v_lshrrev_b32 v{t1}, 4, v0")
    e(f"v_add_u32 v{v}, s54, v{t1}")
    e(f"v_cndmask_b32 v{A}, v{A}, v{A+2}, vcc")
    e(f"v_cndmask_b32 v{A+1}, v{A+1}, v{A+3}, vcc")
    e(f"v_mov_b32 v{A+2}, s48")
    e(f"v_mov_b32 v{A+3}, s48")
    e(f"v_cmp_gt_u32 vcc, 256, v{v}")
    e("s_lshl_b32 s56, s30, 2")
    e(f"v_add_u32 v{v}, s56, v{t1}")
    e(f"v_cmp_gt_u32 s[58:59], 9, v{v}")
    e(f"v_lshlrev_b32 v{t1}, 5, v{t1}")
    e(f"v_lshl_add_u32 v{t1}, v{m}, 4, v{t1}")
    e("s_lshl_b32 s56, s55, 5")
    e(f"s_add_u32 s56, s56, {ST_OFF}")
    e("s_and_b64 s[58:59], s[58:59], vcc")
    e("s_and_b32 s58, s58, 0x00030003")
    e("s_and_b32 s59, s59, 0x00030003")
    e("s_mov_b64 exec, s[58:59]")
    e("s_cbranch_execz k1_lr0")
    e(f"buffer_store_dwordx4 v[{A}:{A+3}], v{t1}, s[36:39], s56 offen sc0 sc1")
    e("k1_lr0:")
    e("s_mov_b64 exec, -1")
    e("s_branch k1_lj")
    e("k1_s3:")
    e(f"v_lshlrev_b32 v{t1}, 3, v0")
    e(f"v_add_u32 v{vO}, {F_PT}, v{t1}")
    for j in range(4):
        e(f"ds_read_b64 v[{A+2*j}:{A+2*j+1}], v{vO} offset:{j*512}")
    e("s_lshl_b32 s56, s35, 3")
    e("s_add_u32 s56, s56, s23")
    e("s_lshl_b32 s56, s56, 10")
    e(f"s_add_u32 s56, s56, {CS_OFF}")
    e(f"v_lshlrev_b32 v{t1}, 4, v0")
    e("s_waitcnt lgkmcnt(0)")
    for j in range(1, 4):
        e(f"v_add_f32 v{A}, v{A}, v{A+2*j}")
        e(f"v_add_f32 v{A+1}, v{A+1}, v{A+2*j+1}")
    e(f"v_mov_b32 v{A+2}, s48")
    e(f"v_mov_b32 v{A+3}, s48")
    e(f"buffer_store_dwordx4 v[{A}:{A+3}], v{t1}, s[36:39], s56 offen sc0 sc1")
    e("k1_lj:")
    e("s_barrier")
    stamp(e, 2)
    e("s_barrier")
    e("s_barrier")
    fetch_issue(e)
    e("s_barrier")
    stamp(e, 3)
    e("s_waitcnt vmcnt(0)")
    fetch_check(e)
    if os.environ.get("FORCEFB") or os.environ.get("FORCESLOW"):
        e("s_cmp_eq_u32 s50, 12345")
    e("s_cbranch_scc1 k1_rdy1")
    fetch_issue(e)
    e("s_barrier")
    e("s_waitcnt vmcnt(0)")
    fetch_check(e)
    if os.environ.get("FORCEFB") or os.environ.get("FORCESLOW"):
        e("s_cmp_eq_u32 s50, 12345")
    e("s_cbranch_scc1 k1_rdy2")
    e("v_mov_b32 v5, 1")
    e("ds_write_b32 v6, v5")
    e("s_waitcnt lgkmcnt(0)")
    e("s_branch k1_t9")
    e("k1_rdy1:")
    fetch_commit(e)
    e("s_barrier")
    e("s_branch k1_t9")
    e("k1_rdy2:")
    fetch_commit(e)
    e("k1_t9:")
    e("s_barrier")
    e("s_branch k1_sync")

    e("k1_compute:")
    ACC = 8
    FR_ = [([72, 76], [80, 84]), ([88, 92], [96, 100])]
    vA0 = [104, 105, 106, 107]
    vB0 = [108, 109]
    vA = [110, 111, 112, 113]
    vB = [114, 115]
    vL = 116
    T = 72
    T0 = 117
    sRd, sCnt, sWM, sWN, sRole = 40, 41, 42, 43, 44
    ROLE = {'mlp': 1, 'qk': 2, 'v': 3}
    sT = 46

    def accr(tm, tn):
        return ACC + (tm * 2 + tn) * 16
    e(f"s_lshr_b32 s{sWM}, s24, 1")
    e(f"s_and_b32 s{sWN}, s24, 1")
    e(f"v_lshlrev_b32 v{vL}, 4, v0")
    e(f"v_lshrrev_b32 v{T}, 5, v0")
    e(f"v_and_b32 v{T+1}, 31, v0")
    e(f"v_bfe_u32 v{T+2}, v0, 1, 3")
    e(f"s_lshl_b32 s{sT}, s{sWM}, 13")
    e(f"v_lshlrev_b32 v{T+3}, 7, v{T+1}")
    e(f"v_add_u32 v{T+3}, s{sT}, v{T+3}")
    for kg in range(4):
        e(f"v_add_u32 v{T+4}, {2*kg}, v{T}")
        e(f"v_xor_b32 v{T+4}, v{T+4}, v{T+2}")
        e(f"v_lshl_add_u32 v{vA0[kg]}, v{T+4}, 4, v{T+3}")
    e(f"v_bfe_u32 v{T+1}, v0, 2, 2")
    e(f"v_mad_u32_u24 v{T+2}, v{T}, 8, v{T+1}")
    e(f"v_lshlrev_b32 v{T+2}, 8, v{T+2}")
    e(f"v_bfe_u32 v{T+3}, v0, 4, 1")
    e(f"v_lshl_add_u32 v{T+2}, v{T+3}, 5, v{T+2}")
    e(f"v_and_b32 v{T+3}, 3, v0")
    e(f"v_lshl_add_u32 v{T+2}, v{T+3}, 3, v{T+2}")
    e(f"v_add_u32 v{T+2}, {F_ASB}, v{T+2}")
    for j in range(2):
        e(f"s_lshl_b32 s{sT}, s{sWN}, 1")
        e(f"s_add_u32 s{sT}, s{sT}, {j}")
        e(f"v_xor_b32 v{T+3}, s{sT}, v{T+1}")
        e(f"v_lshl_add_u32 v{vB0[j]}, v{T+3}, 6, v{T+2}")
    for i in range(64):
        e(f"v_mov_b32 v{ACC+i}, 0")
    e(f"s_mov_b32 s{sRd}, 0")

    def set_bases():
        for kg in range(4):
            e(f"v_add_u32 v{vA[kg]}, s{sRd}, v{vA0[kg]}")
        for j in range(2):
            e(f"v_add_u32 v{vB[j]}, s{sRd}, v{vB0[j]}")

    def reads(p, kg):
        a, b = FR_[p]
        ra = [f"ds_read_b128 v[{a[j]}:{a[j]+3}], v{vA[kg]} offset:{j*4096}" for j in range(2)]
        rb = []
        for j in range(2):
            for t in range(2):
                rb.append(f"ds_read_b64_tr_b16 v[{b[j]+2*t}:{b[j]+2*t+1}], v{vB[j]} offset:{(kg*16 + t*4)*256}")
        return ra[:1] + rb + ra[1:]

    def mfmas(p, orient):
        a, b = FR_[p]
        out = []
        for tm in range(2):
            for tn in range(2):
                d = accr(tm, tn)
                s0, s1 = (b[tn], a[tm]) if orient == 'n' else (a[tm], b[tn])
                out.append(f"v_mfma_f32_32x32x16_bf16 v[{d}:{d+15}], v[{s0}:{s0+3}], v[{s1}:{s1+3}], v[{d}:{d+15}]")
        return out

    def main(orient, tag):
        L = f"k1_{tag}_loop"
        set_bases()
        e(f"s_mov_b32 s{sCnt}, {F_NST}")
        stamp(e, 1)
        e("s_barrier")
        stamp(e, 2)
        for r in reads(0, 0):
            e(r)
        e(f"{L}:")
        for kg in range(4):
            p = kg & 1
            mf = mfmas(p, orient)
            if kg < 3:
                rd = reads(p ^ 1, kg + 1)
                e("s_waitcnt lgkmcnt(3)")
                e(mf[0])
                for r in rd[:3]:
                    e(r)
                e("s_waitcnt lgkmcnt(4)")
                e(mf[1])
                for r in rd[3:]:
                    e(r)
                e("s_waitcnt lgkmcnt(6)")
                e(mf[2])
                e(mf[3])
            else:
                e(f"s_add_u32 s{sRd}, s{sRd}, {F_SB}")
                e(f"s_cmp_eq_u32 s{sRd}, {F_SB*F_NBUF}")
                e(f"s_cselect_b32 s{sRd}, 0, s{sRd}")
                e("s_waitcnt lgkmcnt(0)")
                e("s_barrier")
                e(mf[0])
                set_bases()
                rd = reads(p ^ 1, 0)
                for r in rd[:3]:
                    e(r)
                e(mf[1])
                for r in rd[3:]:
                    e(r)
                e(mf[2])
                e(mf[3])
        e(f"s_sub_u32 s{sCnt}, s{sCnt}, 1")
        e(f"s_cmp_lg_u32 s{sCnt}, 0")
        e(f"s_cbranch_scc1 {L}")
        e("s_waitcnt lgkmcnt(0)")
        stamp(e, 3)
        e(f"s_mov_b32 s{sRole}, {ROLE[tag]}")
        e("s_nop 15")
        e("s_branch k1_sync")
        e(f"k1_ret_{tag}:")

    MU, CSr, AD = 104, 72, 108

    def ln_fix_n(scale_sgpr):
        e(f"v_and_b32 v{AD}, 31, v0")
        e(f"s_lshl_b32 s{sT}, s{sWM}, 8")
        e(f"v_lshlrev_b32 v{AD}, 2, v{AD}")
        e(f"v_add_u32 v{AD}, s{sT}, v{AD}")
        e(f"v_add_u32 v{AD}, {F_MU}, v{AD}")
        e(f"ds_read_b32 v{MU}, v{AD}")
        e(f"ds_read_b32 v{MU+1}, v{AD} offset:128")
        e(f"ds_read_b32 v{MU+2}, v{AD} offset:1024")
        e(f"ds_read_b32 v{MU+3}, v{AD} offset:1152")
        e(f"v_lshrrev_b32 v{AD+1}, 5, v0")
        e(f"v_lshlrev_b32 v{AD+1}, 4, v{AD+1}")
        e(f"s_lshl_b32 s{sT}, s{sWN}, 8")
        e(f"v_add_u32 v{AD+1}, s{sT}, v{AD+1}")
        e(f"v_add_u32 v{AD+1}, {F_CS}, v{AD+1}")
        for tn in range(2):
            for gg in range(4):
                e(f"ds_read_b128 v[{CSr+16*tn+4*gg}:{CSr+16*tn+4*gg+3}], v{AD+1} offset:{(tn*32+gg*8)*4}")
        for tn in range(2):
            e(f"s_waitcnt lgkmcnt({4 if tn == 0 else 0})")
            if tn == 0 and scale_sgpr:
                e(f"v_mul_f32 v{MU+2}, {scale_sgpr}, v{MU+2}")
                e(f"v_mul_f32 v{MU+3}, {scale_sgpr}, v{MU+3}")
            for tm in range(2):
                a = accr(tm, tn)
                for i in range(16):
                    e(f"v_fma_f32 v{a+i}, -v{MU+tm}, v{CSr+16*tn+i}, v{a+i}")

    e("s_cmp_eq_u32 s26, 0")
    e("s_cbranch_scc1 k1_qkv")
    main('n', 'mlp')
    e(f"s_lshl_b32 s{sT}, s{sWN}, 6")
    e(f"s_lshr_b32 s{sT+1}, s28, 1")
    e(f"s_add_u32 s{sT+6}, s{sT}, s{sT+1}")
    e(f"s_cmp_ge_u32 s{sT+6}, 1728")
    e("s_cbranch_scc1 k1_end")
    ln_fix_n(None)
    BI = 88
    e(f"v_lshrrev_b32 v{AD}, 5, v0")
    e(f"v_lshlrev_b32 v{AD}, 3, v{AD}")
    e(f"s_lshl_b32 s{sT}, s{sWN}, 7")
    e(f"v_add_u32 v{AD}, s{sT}, v{AD}")
    e(f"v_add_u32 v{AD}, {F_BI}, v{AD}")
    for tn in range(2):
        for gg in range(4):
            r = BI + (tn * 4 + gg) * 2
            e(f"ds_read_b64 v[{r}:{r+1}], v{AD} offset:{(tn*32+gg*8)*2}")
    e("s_waitcnt lgkmcnt(0)")
    for tn in range(2):
        for gg in range(4):
            r = BI + (tn * 4 + gg) * 2
            e(f"v_lshlrev_b32 v{T}, 16, v{r}")
            e(f"v_and_b32 v{T+1}, 0xffff0000, v{r}")
            e(f"v_lshlrev_b32 v{T+2}, 16, v{r+1}")
            e(f"v_and_b32 v{T+3}, 0xffff0000, v{r+1}")
            for tm in range(2):
                a = accr(tm, tn) + gg * 4
                for i in range(4):
                    e(f"v_fma_f32 v{a+i}, v{a+i}, v{MU+2+tm}, v{T+i}")
    e(f"s_lshl_b32 s{sT+1}, s23, 3")
    e(f"s_lshl_b32 s{sT+7}, s{sWM}, 1")
    e(f"s_add_u32 s{sT+1}, s{sT+1}, s{sT+7}")
    e(f"s_lshr_b32 s{sT}, s{sT+6}, 4")
    e(f"s_lshl_b32 s{sT}, s{sT}, 6")
    e(f"s_add_u32 s{sT}, s{sT}, s{sT+1}")
    e(f"s_lshl_b32 s{sT}, s{sT}, 10")
    e(f"s_add_u32 s{sT}, s{sT}, {H_OFF}")
    for i in range(1, 4):
        e(f"s_add_u32 s{sT+i}, s{sT}, {65536*i}")
    c0 = -2.0 * math.sqrt(2.0 / math.pi) * 1.4426950408889634
    c1 = c0 * 0.044715
    tmpv = 110
    e(f"v_mov_b32 v{tmpv}, 0x{f32bits(c0):08x}")
    e(f"v_mov_b32 v{tmpv+1}, 0x{f32bits(c1):08x}")
    for tm in range(2):
        for tn in range(2):
            a = accr(tm, tn)
            for half in range(2):
                t = 72 + 8 * ((tm * 4 + tn * 2 + half) & 1)
                pk = 88 + 4 * ((tm * 4 + tn * 2 + half) & 1)
                r0 = a + half * 8
                for i in range(8):
                    e(f"v_mul_f32 v{t+i}, v{r0+i}, v{r0+i}")
                for i in range(8):
                    e(f"v_fma_f32 v{t+i}, v{t+i}, v{tmpv+1}, v{tmpv}")
                for i in range(8):
                    e(f"v_mul_f32 v{t+i}, v{t+i}, v{r0+i}")
                for i in range(8):
                    e(f"v_exp_f32 v{t+i}, v{t+i}")
                for i in range(8):
                    e(f"v_add_f32 v{t+i}, 1.0, v{t+i}")
                for i in range(8):
                    e(f"v_rcp_f32 v{t+i}, v{t+i}")
                for i in range(8):
                    e(f"v_mul_f32 v{t+i}, v{t+i}, v{r0+i}")
                for i in range(4):
                    e(f"v_cvt_pk_bf16_f32 v{pk+i}, v{t+2*i}, v{t+2*i+1}")
                so = sT + tn * 2 + half
                e(f"buffer_store_dwordx4 v[{pk}:{pk+3}], v{vL}, s[36:39], s{so} offen offset:{tm*1024}")
    e("s_branch k1_end")
    e("k1_qkv:")
    e("s_cmp_ge_u32 s25, 10")
    e("s_cbranch_scc1 k1_v")
    main('n', 'qk')
    qs = (20 ** -0.5) * 1.4426950408889634
    e("s_cmp_lt_u32 s25, 5")
    e(f"s_cselect_b32 s{sT+5}, 0x{f32bits(qs):08x}, 1.0")
    ln_fix_n(f"s{sT+5}")
    e("s_cmp_lt_u32 s25, 5")
    csel(e, f"s{sT+1}", 1280, 2560)
    csel(e, f"s{sT+6}", QF_OFF, KV_OFF)
    e(f"s_cselect_b32 s{sT+7}, 0, 5")
    e(f"s_sub_u32 s{sT+7}, s25, s{sT+7}")
    e(f"s_lshl_b32 s{sT+7}, s{sT+7}, 5")
    e(f"s_lshl_b32 s{sT+2}, s{sWN}, 4")
    e(f"s_add_u32 s{sT+7}, s{sT+7}, s{sT+2}")
    e(f"s_lshl_b32 s{sT+2}, s23, 3")
    e(f"s_lshl_b32 s{sT+3}, s{sWM}, 1")
    e(f"s_add_u32 s{sT+2}, s{sT+2}, s{sT+3}")
    e(f"s_mul_i32 s{sT+2}, s{sT+2}, s{sT+1}")
    e(f"s_add_u32 s{sT+2}, s{sT+2}, s{sT+6}")
    e(f"s_add_u32 s{sT+3}, s{sT+2}, s{sT+1}")
    e(f"s_lshl_b32 s{sT+4}, s{sT+1}, 6")
    t = T
    e(f"v_lshrrev_b32 v{t}, 5, v0")
    e(f"v_add_u32 v{t}, s{sT+7}, v{t}")
    e(f"v_and_b32 v{t+1}, 31, v0")
    e(f"v_lshlrev_b32 v{t+2}, 4, v{t+1}")
    e(f"v_lshlrev_b32 v{t+3}, 3, v{t+1}")
    for tn in range(2):
        for gg in range(4):
            c, hd, j, ad = t + 4, t + 5, t + 6, t + 7
            e(f"v_add_u32 v{c}, {8*tn+2*gg}, v{t}")
            e(f"v_mul_u32_u24 v{hd}, 205, v{c}")
            e(f"v_lshrrev_b32 v{hd}, 10, v{hd}")
            e(f"v_mul_u32_u24 v{j}, 5, v{hd}")
            e(f"v_sub_u32 v{j}, v{c}, v{j}")
            e(f"v_cmp_eq_u32 vcc, 4, v{j}")
            e(f"v_mul_lo_u32 v{ad}, v{hd}, s{sT+4}")
            e(f"v_lshrrev_b32 v{c}, 1, v{j}")
            e(f"v_lshl_add_u32 v{ad}, v{c}, 9, v{ad}")
            e(f"v_and_b32 v{c}, 1, v{j}")
            e(f"v_lshl_add_u32 v{ad}, v{c}, 3, v{ad}")
            e(f"v_cndmask_b32 v{c}, v{t+2}, v{t+3}, vcc")
            e(f"v_add_u32 v{ad}, v{ad}, v{c}")
            for tm in range(2):
                a = accr(tm, tn) + gg * 4
                pk = t + 8 + 2 * tm
                for i in range(4):
                    e(f"v_mul_f32 v{a+i}, v{a+i}, v{MU+2+tm}")
                e(f"v_cvt_pk_bf16_f32 v{pk}, v{a}, v{a+1}")
                e(f"v_cvt_pk_bf16_f32 v{pk+1}, v{a+2}, v{a+3}")
                e(f"buffer_store_dwordx2 v[{pk}:{pk+1}], v{ad}, s[36:39], s{sT+2+tm} offen")
    e("s_branch k1_end")
    e("k1_v:")
    main('t', 'v')
    e("s_waitcnt vmcnt(0)")
    e(f"v_and_b32 v{AD}, 31, v0")
    e(f"v_lshlrev_b32 v{AD}, 2, v{AD}")
    e(f"s_lshl_b32 s{sT}, s{sWN}, 8")
    e(f"v_add_u32 v{AD}, s{sT}, v{AD}")
    e(f"v_add_u32 v{AD}, {F_CS}, v{AD}")
    e(f"ds_read_b32 v104, v{AD}")
    e(f"ds_read_b32 v105, v{AD} offset:128")
    e(f"v_lshrrev_b32 v{AD+1}, 5, v0")
    e(f"v_lshlrev_b32 v{AD+1}, 4, v{AD+1}")
    e(f"s_lshl_b32 s{sT}, s{sWM}, 8")
    e(f"v_add_u32 v{AD+1}, s{sT}, v{AD+1}")
    e(f"v_add_u32 v{AD+1}, {F_MU}, v{AD+1}")
    for tm in range(2):
        MUr, RSr = 72, 88
        for gg in range(4):
            e(f"ds_read_b128 v[{MUr+4*gg}:{MUr+4*gg+3}], v{AD+1} offset:{(tm*32+gg*8)*4}")
            e(f"ds_read_b128 v[{RSr+4*gg}:{RSr+4*gg+3}], v{AD+1} offset:{1024+(tm*32+gg*8)*4}")
        e("s_waitcnt lgkmcnt(0)")
        for tn in range(2):
            a = accr(tm, tn)
            for i in range(16):
                e(f"v_fma_f32 v{a+i}, -v{MUr+i}, v{104+tn}, v{a+i}")
            for i in range(16):
                e(f"v_mul_f32 v{a+i}, v{a+i}, v{RSr+i}")
    e(f"s_sub_u32 s{sT}, s25, 10")
    e(f"s_lshl_b32 s{sT}, s{sT}, 7")
    e(f"s_lshl_b32 s{sT+1}, s{sWN}, 6")
    e(f"s_add_u32 s{sT}, s{sT}, s{sT+1}")
    e(f"s_lshl_b32 s{sT+2}, s23, 3")
    e(f"s_lshl_b32 s{sT+3}, s{sWM}, 1")
    e(f"s_add_u32 s{sT+2}, s{sT+2}, s{sT+3}")
    e(f"s_mul_i32 s{sT+2}, s{sT+2}, 2560")
    e(f"s_add_u32 s{sT+2}, s{sT+2}, {KV_OFF + 1280}")
    e(f"s_mov_b32 s{sT+4}, {64*2560}")
    t = T
    e(f"v_and_b32 v{t}, 31, v0")
    e(f"v_add_u32 v{t}, s{sT}, v{t}")
    e(f"v_lshrrev_b32 v{t+1}, 5, v0")
    e(f"v_mul_u32_u24 v{t+1}, 320, v{t+1}")
    for tn in range(2):
        c, hd, d, ad = t + 4, t + 5, t + 6, t + 7
        e(f"v_add_u32 v{c}, {32*tn}, v{t}")
        e(f"v_mul_u32_u24 v{hd}, 3277, v{c}")
        e(f"v_lshrrev_b32 v{hd}, 16, v{hd}")
        e(f"v_mul_u32_u24 v{d}, 20, v{hd}")
        e(f"v_sub_u32 v{d}, v{c}, v{d}")
        e(f"v_mul_lo_u32 v{ad}, v{hd}, s{sT+4}")
        e(f"v_lshl_add_u32 v{ad}, v{d}, 4, v{ad}")
        e(f"v_add_u32 v{ad}, v{ad}, v{t+1}")
        for tm in range(2):
            a = accr(tm, tn)
            for half in range(2):
                pk = t + 8 + 4 * ((tm * 2 + half) & 1)
                for i in range(4):
                    e(f"v_cvt_pk_bf16_f32 v{pk+i}, v{a+half*8+2*i}, v{a+half*8+2*i+1}")
                e(f"buffer_store_dwordx4 v[{pk}:{pk+3}], v{ad}, s[36:39], s{sT+2} offen offset:{tm*2560+half*640}")
    e("s_branch k1_end")
    e("k1_sync:")
    e(f"v_mov_b32 v117, {F_FLAG}")
    e("ds_read_b32 v118, v117")
    e("s_waitcnt lgkmcnt(0)")
    e("v_readfirstlane_b32 s54, v118")
    e("s_nop 3")
    e("s_cmp_eq_u32 s54, 0")
    e("s_cbranch_scc1 k1_go")
    e("s_cmp_lt_u32 s24, 12")
    e("s_cbranch_scc1 k1_np")
    e(f"s_mov_b32 s49, {SPIN_MAX}")
    e("k1_poll:")
    fetch_issue(e)
    e("s_waitcnt vmcnt(0)")
    e("s_sub_u32 s49, s49, 1")
    fetch_check(e)
    if os.environ.get("FORCEFB"):
        e("s_cmp_eq_u32 s50, 12345")
    e("s_cbranch_scc1 k1_got")
    e("s_sleep 8")
    e("s_cmp_lg_u32 s49, 0")
    e("s_cbranch_scc1 k1_poll")
    e("v_mov_b32 v73, 1")
    e("ds_write_b32 v117, v73 offset:4")
    e("s_waitcnt lgkmcnt(0)")
    e("s_branch k1_np")
    e("k1_got:")
    fetch_commit(e)
    e("k1_np:")
    e("s_barrier")
    e("ds_read_b32 v118, v117 offset:4")
    e("s_waitcnt lgkmcnt(0)")
    e("v_readfirstlane_b32 s54, v118")
    e("s_nop 3")
    e("s_cmp_eq_u32 s54, 0")
    e("s_cbranch_scc1 k1_go")
    row_stats_fb(e, "s23", "s24", 72)
    col_stats_fb(e, "s24", 72)
    e("s_barrier")
    e("k1_go:")
    e("s_cmp_ge_u32 s24, 8")
    e("s_cbranch_scc1 k1_end")
    e(f"v_lshlrev_b32 v{vL}, 4, v0")
    e(f"s_cmp_eq_u32 s{sRole}, 1")
    e("s_cbranch_scc1 k1_ret_mlp")
    e(f"s_cmp_eq_u32 s{sRole}, 2")
    e("s_cbranch_scc1 k1_ret_qk")
    e("s_branch k1_ret_v")
    e("k1_end:")
    stamp(e, 4)
    e("s_waitcnt vmcnt(0)")
    stamp(e, 5)
    stamp_rt(e, 11)
    stamp_store(e, 1, "s24", 36)
    e("k1_done:")
    e("s_endpgm")
    return kd("gemm1_kernel", 120, 96), F_LDS


AT_STAGE = 8 * 2560
K2_KGS = 2
K2_NBUF = 5


def gen_k2(e):
    kernel_head(e, "attn_kernel")
    e("""
    s_cmp_ge_u32 s2, 416
    s_cbranch_scc1 k2_done
    s_load_dwordx2 s[4:5], s[0:1], 80
    s_load_dwordx2 s[6:7], s[0:1], 48
    s_load_dwordx2 s[8:9], s[0:1], 56
    v_lshrrev_b32 v1, 6, v0
    v_and_b32 v0, 63, v0
    s_and_b32 s20, s2, 7
    v_readfirstlane_b32 s24, v1
    s_cmp_ge_u32 s2, 256
    s_cbranch_scc1 k2_mlp
    """)
    Q1, Q2 = 4, 8
    KF = [(12, 16), (20, 24)]
    VF = [(28, 32), (36, 40)]
    SS = [44, 60]
    PP = [76, 84]
    O = 92
    vK, vKh, vV, vKn, vKhn = 108, 109, 110, 111, 112
    vK0, vKh0, vV0 = 113, 114, 115
    vInc, vIncW, vMask, vD2 = 116, 117, 118, 119
    T = 120
    CA = 3 * AT_STAGE
    e("""
    s_lshr_b32 s21, s2, 3
    s_lshr_b32 s22, s21, 3
    s_lshl_b32 s23, s20, 2
    s_add_u32 s22, s22, s23
    s_and_b32 s23, s21, 7
    """)
    e("s_waitcnt lgkmcnt(0)")
    srd(e, 36, "s4", "s5", WS_BYTES)
    stamp_rt(e, 10)
    stamp(e, 0)
    e(f"s_mul_i32 s25, s22, {64*2560}")
    e(f"s_add_u32 s25, s25, {KV_OFF}")
    e("s_add_u32 s12, s4, s25")
    e("s_addc_u32 s13, s5, 0")
    e("s_and_b32 s13, s13, 0xffff")
    e(f"s_mov_b32 s14, {64*2560}")
    e("s_mov_b32 s15, 0x00020000")
    e(f"v_lshlrev_b32 v{vK0}, 4, v0")
    e("s_cmp_lt_u32 s24, 4")
    e("s_mul_i32 s26, s24, 3072")
    e("s_lshl_b32 s27, s24, 11")
    e("s_add_u32 s27, s27, 4096")
    e("s_cmp_lt_u32 s24, 4")
    e("s_cselect_b32 s26, s26, s27")
    e("s_mov_b32 s30, s26")
    e("s_mov_b32 s31, s26")

    def dma(tag):
        e("s_mov_b32 m0, s31")
        e("s_cmp_lt_u32 s24, 4")
        e(f"buffer_load_dwordx4 v{vK0}, s[12:15], s30 offen lds")
        e(f"buffer_load_dwordx4 v{vK0}, s[12:15], s30 offen offset:1024 lds")
        e(f"s_cbranch_scc0 k2_dm{tag}")
        e(f"buffer_load_dwordx4 v{vK0}, s[12:15], s30 offen offset:2048 lds")
        e(f"k2_dm{tag}:")
        e(f"s_add_u32 s31, s31, {AT_STAGE}")
        e(f"s_add_u32 s30, s30, {AT_STAGE}")
        e(f"s_cmp_ge_u32 s31, {3*AT_STAGE}")
        e("s_cselect_b32 s31, s26, s31")
    e(f"v_and_b32 v{T}, 31, v0")
    e(f"v_lshlrev_b32 v{vKh0}, 3, v{T}")
    e(f"v_add_u32 v{vKh0}, 1024, v{vKh0}")
    e("s_lshl_b32 s32, s23, 3")
    e("s_add_u32 s32, s32, s24")
    e("s_lshl_b32 s33, s22, 6")
    e("s_add_u32 s33, s33, s32")
    e("s_mul_i32 s33, s33, 1280")
    e(f"s_add_u32 s33, s33, {QF_OFF}")
    for i in range(4):
        e(f"v_mov_b32 v{Q2+i}, 0")
    dma("p0")
    e(f"buffer_load_dwordx4 v[{Q1}:{Q1+3}], v{vK0}, s[36:39], s33 offen")
    e("s_mov_b32 exec_hi, 0")
    e(f"buffer_load_dwordx2 v[{Q2}:{Q2+1}], v{vKh0}, s[36:39], s33 offen")
    e("s_mov_b64 exec, -1")
    e(f"v_lshrrev_b32 v{T+1}, 5, v0")
    e(f"v_mad_u32_u24 v{vV0}, v{T+1}, 20, v{T}")
    e(f"v_lshlrev_b32 v{vV0}, 4, v{vV0}")
    e(f"v_add_u32 v{vV0}, 1280, v{vV0}")
    e("s_mov_b32 s28, 0x000fffff")
    e("s_mov_b32 s29, 0x000fffff")
    X = SS[0]
    e(f"v_and_b32 v{T+2}, 1, v0")
    e(f"v_cmp_eq_u32 vcc, 0, v{T+2}")
    e(f"v_mov_b32 v{T+3}, 0x3f803f80")
    e(f"v_bfe_u32 v{T+4}, v0, 1, 1")
    e(f"v_mul_u32_u24 v{T+4}, 640, v{T+4}")
    e(f"v_lshl_add_u32 v{T+4}, v{T+2}, 4, v{T+4}")
    for i in range(4):
        e(f"v_cndmask_b32 v{X+i}, 0, v{T+3}, vcc")
    e(f"ds_write_b128 v{T+4}, v[{X}:{X+3}] offset:{CA}")
    e(f"v_cmp_gt_u32 vcc, 20, v{T}")
    e(f"v_cmp_eq_u32 s[40:41], 20, v{T}")
    e(f"v_mov_b32 v{T+5}, {CA+16}")
    e(f"v_mov_b32 v{T+6}, {CA}")
    e(f"v_cndmask_b32 v{T+5}, v{T+5}, v{T+6}, s[40:41]")
    e(f"v_cndmask_b32 v{vV}, v{T+5}, v{vV0}, vcc")
    e(f"v_cndmask_b32 v{vMask}, 0, 1, vcc")
    e(f"v_mul_u32_u24 v{vInc}, 2560, v{vMask}")
    for lo, hi in KF:
        for i in range(4):
            e(f"v_mov_b32 v{hi+i}, 0")
    for a, b in VF:
        for r in (a, b):
            for i in range(4):
                e(f"v_mov_b32 v{r+i}, 0")
    for i in range(8):
        e(f"v_mov_b32 v{PP[1]+i}, 0")
    for i in range(16):
        e(f"v_mov_b32 v{O+i}, 0")
    e(f"v_mov_b32 v{vKn}, v{vK0}")
    e(f"v_mov_b32 v{vKhn}, v{vKh0}")
    e(f"s_mov_b32 s34, {AT_STAGE}")
    e("s_mov_b32 s35, 8")

    def rdK(t, p):
        lo, hi = KF[p]
        a, b = (vK, vKh) if t < 8 else (vKn, vKhn)
        o = (t % 8) * 2560
        return [f"ds_read_b128 v[{lo}:{lo+3}], v{a} offset:{o}",
                f"ds_read_b64 v[{hi}:{hi+1}], v{b} offset:{o}"]

    def rdV(p):
        v0_, v1_ = VF[p]
        return [f"ds_read_b128 v[{v0_}:{v0_+3}], v{vV}",
                f"ds_read_b128 v[{v1_}:{v1_+3}], v{vV} offset:640"]

    def mS(S, p):
        lo, hi = KF[p]
        return [f"v_mfma_f32_32x32x16_bf16 v[{S}:{S+15}], v[{lo}:{lo+3}], v[{Q1}:{Q1+3}], 0",
                f"v_mfma_f32_32x32x16_bf16 v[{S}:{S+15}], v[{hi}:{hi+3}], v[{Q2}:{Q2+3}], v[{S}:{S+15}]"]

    def mPV(p, P):
        v0_, v1_ = VF[p]
        return [f"v_mfma_f32_32x32x16_bf16 v[{O}:{O+15}], v[{v0_}:{v0_+3}], v[{P}:{P+3}], v[{O}:{O+15}]",
                f"v_mfma_f32_32x32x16_bf16 v[{O}:{O+15}], v[{v1_}:{v1_+3}], v[{P+4}:{P+7}], v[{O}:{O+15}]"]

    stamp(e, 1)
    e("s_waitcnt vmcnt(0) lgkmcnt(0)")
    e("s_barrier")
    stamp(e, 2)
    dma("p1")
    for r in rdK(8, 0) + rdK(9, 1):
        e(r)
    e("s_waitcnt lgkmcnt(0)")
    for m in mS(SS[0], 0):
        e(m)
    e("s_nop 7")
    e("k2_stage:")
    e("s_waitcnt vmcnt(0)")
    e("s_barrier")
    dma("l")
    e(f"v_mov_b32 v{vK}, v{vKn}")
    e(f"v_mov_b32 v{vKh}, v{vKhn}")
    e(f"v_add_u32 v{vKn}, s34, v{vK0}")
    e(f"v_add_u32 v{vKhn}, s34, v{vKh0}")
    e("s_cmp_eq_u32 s34, 0")
    csel(e, "s27", 2560 - 3 * AT_STAGE, 2560)
    e(f"v_mul_lo_u32 v{vIncW}, v{vMask}, s27")
    e(f"s_add_u32 s34, s34, {AT_STAGE}")
    e(f"s_cmp_eq_u32 s34, {3*AT_STAGE}")
    e("s_cselect_b32 s34, 0, s34")

    def phase(S, P, mf, extra):
        ex = list(extra)
        for q in range(4):
            e(mf[q])
            for i in range(4):
                e(f"v_exp_f32 v{S+4*q+i}, v{S+4*q+i}")
                if ex and i in (0, 2):
                    x = ex.pop(0)
                    if x:
                        e(x)
            e(f"v_cvt_pk_bf16_f32 v{P+2*q}, v{S+4*q}, v{S+4*q+1}")
            e(f"v_cvt_pk_bf16_f32 v{P+2*q+1}, v{S+4*q+2}, v{S+4*q+3}")
        assert not ex

    for t in range(8):
        p = t & 1
        inc = vIncW if t == 7 else vInc
        X_ = os.environ.get("ATX", "")
        ex = rdV(p) + rdK(t + 2, p) + [f"v_add_u32 v{vV}, v{vV}, v{inc}", None, None, "s_waitcnt lgkmcnt(0)"]
        if "nolds" in X_:
            ex = []
        if "nowait" in X_:
            ex = ex[:-1]
        if "nopsonly" in X_:
            ex = ["s_nop 0"] * 4 + ex[4:]
        if "onlyk" in X_:
            ex = ["s_nop 0"] * 2 + ex[2:]
        if "onlyv" in X_:
            ex = ex[:2] + ["s_nop 0"] * 2 + ex[4:]
        if "late" in X_:
            pass
        PR = os.environ.get("PRIO", "none")
        if PR != "none" and (t == 0 or PR[t] != PR[t-1]):
            e(f"s_setprio {PR[t]}")
        mf = mS(SS[p ^ 1], p ^ 1) + mPV(p ^ 1, PP[p ^ 1])
        if "nopv" in X_:
            mf = mf[:2] + ["s_nop 0", "s_nop 0"]
        if "nos" in X_:
            mf = ["s_nop 0", "s_nop 0"] + mf[2:]
        if "pvq" in X_:
            mf = mf[:2] + [f"v_mfma_f32_32x32x16_bf16 v[{O}:{O+15}], v[{VF[0][0]}:{VF[0][0]+3}], v[{Q1}:{Q1+3}], v[{O}:{O+15}]"] * 2
        if "sacc" in X_:
            mf = [f"v_mfma_f32_32x32x16_bf16 v[{O}:{O+15}], v[{KF[0][0]}:{KF[0][0]+3}], v[{Q1}:{Q1+3}], v[{O}:{O+15}]"] * 2 + mf[2:]
        phase(SS[p], PP[p], mf, ex)
    e("s_sub_u32 s35, s35, 1")
    e("s_cmp_lg_u32 s35, 0")
    e("s_cbranch_scc1 k2_stage")
    for m in mPV(1, PP[1]):
        e(m)
    e("s_waitcnt lgkmcnt(0) vmcnt(0)")
    e("s_nop 15")
    stamp(e, 3)
    L = T
    lo_lim = f32bits(2.0 ** -80)
    hi_lim = f32bits(2.0 ** 100)

    def bcast_l(dst, tmp):
        e(f"v_mov_b32 v{tmp}, v{O+8}")
        e(f"v_mov_b32 v{dst}, v{O+8}")
        e("s_nop 1")
        e(f"v_permlane32_swap_b32 v{tmp}, v{dst}")

    e(f"v_mov_b32 v{T+4}, 0")
    bcast_l(L, T + 2)
    for i in range(12):
        e(f"v_fma_f32 v{T+4}, v{O+i}, 0, v{T+4}")
    e(f"s_mov_b32 s40, 0x{lo_lim:08x}")
    e(f"s_mov_b32 s41, 0x{hi_lim:08x}")
    e(f"v_cmp_u_f32 s[42:43], v{T+4}, v{T+4}")
    e(f"v_cmp_nle_f32 s[44:45], s40, v{L}")
    e(f"v_cmp_nge_f32 s[46:47], s41, v{L}")
    e("s_nop 3")
    e("s_or_b64 s[42:43], s[42:43], s[44:45]")
    e("s_or_b64 s[42:43], s[42:43], s[46:47]")
    e("s_cmp_eq_u64 s[42:43], 0")
    e("s_cbranch_scc1 k2_epi")
    v0_, v1_ = VF[0]
    Sa, Pa = SS[0], PP[0]
    e(f"v_and_b32 v{T+2}, 31, v0")
    e(f"v_cmp_eq_u32 vcc, 20, v{T+2}")
    e(f"v_mov_b32 v{T+3}, 0x3f803f80")
    e("s_nop 0")
    for r in (v0_, v1_):
        for i in range(4):
            e(f"v_cndmask_b32 v{r+i}, 0, v{T+3}, vcc")
    lo, hi = KF[0]
    M = T + 6
    e(f"v_mov_b32 v{M}, 0xff800000")
    e("s_mov_b32 s40, 0")
    e(f"k2_fb1:")
    e(f"buffer_load_dwordx4 v[{lo}:{lo+3}], v{vK0}, s[12:15], s40 offen")
    e(f"buffer_load_dwordx2 v[{hi}:{hi+1}], v{vKh0}, s[12:15], s40 offen")
    e("s_waitcnt vmcnt(0)")
    for m in mS(Sa, 0):
        e(m)
    e("s_nop 15")
    e("s_nop 3")
    for i in range(8):
        e(f"v_max3_f32 v{M}, v{Sa+2*i}, v{Sa+2*i+1}, v{M}")
    e("s_add_u32 s40, s40, 2560")
    e(f"s_cmp_lt_u32 s40, {64*2560}")
    e(f"s_cbranch_scc1 k2_fb1")
    e(f"v_mov_b32 v{M+1}, v{M}")
    e("s_nop 1")
    e(f"v_permlane32_swap_b32 v{M}, v{M+1}")
    e("s_nop 1")
    e(f"v_max_f32 v{M}, v{M}, v{M+1}")
    for i in range(16):
        e(f"v_mov_b32 v{O+i}, 0")
    e("s_mov_b32 s40, 0")
    e(f"k2_fb2:")
    e(f"buffer_load_dwordx4 v[{lo}:{lo+3}], v{vK0}, s[12:15], s40 offen")
    e(f"buffer_load_dwordx2 v[{hi}:{hi+1}], v{vKh0}, s[12:15], s40 offen")
    e("s_mov_b64 exec, s[28:29]")
    e(f"buffer_load_dwordx4 v[{v0_}:{v0_+3}], v{vV0}, s[12:15], s40 offen")
    e(f"buffer_load_dwordx4 v[{v1_}:{v1_+3}], v{vV0}, s[12:15], s40 offen offset:640")
    e("s_mov_b64 exec, -1")
    e("s_waitcnt vmcnt(0)")
    for m in mS(Sa, 0):
        e(m)
    e("s_nop 15")
    e("s_nop 3")
    for i in range(16):
        e(f"v_sub_f32 v{Sa+i}, v{Sa+i}, v{M}")
    for i in range(16):
        e(f"v_exp_f32 v{Sa+i}, v{Sa+i}")
    e("s_nop 0")
    for i in range(8):
        e(f"v_cvt_pk_bf16_f32 v{Pa+i}, v{Sa+2*i}, v{Sa+2*i+1}")
    e("s_nop 1")
    for m in mPV(0, Pa):
        e(m)
    e("s_add_u32 s40, s40, 2560")
    e(f"s_cmp_lt_u32 s40, {64*2560}")
    e("s_nop 7")
    e(f"s_cbranch_scc1 k2_fb2")
    e("s_nop 15")
    bcast_l(L, T + 2)
    e("k2_epi:")
    e("s_lshl_b32 s41, s22, 6")
    e("s_add_u32 s41, s41, s32")
    e("s_lshl_b32 s41, s41, 10")
    e(f"s_add_u32 s41, s41, {O_OFF}")
    e("s_lshr_b32 s43, s22, 2")
    e("s_add_u32 s43, s43, 32")
    e("s_lshl_b32 s43, s43, 6")
    e("s_add_u32 s43, s43, s32")
    e("s_lshl_b32 s43, s43, 10")
    e("s_bfe_u32 s44, s22, 0x10001")
    e("s_lshl_b32 s44, s44, 9")
    e("s_add_u32 s43, s43, s44")
    e("s_and_b32 s44, s22, 1")
    e("s_lshl_b32 s44, s44, 3")
    e("s_add_u32 s43, s43, s44")
    e(f"s_add_u32 s43, s43, {O_OFF}")
    e(f"v_rcp_f32 v{L}, v{L}")
    e("s_nop 0")
    pk = PP[0]
    for i in range(12):
        e(f"v_mul_f32 v{O+i}, v{O+i}, v{L}")
    for i in range(6):
        e(f"v_cvt_pk_bf16_f32 v{pk+i}, v{O+2*i}, v{O+2*i+1}")
    e(f"buffer_store_dwordx4 v[{pk}:{pk+3}], v{vK0}, s[36:39], s41 offen")
    e("s_mov_b32 exec_hi, 0")
    e(f"buffer_store_dwordx2 v[{pk+4}:{pk+5}], v{vK0}, s[36:39], s43 offen")
    e("s_mov_b64 exec, -1")
    e("s_branch k2_end")

    e("k2_mlp:")
    if os.environ.get("PRIO", "none") != "none":
        e("s_setprio 3")
    g = Gemm("k2", NWM=2, NWN=2, TM=2, TN=1, KGS=K2_KGS, NBUF=K2_NBUF, KG=108, korder='d', NL=1, vbase=8, sbase=40)
    e("""
    s_sub_u32 s21, s2, 256
    s_lshr_b32 s21, s21, 3
    s_cmp_ge_u32 s21, 10
    s_cselect_b32 s22, 1, 0
    s_cselect_b32 s23, 10, 0
    s_sub_u32 s25, s21, s23
    s_lshl_b32 s23, s20, 1
    s_add_u32 s23, s23, s22
    s_lshl_b32 s28, s25, 7
    s_mov_b32 s29, 1280
    s_waitcnt lgkmcnt(0)
    """)
    srd(e, 36, "s4", "s5", WS_BYTES)
    stamp_rt(e, 10)
    stamp(e, 0)
    e("s_cmp_lt_u32 s24, 4")
    e("s_cbranch_scc1 k2_mc")
    e("s_cmp_gt_u32 s24, 4")
    e("s_cbranch_scc1 k2_done")
    e("""
    s_add_u32 s16, s6, s28
    s_addc_u32 s17, s7, 0
    s_and_b32 s17, s17, 0xffff
    """)
    e(f"s_sub_u32 s18, {1728*1280}, s28")
    e("s_mov_b32 s19, 0x00020000")
    e(f"s_add_u32 s12, s4, {H_OFF}")
    e("s_addc_u32 s13, s5, 0")
    e("s_and_b32 s13, s13, 0xffff")
    e(f"s_mov_b32 s14, {108*65536}")
    e("s_mov_b32 s15, 0x00020000")
    e("s_lshl_b32 s34, s23, 12")
    g.loader_setup(e, "s29", "s34")
    g.loader(e, 0, 12, 16, "k2_end")
    e("k2_mc:")
    g.setup(e, "s24")
    sWM, sWN = g.send, g.send + 1
    e(f"s_lshr_b32 s{sWM}, s24, 1")
    e(f"s_and_b32 s{sWN}, s24, 1")
    sT = (g.send + 2 + 3) // 4 * 4 + 2
    tmpv = g.vend
    srd(e, sT + 2, "s8", "s9", 640 * 2)
    e(f"s_lshl_b32 s{sT}, s{sWN}, 6")
    e(f"s_add_u32 s{sT}, s{sT}, s28")
    load_bias_init(e, g, sT + 2, f"s{sT}", tmpv)
    e(f"s_waitcnt vmcnt(0)")
    finish_bias_init(e, g, tmpv)
    g.main(e, 'n', 'm')
    e(f"s_lshl_b32 s{sT}, s23, 2")
    e(f"s_lshl_b32 s{sT+1}, s{sWM}, 1")
    e(f"s_add_u32 s{sT}, s{sT}, s{sT+1}")
    e(f"s_mul_i32 s{sT}, s{sT}, 20")
    e(f"s_lshl_b32 s{sT+1}, s25, 1")
    e(f"s_add_u32 s{sT}, s{sT}, s{sT+1}")
    e(f"s_add_u32 s{sT}, s{sT}, s{sWN}")
    e(f"s_lshl_b32 s{sT}, s{sT}, 11")
    e(f"s_add_u32 s{sT}, s{sT}, {G_OFF}")
    e(f"s_add_u32 s{sT+1}, s{sT}, {20*2048}")
    e(f"v_mov_b32 v{tmpv}, 0x{f32bits(-1.4426950408889634):08x}")
    for tm in range(2):
        a = g.accr(tm, 0)
        for half in range(2):
            t = tmpv + 4 + 8 * half
            pk = tmpv + 20 + 4 * half
            r0 = a + half * 8
            for i in range(8):
                e(f"v_mul_f32 v{t+i}, v{r0+i}, v{tmpv}")
            for i in range(8):
                e(f"v_exp_f32 v{t+i}, v{t+i}")
            for i in range(8):
                e(f"v_add_f32 v{t+i}, 1.0, v{t+i}")
            for i in range(8):
                e(f"v_rcp_f32 v{t+i}, v{t+i}")
            for i in range(8):
                e(f"v_mul_f32 v{t+i}, v{t+i}, v{r0+i}")
            for i in range(4):
                e(f"v_cvt_pk_bf16_f32 v{pk+i}, v{t+2*i}, v{t+2*i+1}")
            e(f"buffer_store_dwordx4 v[{pk}:{pk+3}], v{g.vDA}, s[36:39], s{sT+tm} offen offset:{half*1024}")
    e("k2_end:")
    stamp(e, 4)
    e("s_waitcnt vmcnt(0)")
    stamp(e, 5)
    stamp_rt(e, 11)
    stamp_store(e, 2, "s24", 36)
    e("k2_done:")
    e("s_endpgm")
    nv = max(T + 8, tmpv + 28)
    assert nv <= 128, nv
    return kd("attn_kernel", nv, 96), max(CA + 640 + 32, g.lds_bytes)


K3_NBUF = 11


def gen_k3(e):
    kernel_head(e, "out_kernel")
    g = Gemm("k3", NWM=2, NWN=2, TM=2, TN=1, KGS=2, NBUF=K3_NBUF, KG=40, korder='d', NL=2, vbase=8, sbase=48)
    e("""
    s_cmp_ge_u32 s2, 160
    s_cbranch_scc1 k3_done
    s_load_dwordx2 s[4:5], s[0:1], 80
    s_load_dwordx2 s[6:7], s[0:1], 16
    s_load_dwordx2 s[8:9], s[0:1], 0
    s_load_dwordx2 s[10:11], s[0:1], 64
    v_lshrrev_b32 v1, 6, v0
    v_and_b32 v0, 63, v0
    s_and_b32 s20, s2, 7
    v_readfirstlane_b32 s24, v1
    s_lshr_b32 s21, s2, 3
    s_cmp_ge_u32 s21, 10
    s_cselect_b32 s22, 1, 0
    s_cselect_b32 s23, 10, 0
    s_sub_u32 s25, s21, s23
    s_lshl_b32 s23, s20, 1
    s_add_u32 s23, s23, s22
    s_lshl_b32 s28, s25, 7
    s_mov_b32 s29, 1280
    s_waitcnt lgkmcnt(0)
    """)
    srd(e, 36, "s4", "s5", WS_BYTES)
    stamp_rt(e, 10)
    stamp(e, 0)
    e("s_cmp_lt_u32 s24, 4")
    e("s_cbranch_scc1 k3_c")
    e("""
    s_add_u32 s16, s6, s28
    s_addc_u32 s17, s7, 0
    s_and_b32 s17, s17, 0xffff
    """)
    e(f"s_sub_u32 s18, {640*1280}, s28")
    e("s_mov_b32 s19, 0x00020000")
    e(f"s_add_u32 s12, s4, {O_OFF}")
    e("s_addc_u32 s13, s5, 0")
    e("s_and_b32 s13, s13, 0xffff")
    e(f"s_mov_b32 s14, {FR}")
    e("s_mov_b32 s15, 0x00020000")
    e("s_lshl_b32 s34, s23, 12")
    g.loader_setup(e, "s29", "s34")
    t = g.vt
    e(f"v_lshrrev_b32 v{t+2}, 2, v{t}")
    e(f"v_mul_u32_u24 v{t+2}, 40, v{t+2}")
    e(f"v_and_b32 v{t+3}, 3, v{t}")
    e(f"v_add_u32 v{t+2}, v{t+2}, v{t+3}")
    e(f"v_mul_u32_u24 v{t+2}, 1280, v{t+2}")
    e(f"v_add_u32 v{g.vDB2}, v{t+2}, v{t+1}")
    e("s_cmp_eq_u32 s24, 5")
    e("s_cbranch_scc1 k3_ld1")
    D = 6
    for kgl in range(2):
        if kgl == 1:
            e("k3_ld1:")

        def issue(st_):
            buf = (st_ % g.NBUF) * g.SB
            kg = st_ * 2 + kgl
            e(f"s_mov_b32 m0, {buf + kgl*4096}")
            e(f"s_add_u32 s{g.st}, s34, {kg*65536}")
            for i in range(4):
                off = f" offset:{i*1024}" if i else ""
                e(f"buffer_load_dwordx4 v{g.vDA}, s[12:15], s{g.st} offen{off} lds")
            for tt in range(2):
                e(f"s_mov_b32 m0, {buf + g.ASB + (kgl*2+tt)*1024}")
                if kg < 32:
                    e(f"s_mov_b32 s{g.st}, {(20*kg + 8*tt)*1280}")
                    e(f"buffer_load_dwordx4 v{g.vDB}, s[16:19], s{g.st} offen lds")
                else:
                    G = kg - 32
                    e(f"s_mov_b32 s{g.st}, {((4*G + tt)*20 + 16)*1280}")
                    e(f"buffer_load_dwordx4 v{g.vDB2}, s[16:19], s{g.st} offen lds")
        npre = 4
        for s_ in range(npre):
            issue(s_)
        e(f"s_waitcnt vmcnt({(npre-1)*D})")
        e("s_barrier")
        for s_ in range(npre, g.NBUF - 1):
            issue(s_)
        for s_ in range(g.NST):
            outst = max(0, min(s_ + g.NBUF - 2, g.NST - 1) - (s_ + 1) + 1)
            e(f"s_waitcnt vmcnt({max(0, outst-1)*D})")
            e("s_barrier")
            if s_ + g.NBUF - 1 < g.NST:
                issue(s_ + g.NBUF - 1)
        e("s_branch k3_end")
    e("k3_c:")
    srd(e, 12, "s8", "s9", 2048 * 1280)
    srd(e, 32, "s10", "s11", 2048 * 1280)
    g.setup(e, "s24")
    sWM, sWN = g.send, g.send + 1
    e(f"s_lshr_b32 s{sWM}, s24, 1")
    e(f"s_and_b32 s{sWN}, s24, 1")
    sT = g.send + 2
    GV = g.vend
    XV = GV + 16
    vX = XV + 16
    T = vX + 4
    e(f"s_lshl_b32 s{sT}, s23, 2")
    e(f"s_lshl_b32 s{sT+1}, s{sWM}, 1")
    e(f"s_add_u32 s{sT}, s{sT}, s{sT+1}")
    e(f"s_mul_i32 s{sT+1}, s{sT}, 20")
    e(f"s_lshl_b32 s{sT+2}, s25, 1")
    e(f"s_add_u32 s{sT+1}, s{sT+1}, s{sT+2}")
    e(f"s_add_u32 s{sT+1}, s{sT+1}, s{sWN}")
    e(f"s_lshl_b32 s{sT+1}, s{sT+1}, 11")
    e(f"s_add_u32 s{sT+1}, s{sT+1}, {G_OFF}")
    e(f"s_add_u32 s{sT+2}, s{sT+1}, {20*2048}")
    e(f"v_and_b32 v{T}, 31, v0")
    e(f"v_mul_u32_u24 v{vX}, 1280, v{T}")
    e(f"v_lshrrev_b32 v{T+1}, 5, v0")
    e(f"v_lshl_add_u32 v{vX}, v{T+1}, 4, v{vX}")
    e(f"s_mul_i32 s{sT+3}, s{sT}, {32*1280}")
    e(f"s_add_u32 s{sT+3}, s{sT+3}, s28")
    e(f"s_lshl_b32 s{sT+4}, s{sWN}, 6")
    e(f"s_add_u32 s{sT+3}, s{sT+3}, s{sT+4}")
    e(f"s_add_u32 s{sT+4}, s{sT+3}, {32*1280}")
    for i in range(32):
        e(f"v_mov_b32 v{g.acc+i}, 0")

    def late_loads():
        for tm in range(2):
            for half in range(2):
                r = GV + tm * 8 + half * 4
                e(f"buffer_load_dwordx4 v[{r}:{r+3}], v{g.vDA}, s[36:39], s{sT+1+tm} offen offset:{half*1024}")
        for tm in range(2):
            for pp in range(2):
                r = XV + (tm * 2 + pp) * 4
                e(f"buffer_load_dwordx4 v[{r}:{r+3}], v{vX}, s[12:15], s{sT+3+tm} offen offset:{pp*32}")
    g.main(e, 'n', 'm', late_loads)
    e("s_waitcnt vmcnt(0)")
    for tm in range(2):
        for pp in range(2):
            r = XV + (tm * 2 + pp) * 4
            e(f"v_permlane32_swap_b32 v{r}, v{r+2}")
            e(f"v_permlane32_swap_b32 v{r+1}, v{r+3}")
    for tm in range(2):
        for pp in range(2):
            ob = T + ((tm * 2 + pp) & 1) * 4
            for q in range(2):
                gg = pp * 2 + q
                a = g.accr(tm, 0) + 4 * gg
                gr = GV + tm * 8 + gg * 2
                xr = XV + (tm * 2 + pp) * 4 + q * 2
                t = T + 8
                e(f"v_cvt_pk_bf16_f32 v{t}, v{a}, v{a+1}")
                e(f"v_cvt_pk_bf16_f32 v{t+1}, v{a+2}, v{a+3}")
                for i in range(2):
                    e(f"v_lshlrev_b32 v{t+2+2*i}, 16, v{t+i}")
                    e(f"v_and_b32 v{t+3+2*i}, 0xffff0000, v{t+i}")
                    e(f"v_lshlrev_b32 v{t+6+2*i}, 16, v{gr+i}")
                    e(f"v_and_b32 v{t+7+2*i}, 0xffff0000, v{gr+i}")
                for i in range(4):
                    e(f"v_mul_f32 v{t+2+i}, v{t+2+i}, v{t+6+i}")
                e(f"v_cvt_pk_bf16_f32 v{t}, v{t+2}, v{t+3}")
                e(f"v_cvt_pk_bf16_f32 v{t+1}, v{t+4}, v{t+5}")
                for i in range(2):
                    e(f"v_lshlrev_b32 v{t+2+2*i}, 16, v{t+i}")
                    e(f"v_and_b32 v{t+3+2*i}, 0xffff0000, v{t+i}")
                    e(f"v_lshlrev_b32 v{t+6+2*i}, 16, v{xr+i}")
                    e(f"v_and_b32 v{t+7+2*i}, 0xffff0000, v{xr+i}")
                for i in range(4):
                    e(f"v_add_f32 v{t+2+i}, v{t+2+i}, v{t+6+i}")
                e(f"v_cvt_pk_bf16_f32 v{ob+2*q}, v{t+2}, v{t+3}")
                e(f"v_cvt_pk_bf16_f32 v{ob+2*q+1}, v{t+4}, v{t+5}")
            e("s_nop 1")
            e(f"v_permlane32_swap_b32 v{ob}, v{ob+2}")
            e(f"v_permlane32_swap_b32 v{ob+1}, v{ob+3}")
            e(f"buffer_store_dwordx4 v[{ob}:{ob+3}], v{vX}, s[32:35], s{sT+3+tm} offen offset:{pp*32}")
    e("k3_end:")
    stamp(e, 4)
    e("s_waitcnt vmcnt(0)")
    stamp(e, 5)
    stamp_rt(e, 11)
    stamp_store(e, 3, "s24", 36)
    e("k3_done:")
    e("s_endpgm")
    return kd("out_kernel", T + 20, 96), g.lds_bytes


def main():
    e = Em()
    kds = []
    k1kd, k1lds = gen_k1(e)
    kds.append(k1kd)
    k2kd, k2lds = gen_k2(e)
    kds.append(k2kd)
    k3kd, k3lds = gen_k3(e)
    kds.append(k3kd)
    launches = [
        f"; @launch kernel=gemm1_kernel grid=(256,1,1) block=(1024,1,1) lds={k1lds}",
        f"; @launch kernel=attn_kernel grid=(416,1,1) block=(512,1,1) lds={k2lds}",
        f"; @launch kernel=out_kernel grid=(160,1,1) block=(384,1,1) lds={k3lds}",
    ]
    head = "\n".join(launches) + "\n" + '.amdgcn_target "amdgcn-amd-amdhsa--gfx950"\n.text\n'
    tail = '.section .rodata,"a"\n.p2align 6\n' + ".p2align 6\n".join(kds)
    body = e.text()
    import re
    mode = os.environ.get("STF", "x4")
    def flag(txt):
        pat = r"(buffer_store_dwordx4 [^\n]*?)(\n)" if mode == "x4" else r"(buffer_store_dwordx[24] [^\n]*?)(\n)"
        return re.sub(pat, lambda m: m.group(1) + ("" if "sc0" in m.group(1) else " sc0 sc1") + m.group(2), txt)
    if mode != "none":
        a, c = body.split("out_kernel:", 1)
        body = flag(a) + "out_kernel:" + c
    out = head + body + tail
    path = sys.argv[1] if len(sys.argv) > 1 else f"cdna_kernels/{NAME}.s"
    open(path, "w").write(out)
    print("wrote", path, len(out))


if __name__ == "__main__":
    main()
```
